```python
import torch

def _softmax(x, axis=-1):
    return torch.softmax(x, dim=axis)

def _gelu(x):
    return torch.nn.functional.gelu(x, approximate='tanh')

def _silu(x):
    return torch.nn.functional.silu(x)

def _sigmoid(x):
    return torch.sigmoid(x)

def _layernorm(x, axis=-1, eps=1e-05):
    m = x.mean(dim=axis, keepdim=True)
    v = x.var(dim=axis, keepdim=True, unbiased=False)
    return (x - m) / torch.sqrt(v + eps)

def _scatter_add(tgt, idx, src, axis=0):
    return tgt.clone().index_add_(axis, idx, src)

def _segment_sum(src, seg, n):
    out = torch.zeros((n,) + src.shape[1:], dtype=src.dtype)
    return out.index_add_(0, seg, src)

def _pad(x, pw):
    flat = tuple((v for pair in reversed(pw) for v in pair))
    return torch.nn.functional.pad(x, flat)
kernel_name = 'standalone__conformer_conv_module__speech'

def setup_inputs():

    _w = lambda a: (lambda t: t.to(torch.bfloat16) if t.is_floating_point() else t)(torch.as_tensor(a))
    B, T, D, K = (2, 16000, 512, 5)
    return {'x': _w((lambda *s: torch.randn(*s, dtype=torch.bfloat16) * 0.2)(B, T, D)), 'w_pw1': _w((lambda *s: torch.randn(*s, dtype=torch.bfloat16) * 0.2)(D, 2 * D)), 'dw': _w((lambda *s: torch.randn(*s, dtype=torch.bfloat16) * 0.2)(K, D)), 'w_pw2': _w((lambda *s: torch.randn(*s, dtype=torch.bfloat16) * 0.05)(D, D))}

def reference(x, w_pw1, dw, w_pw2):
    B, T, D = x.shape
    K = dw.shape[0]
    h = x @ w_pw1
    a, b = (h[..., :D].clone(), h[..., D:].clone())
    h = a * _sigmoid(b)
    pad = K // 2
    hp = _pad(h, ((0, 0), (pad, pad), (0, 0)))
    out = torch.zeros_like(h)
    for i in range(K):
        out = out + hp[:, i:i + T, :] * dw[i][None, None, :]
    return _silu(out) @ w_pw2
```

```python
import sys

KN = "standalone__conformer_conv_module__speech"
STAMP_OFF = 255 * 1024 * 1024

HEAD = """; Kernarg layout for this problem (56 bytes, ptrs only, base s[0:1]):
"""

def ACC(i, j): return 4 * (i * 8 + j)
VH = 128
VWX, VWY, VWZ = 160, 176, 192
VXR = 208
vX0, vX1, vX2, vX3 = 240, 241, 242, 243
vW0, vW1 = 244, 245
vD1, vD2 = 246, 247
vT = 248
sX, sW1, sW2, sO, sDW, sWS, sDBG, sXB = 4, 8, 12, 16, 20, 24, 28, 32
sG1, sG2 = 36, 40
sRing, sRingB = 44, 45
sT0, sT1, sT2, sT3 = 46, 47, 48, 49
sC, sCi = 50, 51
sWv, sW, sQ0, sTau, sWg = 52, 53, 54, 55, 56
sMask = 58
sCode = 68
sGrp = 72
sSave = 74

OOB = 0x7f000000


class Gen:
    def __init__(self, opt):
        self.l = []
        self.opt = opt
        self.lg = []
        self.vm = []
        self.nbar = 0
        self.nst = 0

    def __call__(self, s=""):
        for line in s.split("\n"):
            self.l.append(line if line.endswith(":") or line.startswith(".") or line.startswith(";") else "    " + line)

    def text(self):
        return "\n".join(self.l) + "\n"

    def ds(self, text, regs=(), tag=None):
        if len(self.lg) >= 15:
            self("s_waitcnt lgkmcnt(11)"); self.lg = self.lg[-11:]
        self(text); self.lg.append((set(regs), tag))

    def vmem(self, text, regs=(), tag=None):
        self(text); self.vm.append((set(regs), tag))

    def _idx(self, q, regs, tag):
        idx = -1
        for n, (r, t) in enumerate(q):
            if (regs and (r & set(regs))) or (tag is not None and t == tag):
                idx = n
        return idx

    def wait(self, regs=(), lg=None, vm=None):
        parts = []
        i = self._idx(self.vm, regs, vm)
        if i >= 0:
            n = len(self.vm) - 1 - i
            assert n <= 63
            parts.append(f"vmcnt({n})"); self.vm = self.vm[i + 1:]
        i = self._idx(self.lg, regs, lg)
        if i >= 0:
            n = len(self.lg) - 1 - i
            if n > 15:
                n = 15
            parts.append(f"lgkmcnt({n})"); self.lg = self.lg[len(self.lg) - n:] if n else []
        if parts:
            self("s_waitcnt " + " ".join(parts))

    def drain(self, vm=False, lg=False):
        parts = []
        if vm and self.vm:
            parts.append("vmcnt(0)"); self.vm = []
        if lg and self.lg:
            parts.append("lgkmcnt(0)"); self.lg = []
        if parts:
            self("s_waitcnt " + " ".join(parts))

    def barrier(self):
        self("s_barrier"); self.nbar += 1

    def stamp(self, n):
        if self.opt.get("stamps"):
            self.drain(lg=True)
            self(f"s_memtime s[{80+2*n}:{81+2*n}]")
            self("s_waitcnt lgkmcnt(0)")


def R(a, n=4): return f"v[{a}:{a+n-1}]"
def rs(a, n=4): return range(a, a + n)


def wreg(i, h, p):
    if i < 2:
        return (VWX if p % 2 == 0 else VWY) + 8 * i + 4 * h
    return VWZ + 8 * (i - 2) + 4 * h


def xreg(j, h): return VXR + 8 * (j % 4) + 4 * h


class Stream:
    def __init__(self, kind, arg):
        self.kind, self.arg = kind, arg

    def dma(self, g, kp, ab, m, tag):
        if self.kind == "P":
            base = sG1 + self.arg
            lit = (64 * kp + 16 * m) * 2048 + ab * 1024 - m * 1024
            srd, vd = sW1, vD1
        else:
            base = sG2 + (kp >> 1)
            lit = ((kp & 1) * 64 + 32 * (m >> 1) + 8 * (m & 1)) * 1024 + ab * 64 + self.arg * 512 - m * 1024
            srd, vd = sW2, vD2
        pre = []
        if m == 0:
            pre.append(f"s_mov_b32 m0, s{sRing + ab}")
        pre.append(f"s_add_u32 s{sT0}, s{base}, {lit}")
        for s in pre:
            g(s)
        g.vmem(f"buffer_load_dwordx4 v{vd}, s[{srd}:{srd+3}], s{sT0} offen offset:{m*1024} lds", tag=tag)


def tr_read(g, i, h, q, p, tag):
    d = wreg(i, h, p) + 2 * q
    off = (i >> 1) * 4096 + h * 2048 + q * 256
    g.ds(f"ds_read_b64_tr_b16 {R(d, 2)}, v{vW0 + (i & 1)} offset:{off}", rs(d, 2), tag)


def x_read(g, kind, kp, j, h):
    d = xreg(j, h)
    if kind == "P":
        off = (kp * 8 + j) * 2048
        base = vX0 + h + (2 if off >= 65536 else 0)
    else:
        off = (kp * 8 + j) * 2048 + h * 1024
        base = vX0 + (1 if off >= 65536 else 0)
    g.ds(f"ds_read_b128 {R(d)}, v{base} offset:{off % 65536}", rs(d))


def chain_order(jp):
    j0, j1 = 2 * jp, 2 * jp + 1
    if jp % 2 == 0:
        return [(j0, 0), (j0, 1), (j1, 1), (j1, 0), (j1, 2), (j1, 3), (j0, 3), (j0, 2)]
    return [(j0, 2), (j0, 3), (j1, 3), (j1, 2), (j1, 0), (j1, 1), (j0, 1), (j0, 0)]


def mfma(g, acc, A, B, first):
    g.wait(regs=list(rs(A)) + list(rs(B)))
    c = "0" if first else R(acc)
    g(f"v_mfma_f32_16x16x32_bf16 {R(acc)}, {R(A)}, {R(B)}, {c}")


def x_preload(g, kind):
    for j in range(2):
        for h in range(2):
            x_read(g, kind, 0, j, h)


def mfma_phase(g, own, nxt, xbar=None, halo=False, hand_at=52, extra=None, x_pre=False):
    kind = own.kind
    extra = extra or {}

    def st(p):
        return (own, p) if p < 8 else ((nxt, 0) if (nxt and p == 8) else (None, 0))

    for i in range(2):
        for h in range(2):
            for q in range(2):
                tr_read(g, i, h, q, 0, ("ra", 0))
    if not x_pre:
        x_preload(g, kind)
    for i in range(2, 4):
        for h in range(2):
            for q in range(2):
                tr_read(g, i, h, q, 0, ("rb", 0))
    for kp in range(8):
        gaps = {m: [] for m in range(64)}
        for jp in range(4):
            nkp, njp = (kp, jp + 1) if jp < 3 else (kp + 1, 0)
            if nkp > 7:
                continue
            for n in range(4):
                j, h = 2 * njp + n // 2, n % 2
                def f(nkp=nkp, j=j, h=h, n=n, jp=jp):
                    if n == 0 and jp == 3 and xbar:
                        xbar(nkp)
                    x_read(g, kind, nkp, j, h)
                gaps[16 * jp + n].append(f)
        if kp == 0:
            s_, p_ = st(1)
            for m in range(4):
                def f(m=m, s_=s_, p_=p_):
                    if m == 0:
                        g.wait(lg=("ra", 0))
                    s_.dma(g, p_, 0, m, ("a", 1))
                gaps[m].append(f)
        s_, p_ = st(kp + 1)
        if s_:
            for m in range(4):
                def f(m=m, s_=s_, p_=p_, kp=kp):
                    if m == 0:
                        g.wait(lg=("rb", kp))
                    s_.dma(g, p_, 1, m, ("b", kp + 1))
                gaps[6 + 2 * m].append(f)
        if kp < 7:
            n = 0
            for i in range(2):
                for h in range(2):
                    for q in range(2):
                        def f(i=i, h=h, q=q, n=n, kp=kp):
                            if n == 0:
                                g.wait(vm=("a", kp + 1))
                            tr_read(g, i, h, q, kp + 1, ("ra", kp + 1))
                        gaps[40 + n].append(f); n += 1
            s_, p_ = st(kp + 2)
            if s_:
                for m in range(4):
                    def f(m=m, s_=s_, p_=p_, kp=kp):
                        if m == 0:
                            g.wait(lg=("ra", kp + 1))
                        s_.dma(g, p_, 0, m, ("a", kp + 2))
                    gaps[53 + 2 * m].append(f)
            n = 0
            for i in (2, 3):
                for h in range(2):
                    for q in range(2):
                        def f(i=i, h=h, q=q, n=n, kp=kp):
                            if n == 0:
                                g.wait(vm=("b", kp + 1))
                            tr_read(g, i, h, q, kp + 1, ("rb", kp + 1))
                        gaps[56 + n].append(f); n += 1
        if kp == 7 and nxt:
            def f():
                g.drain(vm=True, lg=True)
                g.barrier()
            gaps[hand_at].append(f)
        if halo:
            for h in range(2):
                ks = 2 * kp + h
                for r in range(4):
                    def f(h=h, r=r, ks=ks):
                        src = VH + 4 * (ks >> 2) + r
                        g.wait(regs=[src])
                        mk = sMask + 2 * (ks & 3)
                        g(f"v_cndmask_b32 v{vT + 4*h + r}, 0, v{src}, s[{mk}:{mk+1}]")
                    gaps[20 + 4 * h + r].append(f)
            def f(kp=kp):
                for i in (0, 1, 3, 2):
                    for h in range(2):
                        mfma(g, VH + 16 + 4 * i, wreg(i, h, kp), vT + 4 * h, kp == 0 and h == 0)
            gaps[31].append(f)
        m = 0
        for jp in range(4):
            for (j, i) in chain_order(jp):
                for h in range(2):
                    mfma(g, ACC(i, j), wreg(i, h, kp), xreg(j, h), kp == 0 and h == 0)
                    for f in gaps[m]:
                        f()
                    if (kp, m) in extra:
                        extra[(kp, m)]()
                    m += 1


VWF = 160
VTMP = 200
VHI = 208


def s_addr(g, ph, vreg):
    g(f"s_lshr_b32 s{sT1}, s{sW}, 1")
    g(f"s_lshl_b32 s{sT1}, s{sT1}, 14")
    g(f"s_and_b32 s{sT2}, s{sW}, 1")
    g(f"s_lshl_b32 s{sT2}, s{sT2}, 10")
    g(f"s_add_u32 s{sT1}, s{sT1}, s{sT2}")
    g(f"s_add_u32 s{sT1}, s{sT1}, {ph * 32768}")
    lane(g, vreg)
    g(f"v_lshl_add_u32 v{vreg}, v{vreg}, 4, s{sT1}")


def lane(g, v):
    g(f"v_mbcnt_lo_u32_b32 v{v}, -1, 0")
    g(f"v_mbcnt_hi_u32_b32 v{v}, -1, v{v}")


def glu(g, pairs):
    for a, b in pairs: g(f"v_mul_f32 v{b}, s{sC}, v{b}")
    for a, b in pairs: g(f"v_exp_f32 v{b}, v{b}")
    for a, b in pairs: g(f"v_fma_f32 v{b}, v{b}, s{sCi}, s{sCi}")
    for a, b in pairs: g(f"v_rcp_f32 v{b}, v{b}")
    for a, b in pairs: g(f"v_mul_f32 v{a}, v{a}, v{b}")


def e_phase(g, ph, dst, after_tile=None, mid=None, own_halo=False):
    halo = g.opt.get("halo", 1)
    lane(g, vT)
    g(f"v_lshrrev_b32 v{vT+1}, 4, v{vT}")
    g(f"v_lshlrev_b32 v{vT+1}, 3, v{vT+1}")
    g(f"s_add_u32 s{sT1}, s{sG1+ph}, 4096")
    for ct in range(2):
        for d in range(5):
            r = VWF + 20 * ct + 4 * d + 2
            so, off = (sG1 + ph, d * 1024 + ct * 32) if d < 4 else (sT1, ct * 32)
            g.vmem(f"buffer_load_dwordx2 {R(r, 2)}, v{vT+1}, s[{sDW}:{sDW+3}], s{so} offen offset:{off}", rs(r, 2))
    g("s_nop 3")
    if halo and own_halo:
        HA = VH + 16
        for sh in (8, 4):
            for n in range(16):
                g(f"v_add_f32_dpp v{HA+n}, v{HA+n}, v{HA+n} row_ror:{sh} row_mask:0xf bank_mask:0xf")
        glu(g, [(HA + n, HA + 8 + n) for n in range(8)])
        for r in range(4):
            g(f"v_cndmask_b32 v{HA+8+r}, v{HA+r}, v{HA+4+r}, s[{sMask+2}:{sMask+3}]")
        g(f"v_and_b32 v{vT+2}, 3, v{vT}")
        g(f"v_add_u32 v{vT+2}, s{sQ0}, v{vT+2}")
        g(f"v_and_b32 v{vT+2}, 3, v{vT+2}")
        g(f"v_lshlrev_b32 v{vT+2}, 14, v{vT+2}")
        g(f"v_bfe_u32 v{vT+3}, v{vT}, 2, 1")
        g(f"v_lshl_add_u32 v{vT+2}, v{vT+3}, 6, v{vT+2}")
        g(f"v_lshl_add_u32 v{vT+2}, v{vT+1}, 1, v{vT+2}")
        g(f"v_bfe_u32 v{vT+3}, v{vT}, 3, 1")
        g(f"v_lshl_add_u32 v{vT+2}, v{vT+3}, 30, v{vT+2}")
        g(f"s_and_b32 s{sT1}, s{sWg}, 0xe7")
        g(f"s_lshl_b32 s{sT1}, s{sT1}, 11")
        g(f"s_lshl_b32 s{sT2}, s{sG1+ph}, 1")
        g(f"s_add_u32 s{sT1}, s{sT1}, s{sT2}")
        g.vmem(f"buffer_store_dwordx4 {R(HA+8)}, v{vT+2}, s[{sWS}:{sWS+3}], s{sT1} offen sc0 sc1", tag="hst")
        for n in range(8):
            g(f"v_mov_b32 v{VHI+n}, v{HA+n}")
    elif halo:
        g(f"v_mov_b32 v{vT+2}, s{sGrp}")
        g.vmem(f"buffer_load_dword v{vT+3}, v{vT+2}, s[{sDBG}:{sDBG+3}], 0 offen sc0 sc1", [vT + 3])
    for j in range(8):
        glu(g, [(ACC(ct, j) + r, ACC(2 + ct, j) + r) for ct in range(2) for r in range(4)])
        if j == 3 and halo and own_halo:
            g.drain(vm=True)
            g(f"s_lshl_b32 s{sT1}, s{sQ0}, 2")
            g(f"s_add_u32 s{sT1}, s{sT1}, s{sW}")
            g(f"s_lshl_b32 s{sT1}, 1, s{sT1}")
            g(f"v_mov_b32 v{vT+3}, s{sT1}")
            g(f"v_mov_b32 v{vT+2}, s{sGrp}")
            g(f"v_lshl_add_u32 v{vT+2}, v{vT}, 20, v{vT+2}")
            g.vmem(f"buffer_atomic_or v{vT+3}, v{vT+2}, s[{sDBG}:{sDBG+3}], 0 offen sc1", tag="flag")
        if j == 3 and halo and not own_halo:
            lab = f"L_poll{ph}"
            g(f"s_lshr_b32 s{sT2}, s{sG1+ph}, 6")
            g(f"s_mov_b32 s{sT3}, {g.opt.get('spin', 400000)}")
            g.drain(vm=True)
            g(f"{lab}:")
            g(f"v_readfirstlane_b32 s{sT1}, v{vT+3}")
            g(f"s_sub_u32 s{sT3}, s{sT3}, 1")
            g(f"s_cbranch_scc1 {lab}_ok")
            g("s_nop 1")
            g(f"s_bitcmp1_b32 s{sT1}, s{sT2}")
            g(f"s_cbranch_scc1 {lab}_ok")
            g("s_sleep 2")
            g(f"buffer_load_dword v{vT+3}, v{vT+2}, s[{sDBG}:{sDBG+3}], 0 offen sc0 sc1")
            g("s_waitcnt vmcnt(0)")
            g(f"s_branch {lab}")
            g(f"{lab}_ok:")
            g(f"s_lshl_b32 s{sT1}, s{sWg}, 11")
            g(f"s_lshl_b32 s{sT2}, s{sG1+ph}, 1")
            g(f"s_add_u32 s{sT1}, s{sT1}, s{sT2}")
            g(f"v_lshlrev_b32 v{vT+2}, 1, v{vT+1}")
            for ct in range(2):
                g.vmem(f"buffer_load_dwordx4 {R(VHI+4*ct)}, v{vT+2}, s[{sWS}:{sWS+3}], s{sT1} offen offset:{ct*64} sc0 sc1", rs(VHI + 4 * ct))
    g.wait(regs=rs(VWF, 40))
    for n in range(10):
        b = VWF + 4 * n
        g(f"v_lshlrev_b32 v{b}, 16, v{b+2}")
        g(f"v_and_b32 v{b+1}, 0xffff0000, v{b+2}")
        g(f"v_lshlrev_b32 v{b+2}, 16, v{b+3}")
        g(f"v_and_b32 v{b+3}, 0xffff0000, v{b+3}")
    el = [(ct, r) for ct in range(2) for r in range(4)]
    for j in range(8):
        for ct, r in el:
            g(f"v_mul_f32 v{ACC(2+ct, j)+r}, v{ACC(ct, j)+r}, v{VWF+20*ct+8+r}")
        for d in (0, 1, 3, 4):
            jj = j + d - 2
            for ct, r in el:
                y, w = ACC(2 + ct, j) + r, VWF + 20 * ct + 4 * d + r
                if jj < 0:
                    g(f"v_fmac_f32_dpp v{y}, v{ACC(ct, jj+8)+r}, v{w} row_shr:1 row_mask:0xf bank_mask:0xf")
                elif jj > 7:
                    g(f"v_fmac_f32_dpp v{y}, v{ACC(ct, jj-8)+r}, v{w} row_shl:1 row_mask:0xf bank_mask:0xf")
                else:
                    g(f"v_fmac_f32 v{y}, v{ACC(ct, jj)+r}, v{w}")
    if halo:
        g.wait(regs=rs(VHI, 8))
        for ct, r in el:
            g(f"v_fmac_f32_dpp v{ACC(2+ct, 6)+r}, v{VHI+4*ct+r}, v{VWF+20*ct+16+r} row_shr:15 row_mask:0xf bank_mask:0xf")
    if mid:
        mid()
    for j in range(8):
        ys = [ACC(2 + ct, j) + r for ct, r in el]
        for n, y in enumerate(ys): g(f"v_exp_f32 v{VTMP+n}, v{y}")
        for n, y in enumerate(ys): g(f"v_fma_f32 v{VTMP+n}, v{VTMP+n}, s{sC}, s{sC}")
        for n, y in enumerate(ys): g(f"v_rcp_f32 v{VTMP+n}, v{VTMP+n}")
        for n, y in enumerate(ys): g(f"v_mul_f32 v{y}, v{y}, v{VTMP+n}")
        for n in range(4): g(f"v_cvt_pk_bf16_f32 v{dst+4*j+n}, v{ys[2*n]}, v{ys[2*n+1]}")
        if after_tile:
            after_tile(j)


def out_phase(g):
    fl = g.opt.get("stflag", "")
    lane(g, vT)
    g(f"v_and_b32 v{vT+1}, 15, v{vT}")
    g(f"v_bfe_u32 v{vT+2}, v{vT}, 4, 1")
    g(f"v_bfe_u32 v{vT+3}, v{vT}, 5, 1")
    g(f"s_lshl_b32 s{sT1}, s{sWv}, 7")
    g(f"v_lshl_add_u32 v{vT+4}, v{vT+1}, 13, s{sT1}")
    g(f"v_lshl_add_u32 v{vT+4}, v{vT+2}, 5, v{vT+4}")
    g(f"v_lshl_add_u32 v{vT+4}, v{vT+3}, 4, v{vT+4}")
    g(f"v_cmp_eq_u32 vcc, 0, v{vT+1}")
    g(f"v_mov_b32 v{vT+5}, {OOB}")
    g(f"s_movk_i32 s{sT2}, 4096")
    g(f"v_cndmask_b32 v{vT+5}, v{vT+4}, v{vT+5}, vcc")
    g("s_nop 3")
    items = [(j, p) for j in range(8) for p in range(2)]
    def T(n): return 160 + 4 * (n % 8)
    def cvt(n):
        j, p = items[n]
        for k in range(2):
            a = ACC(2 * p + k, j)
            g(f"v_cvt_pk_bf16_f32 v{T(n)+2*k}, v{a}, v{a+1}")
            g(f"v_cvt_pk_bf16_f32 v{T(n)+2*k+1}, v{a+2}, v{a+3}")
    cvt(0)
    for n in range(16):
        if n + 1 < 16:
            cvt(n + 1)
        else:
            g("s_nop 1")
        j, p = items[n]
        g(f"v_permlane16_swap_b32 v{T(n)}, v{T(n)+2}")
        g(f"v_permlane16_swap_b32 v{T(n)+1}, v{T(n)+3}")
        va = vT + 5 if j < 2 else vT + 4
        so = "0" if j < 4 else f"s{sT2}"
        g.vmem(f"buffer_store_dwordx4 {R(T(n))}, v{va}, s[{sO}:{sO+3}], {so} offen offset:{(j % 4)*1024 + p*64} {fl}".rstrip())


def srd(g, d, lo, hi, size):
    g(f"s_mov_b32 s{d}, s{lo}")
    g(f"s_mov_b32 s{d+1}, s{hi}")
    g(f"s_mov_b32 s{d+2}, {size}")
    g(f"s_mov_b32 s{d+3}, 0x20000")


def p_addr(g):
    lane(g, vT)
    g(f"v_and_b32 v{vT+1}, 15, v{vT}")
    g(f"v_lshrrev_b32 v{vT+2}, 4, v{vT}")
    g(f"v_lshrrev_b32 v{vT+3}, 1, v{vT+1}")
    g(f"v_xor_b32 v{vT+3}, v{vT+3}, v{vT+2}")
    g(f"v_lshlrev_b32 v{vT+3}, 4, v{vT+3}")
    g(f"v_lshl_add_u32 v{vX0}, v{vT+1}, 7, v{vT+3}")
    g(f"v_xor_b32 v{vX1}, 64, v{vX0}")
    g(f"v_add_u32 v{vX2}, 0x10000, v{vX0}")
    g(f"v_add_u32 v{vX3}, 0x10000, v{vX1}")


def g_addr(g):
    lane(g, vX0)
    g(f"v_lshlrev_b32 v{vX0}, 4, v{vX0}")
    g(f"v_add_u32 v{vX1}, 0x10000, v{vX0}")


def build(opt):
    g = Gen(opt)
    halo = opt.get("halo", 1)
    xfl = opt.get("xflag", "")
    g.l.append(HEAD.rstrip("\n"))
    g("; @launch grid=(256,1,1) block=(512,1,1) lds=163840")
    g('.amdgcn_target "amdgcn-amd-amdhsa--gfx950"')
    g(".text")
    g(f".globl {KN}_kernel")
    g(".p2align 8")
    g(f".type {KN}_kernel,@function")
    g(f"{KN}_kernel:")
    g("s_cmp_ge_u32 s2, 256")
    g("s_cbranch_scc1 L_end")
    if opt.get("stamps"):
        g("s_memrealtime s[76:77]")
        g("s_memtime s[80:81]")
    g("s_load_dwordx8 s[36:43], s[0:1], 0")
    g("s_load_dwordx4 s[44:47], s[0:1], 32")
    g("s_load_dwordx2 s[48:49], s[0:1], 48")
    g(f"s_getpc_b64 s[{sCode}:{sCode+1}]")
    g("L_pc:")
    g(f"v_readfirstlane_b32 s{sWv}, v0")
    g(f"s_mov_b32 s{sWg}, s2")
    g(f"s_and_b32 s{sTau}, s2, 127")
    g(f"s_lshr_b32 s{sQ0}, s2, 3")
    g(f"s_and_b32 s{sQ0}, s{sQ0}, {3 if opt.get('rot', 1) else 0}")
    g(f"s_lshr_b32 s{sWv}, s{sWv}, 6")
    g(f"s_and_b32 s{sW}, s{sWv}, 3")
    g(f"s_mov_b32 s{sCode+2}, L_code_end-L_pc")
    g(f"s_mov_b32 s{sCode+3}, 0x20000")
    g("s_lshr_b32 s3, s2, 7")
    g("s_mul_i32 s3, s3, 16384000")
    g(f"s_mul_i32 s57, s{sTau}, 128000")
    g("s_add_u32 s57, s57, s3")
    g("v_and_b32 v0, 63, v0")
    g("s_waitcnt lgkmcnt(0)")
    g(f"s_add_u32 s{sXB}, s36, s3")
    g(f"s_addc_u32 s{sXB+1}, s37, 0")
    g(f"s_mov_b32 s{sXB+2}, 16384000")
    g(f"s_mov_b32 s{sXB+3}, 0x20000")
    g(f"s_add_u32 s{sX}, s36, s57")
    g(f"s_addc_u32 s{sX+1}, s37, 0")
    g(f"s_sub_u32 s{sX}, s{sX}, 2048")
    g(f"s_subb_u32 s{sX+1}, s{sX+1}, 0")
    g(f"s_cmp_eq_u32 s{sTau}, 127")
    g(f"s_cselect_b32 s{sX+2}, {127*1024}, s{sXB+3}")
    g(f"s_mov_b32 s{sX+3}, 0x20000")
    srd(g, sW1, 38, 39, 1048576)
    srd(g, sDW, 40, 41, 5120)
    srd(g, sW2, 42, 43, 524288)
    g(f"s_add_u32 s{sO}, s44, s57")
    g(f"s_addc_u32 s{sO+1}, s45, 0")
    g(f"s_sub_u32 s{sO}, s{sO}, 2048")
    g(f"s_subb_u32 s{sO+1}, s{sO+1}, 0")
    g(f"s_mov_b32 s{sO+2}, {127*1024}")
    g(f"s_mov_b32 s{sO+3}, 0x20000")
    srd(g, sDBG, 46, 47, 256)
    srd(g, sWS, 48, 49, 524288)
    if opt.get("stamps"):
        g(f"s_add_u32 s66, s48, {STAMP_OFF}")
        g(f"s_addc_u32 s67, s49, 0")
    for ph in range(4):
        g(f"s_add_u32 s{sT0}, s{sQ0}, {ph}")
        g(f"s_and_b32 s{sT0}, s{sT0}, 3")
        g(f"s_lshl_b32 s{sT1}, s{sT0}, 2")
        g(f"s_add_u32 s{sT1}, s{sT1}, s{sW}")
        g(f"s_lshl_b32 s{sG1+ph}, s{sT1}, 6")
        g(f"s_lshl_b32 s{sT0}, s{sT0}, 17")
        g(f"s_lshl_b32 s{sT1}, s{sW}, 7")
        g(f"s_add_u32 s{sG2+ph}, s{sT0}, s{sT1}")
    g(f"s_lshl_b32 s{sRing}, s{sW}, 13")
    g(f"s_add_u32 s{sRing}, s{sRing}, 131072")
    g(f"s_add_u32 s{sRingB}, s{sRing}, 4096")
    g(f"s_mov_b32 s{sC}, 0xbfb8aa3b")
    g(f"s_mov_b32 s{sCi}, 0xbf317218")
    g(f"v_lshrrev_b32 v1, 5, v0")
    g(f"v_lshlrev_b32 v1, 1, v1")
    g(f"v_and_b32 v2, 3, v0")
    g(f"v_xor_b32 v1, v1, v2")
    g(f"v_lshlrev_b32 v1, 4, v1")
    g(f"v_lshrrev_b32 v3, 2, v0")
    g(f"v_lshl_add_u32 v{vD1}, v3, 11, v1")
    g(f"s_cmp_ge_u32 s{sWv}, 4")
    g("s_cbranch_scc1 L_roleB")

    def common_addr():
        g(f"v_bfe_u32 v4, v0, 4, 1")
        g(f"v_lshl_add_u32 v{vD2}, v4, 14, v1")
        g(f"v_lshrrev_b32 v5, 5, v0")
        g(f"v_lshl_add_u32 v{vD2}, v5, 12, v{vD2}")
        g(f"v_bfe_u32 v5, v0, 2, 2")
        g(f"v_lshl_add_u32 v{vD2}, v5, 10, v{vD2}")
        g(f"v_lshrrev_b32 v6, 4, v0")
        g(f"v_lshl_add_u32 v{vW0}, v6, 9, s{sRing}")
        g(f"v_lshl_add_u32 v{vW0}, v5, 6, v{vW0}")
        g(f"v_lshl_add_u32 v{vW0}, v4, 5, v{vW0}")
        g(f"v_lshl_add_u32 v{vW0}, v2, 3, v{vW0}")
        g(f"v_xor_b32 v{vW1}, 32, v{vW0}")
        p_addr(g)
        for u in range(4):
            g(f"s_mov_b32 s{sMask+2*u}, {0x000f000f << (4*u)}")
            g(f"s_mov_b32 s{sMask+2*u+1}, {0x000f000f << (4*u)}")
        g(f"s_and_b32 s{sT0}, s{sWg}, 7")
        g(f"s_lshr_b32 s{sT1}, s{sWg}, 5")
        g(f"s_lshl_b32 s{sT1}, s{sT1}, 3")
        g(f"s_add_u32 s{sGrp}, s{sT0}, s{sT1}")
        g(f"s_lshl_b32 s{sGrp}, s{sGrp}, 2")

    P = [Stream("P", ph) for ph in range(4)]
    GA, GB = Stream("G", 0), Stream("G", 1)

    for ab in range(2):
        for m in range(4):
            P[0].dma(g, 0, ab, m, ("w", 0))
    if halo:
        g(f"v_add_u32 v4, s{sQ0}, v2")
        g(f"v_and_b32 v4, 3, v4")
        g(f"s_and_b32 s{sT1}, s{sTau}, 0x67")
        g(f"v_lshl_add_u32 v4, v4, 3, s{sT1}")
        g(f"v_mul_u32_u24 v4, 125, v4")
        g(f"v_add_u32 v4, 126, v4")
        g(f"v_lshlrev_b32 v4, 10, v4")
        g(f"v_bfe_u32 v5, v0, 2, 2")
        g(f"v_lshl_add_u32 v4, v5, 6, v4")
        g(f"v_lshrrev_b32 v5, 4, v0")
        g(f"v_lshl_add_u32 v4, v5, 4, v4")
        for mm in range(4):
            g.vmem(f"buffer_load_dwordx4 {R(VH+4*mm)}, v4, s[{sXB}:{sXB+3}], 0 offen offset:{mm*256}", rs(VH + 4 * mm))
    common_addr()
    g.wait(vm=("w", 0))
    g.barrier()
    g.stamp(1)
    mfma_phase(g, P[0], P[1], xbar=lambda kp: g.barrier(), halo=bool(halo))
    g.stamp(2)
    g("s_nop 7")
    e_phase(g, 0, VH, own_halo=True)
    x_preload(g, "P")
    g.drain(vm=True)
    g.barrier()
    g.stamp(3)
    mfma_phase(g, P[2], P[3], x_pre=True)
    g.stamp(4)
    g("s_nop 7")

    def midA():
        g.barrier()
        s_addr(g, 0, vT + 6)
        for j in range(8):
            g.ds(f"ds_write_b128 v{vT+6}, {R(VH+4*j)} offset:{j*2048}")
        g(f"v_add_u32 v{vT+6}, 0x10000, v{vT+6}")
    e_phase(g, 2, 0, mid=midA, after_tile=lambda j: g.ds(f"ds_write_b128 v{vT+6}, {R(4*j)} offset:{j*2048}"))
    g_addr(g)
    g.drain(vm=True, lg=True)
    g.barrier()
    g.stamp(5)
    mfma_phase(g, GA, GB, xbar=lambda kp: g.barrier() if kp == 6 else None)
    g.stamp(6)
    g("s_nop 7")
    out_phase(g)
    g.stamp(7)
    nbarA = g.nbar
    g("s_branch L_fin")

    g.lg, g.vm, g.nbar = [], [], 0
    g("L_roleB:")
    g(f"s_lshr_b32 s{sT1}, s{sWg}, 3")
    g(f"s_lshl_b32 s{sT1}, s{sT1}, 2")
    g(f"s_add_u32 s{sT1}, s{sT1}, s{sW}")
    g(f"s_lshl_b32 s{sT2}, s{sT1}, 13")
    g(f"v_lshlrev_b32 v7, 7, v0")
    g.vmem(f"buffer_load_dword v8, v7, s[{sW1}:{sW1+3}], s{sT2} offen", [8])
    g(f"s_lshl_b32 s{sT3}, s{sW}, 13")
    for n in range(3):
        g.vmem(f"buffer_load_dword v{9+n}, v7, s[{sCode}:{sCode+3}], s{sT3} offen", [9 + n])
        g(f"s_add_u32 s{sT3}, s{sT3}, 32768")
    g(f"v_lshrrev_b32 v12, 3, v0")
    g(f"v_and_b32 v13, 7, v0")
    g(f"s_lshl_b32 s{sT3}, s{sW}, 11")
    for hh in range(2):
        g(f"v_lshrrev_b32 v14, 1, v12")
        if hh:
            g(f"v_add_u32 v14, 4, v14")
        g(f"v_xor_b32 v14, v14, v13")
        g(f"v_lshlrev_b32 v14, 4, v14")
        g(f"v_lshl_add_u32 v14, v12, 13, v14")
        g(f"v_add_u32 v{16+hh}, s{sT3}, v14")
        if hh:
            g(f"v_add_u32 v{16+hh}, 0x10000, v{16+hh}")
        g(f"v_add_u32 v{18+hh}, 1024, v{16+hh}")
    g(f"s_cmp_eq_u32 s{sTau}, 0")
    g(f"s_cselect_b32 s{sT3}, 2048, 0")
    g(f"v_mov_b32 v15, {OOB}")
    for r in (16, 18):
        g(f"v_cmp_gt_u32 vcc, s{sT3}, v{r}")
        g("s_nop 1")
        g(f"v_cndmask_b32 v{r}, v{r}, v15, vcc")
    g(f"s_lshl_b32 s{sT3}, s{sW}, 12")
    for kp in range(8):
        g(f"s_movk_i32 s{sT0}, {kp*128}")
        for jj in range(2):
            for hh in range(2):
                g(f"s_add_u32 m0, s{sT3}, {kp*16384 + jj*2048 + hh*1024}")
                g("s_nop 0")
                g.vmem(f"buffer_load_dwordx4 v{16+2*jj+hh}, s[{sX}:{sX+3}], s{sT0} offen {xfl} lds".replace("  ", " "), tag=("x", kp))
    g(f"s_lshl_b32 s{sT2}, s{sT1}, 12")
    g(f"v_lshlrev_b32 v7, 6, v0")
    g.vmem(f"buffer_load_dword v20, v7, s[{sW2}:{sW2+3}], s{sT2} offen", [20])
    common_addr()
    for kp in range(8):
        g.wait(vm=("x", kp))
        g.barrier()
        if kp in (0, 3, 7):
            g.stamp({0: 1, 3: 8, 7: 9}[kp])
    x_preload(g, "P")
    g.drain(vm=True)
    g.barrier()
    g.stamp(2)
    mfma_phase(g, P[1], P[2], x_pre=True)
    g.stamp(3)
    g("s_nop 7")
    e_phase(g, 1, VH)
    x_preload(g, "P")
    s_addr(g, 1, vT + 6)
    g.drain(vm=True)
    g.barrier()
    g.stamp(4)
    ex = {}
    def m3():
        g.wait(regs=rs(xreg(6, 0), 16))
        g.barrier()
    ex[(5, 53)] = m3
    for j in range(8):
        ex[(6, 14 + 4 * j)] = (lambda j=j: g.ds(f"ds_write_b128 v{vT+6}, {R(VH+4*j)} offset:{j*2048}"))
    mfma_phase(g, P[3], GA, x_pre=True, extra=ex)
    g.stamp(5)
    g("s_nop 7")
    e_phase(g, 3, 0, mid=lambda: s_addr(g, 3, vT + 6),
            after_tile=lambda j: g.ds(f"ds_write_b128 v{vT+6}, {R(4*j)} offset:{j*2048}"))
    g_addr(g)
    g.drain(vm=True, lg=True)
    g.barrier()
    x_preload(g, "G")
    g.barrier()
    g.stamp(6)
    mfma_phase(g, GB, None, x_pre=True)
    g.stamp(7)
    g("s_nop 7")
    out_phase(g)
    assert g.nbar == nbarA, (g.nbar, nbarA)
    g("L_fin:")
    if opt.get("stamps"):
        g("s_waitcnt vmcnt(0)")
        g("s_memrealtime s[78:79]")
        g("s_memtime s[100:101]")
        g("s_mov_b32 s4, s66\ns_mov_b32 s5, s67\ns_mov_b32 s6, 0x100000\ns_mov_b32 s7, 0x20000")
        g(f"s_lshl_b32 s8, s{sWg}, 3\ns_add_u32 s8, s8, s{sWv}\ns_lshl_b32 s8, s8, 7")
        g("s_waitcnt lgkmcnt(0)")
        g("s_mov_b64 exec, 1")
        g("v_mov_b32 v4, 0")
        order = [76, 78, 80, 100] + [80 + 2 * n for n in range(1, 10)]
        for n, s in enumerate(order):
            g(f"v_mov_b32 v0, s{s}\nv_mov_b32 v1, s{s+1}")
            g(f"buffer_store_dwordx2 v[0:1], v4, s[4:7], s8 offen offset:{8*n}")
            g("s_nop 1")
    g("L_end:")
    g("s_endpgm")
    g("L_code_end:")
    g('.section .rodata,"a"')
    g(".p2align 6")
    g(f".amdhsa_kernel {KN}_kernel")
    g.l += ["  .amdhsa_next_free_vgpr 256", "  .amdhsa_next_free_sgpr 102", "  .amdhsa_accum_offset 256",
            "  .amdhsa_group_segment_fixed_size 0", "  .amdhsa_kernarg_size 56", "  .amdhsa_user_sgpr_count 2",
            "  .amdhsa_user_sgpr_kernarg_segment_ptr 1", "  .amdhsa_system_sgpr_workgroup_id_x 1",
            "  .amdhsa_float_denorm_mode_32 3"]
    g(".end_amdhsa_kernel")
    return g.text()


def parse(args):
    opt = {}
    for a in args:
        k, v = a.split("=", 1)
        try:
            v = int(v)
        except ValueError:
            v = v.replace("+", " ")
        opt[k] = v
    return opt


if __name__ == "__main__":
    open(sys.argv[1], "w").write(build(parse(sys.argv[2:])))
```

```python
import sys

KN = "standalone__conformer_conv_module__speech"
STAMP_OFF = 255 * 1024 * 1024

HEAD = """; Kernarg layout for this problem (56 bytes, ptrs only, base s[0:1]):
"""

def ACC(i, j): return 4 * (i * 8 + j)
VH = 128
VWX, VWY, VWZ = 160, 176, 192
VXR = 208
vX0, vX1 = 240, 241
vDc, vS = 242, 243
vW0, vW1 = 244, 245
vD1, vD2 = 246, 247
vT = 248
def VWF(ct, d): return 160 + 16 * ct + 4 * d if d < 4 else 224 + 4 * ct
VHI = 232
VTMP = 32
sX, sW1, sW2, sO, sDW, sWS, sDBG, sXB = 4, 8, 12, 16, 20, 24, 28, 32
sG1, sG2 = 36, 40
sRing = 44
sT0, sT1, sT2, sT3 = 46, 47, 48, 49
sC, sCi = 50, 51
sWv, sW, sQ0, sTau, sWg, sGrp = 52, 53, 54, 55, 56, 57
sMask = 58
sK = 66
sSl = 96
sCode = 16
KA = 76
QORD = (1, 2, 0, 3)
SBLK = {1: 0, 2: 1, 0: 2, 3: 3}

OOB = 0x7f000000
HBASE, HPITCH = 7 * 16384, 1088


class Gen:
    def __init__(self, opt):
        self.l = []
        self.opt = opt
        self.lg = []
        self.vm = []
        self.bars = []

    def __call__(self, s=""):
        for line in s.split("\n"):
            self.l.append(line if line.endswith(":") or line.startswith(".") or line.startswith(";") else "    " + line)

    def text(self):
        return "\n".join(self.l) + "\n"

    def ds(self, text, regs=(), tag=None):
        if self.opt.get("nosw") and text.startswith("ds_write_b128"):
            return
        if len(self.lg) >= 15:
            self("s_waitcnt lgkmcnt(11)"); self.lg = self.lg[-11:]
        self(text); self.lg.append((set(regs), tag))

    def vmem(self, text, regs=(), tag=None):
        self(text); self.vm.append((set(regs), tag))

    def _idx(self, q, regs, tag):
        idx = -1
        for n, (r, t) in enumerate(q):
            if (regs and (r & set(regs))) or (tag is not None and t == tag):
                idx = n
        return idx

    def wait(self, regs=(), lg=None, vm=None):
        parts = []
        i = self._idx(self.vm, regs, vm)
        if i >= 0:
            n = min(len(self.vm) - 1 - i, 63)
            parts.append(f"vmcnt({n})"); self.vm = self.vm[len(self.vm) - n:] if n else []
        i = self._idx(self.lg, regs, lg)
        if i >= 0:
            n = min(len(self.lg) - 1 - i, 15)
            parts.append(f"lgkmcnt({n})"); self.lg = self.lg[len(self.lg) - n:] if n else []
        if parts:
            self("s_waitcnt " + " ".join(parts))

    def drain(self, vm=False, lg=False):
        parts = []
        if vm and self.vm:
            parts.append("vmcnt(0)"); self.vm = []
        if lg and self.lg:
            parts.append("lgkmcnt(0)"); self.lg = []
        if parts:
            self("s_waitcnt " + " ".join(parts))

    def barrier(self, name):
        self(f"s_barrier"); self.bars.append(name)

    def stamp(self, n):
        if self.opt.get("stamps"):
            self(f"s_memtime s[{76+2*n}:{77+2*n}]")
            self("s_waitcnt lgkmcnt(0)")
            self.lg = []


def R(a, n=4): return f"v[{a}:{a+n-1}]"
def rs(a, n=4): return list(range(a, a + n))


def wreg(i, h, p, kind="P"):
    if kind == "G":
        return ((160, 176), (192, 128))[p % 2][h] + 4 * i
    if i < 2:
        return (VWX if p % 2 == 0 else VWY) + 8 * i + 4 * h
    return VWZ + 8 * (i - 2) + 4 * h


def xreg(j, h): return VXR + 8 * (j % 4) + 4 * h


def kconst(kind, ab, m):
    if kind == "P":
        return 16 * m * 2048 + ab * 1024 - m * 1024
    return (32 * ab + 8 * m) * 1024 - m * 1024


def set_kconst(g, kind):
    return [lambda ab=ab, m=m: g(f"s_mov_b32 s{sK + 4*ab + m}, {kconst(kind, ab, m)}") for ab in range(2) for m in range(4)]


class Stream:
    def __init__(self, kind, arg):
        self.kind, self.arg = kind, arg

    def advance(self, g, kp, fresh=False):
        if self.kind == "P":
            if kp == 0:
                g(f"v_add_u32 v{vDc}, s{sG1 + self.arg}, v{vD1}")
            elif fresh:
                g(f"s_add_u32 s{sT0}, s{sG1 + self.arg}, {kp * 131072}")
                g(f"v_add_u32 v{vDc}, s{sT0}, v{vD1}")
            else:
                g(f"v_add_u32 v{vDc}, 0x20000, v{vDc}")
        else:
            q = sG2 + QORD[kp >> 1]
            lit = (kp & 1) * 65536 + self.arg * 512
            if (kp & 1) and not fresh:
                g(f"v_add_u32 v{vDc}, 0x10000, v{vDc}")
            elif lit:
                g(f"s_add_u32 s{sT0}, s{q}, {lit}")
                g(f"v_add_u32 v{vDc}, s{sT0}, v{vD2}")
            else:
                g(f"v_add_u32 v{vDc}, s{q}, v{vD2}")

    def dma(self, g, ab, m, tag, fl=""):
        if g.opt.get("nodma"):
            return
        srd = sW1 if self.kind == "P" else sW2
        g.vmem(f"buffer_load_dwordx4 v{vDc}, s[{srd}:{srd+3}], s{sK + 4*ab + m} offen offset:{m*1024} {fl} lds", tag=tag)


def set_m0(g, ab):
    g(f"s_mov_b32 m0, s{sRing + ab}")


vWG = 252


def tr_read(g, i, h, q, p, tag, kind="P"):
    d = wreg(i, h, p, kind) + 2 * q
    if kind == "G":
        off, base = h * 4096 + q * 2048, vWG + i
    else:
        off, base = (i >> 1) * 4096 + h * 2048 + q * 256, vW0 + (i & 1)
    g.ds(f"ds_read_b64_tr_b16 {R(d, 2)}, v{base} offset:{off}", rs(d, 2), tag)


def part_reads(kind, ab):
    if kind == "G":
        return [(i, ab, q) for i in range(4) for q in range(2)]
    return [(i, h, q) for i in ((0, 1) if ab == 0 else (3, 2)) for h in range(2) for q in range(2)]


def x_read(g, kind, kp, j, h):
    d = xreg(j, h)
    if kind == "P":
        off, base = (kp * 8 + j) * 2048, vX0 + h
    else:
        off = (kp * 8 + j) * 2048 + h * 1024
        base = vX0 + (1 if off >= 65536 else 0)
    g.ds(f"ds_read_b128 {R(d)}, v{base} offset:{off % 65536}", rs(d))


def chain_order(jp):
    j0, j1 = 2 * jp, 2 * jp + 1
    if jp % 2 == 0:
        return [(j0, 0), (j0, 1), (j1, 1), (j1, 0), (j1, 2), (j1, 3), (j0, 3), (j0, 2)]
    return [(j0, 2), (j0, 3), (j1, 3), (j1, 2), (j1, 0), (j1, 1), (j0, 1), (j0, 0)]


def mfma(g, acc, A, B, first):
    g.wait(regs=rs(A) + rs(B))
    c = "0" if first else R(acc)
    g(f"v_mfma_f32_16x16x32_bf16 {R(acc)}, {R(A)}, {R(B)}, {c}")


def start_a(g, own):
    it = [lambda i=i, h=h, q=q: tr_read(g, i, h, q, 0, ("ra", 0), own.kind) for i, h, q in part_reads(own.kind, 0)]
    it.append(lambda: own.advance(g, 1, fresh=True))
    it.append(lambda: set_m0(g, 0))
    it += [None] * g.opt.get("sgap", 3)
    it.append(lambda: g.wait(lg=("ra", 0)))
    for m in range(4):
        it.append(lambda m=m: own.dma(g, 0, m, ("a", 1)))
        it += [None] * (g.opt.get("sgap", 3) - 1)
    return it


def start_x(g, own):
    return [lambda j=j, h=h: x_read(g, own.kind, 0, j, h) for j in range(2) for h in range(2)]


def start_b(g, own):
    return [lambda i=i, h=h, q=q: tr_read(g, i, h, q, 0, ("rb", 0), own.kind) for i, h, q in part_reads(own.kind, 1)] + \
           [lambda: set_m0(g, 1)]


def run(items):
    for f in items:
        if f: f()


def mfma_phase(g, own, nxt, hname, xbar=None, halo=False, extra=None, a00=21):
    o = g.opt
    kind = own.kind
    extra = extra or {}

    def st(p):
        return (own, p) if p < 8 else ((nxt, 0) if (nxt and p == 8) else (None, 0))

    for kp in range(8):
        gaps = {m: [] for m in range(64)}
        late = (halo and o.get("late0", 1))
        for jp in range(4):
            nkp, njp = (kp, jp + 1) if jp < 3 else (kp + 1, 0)
            if nkp > 7:
                continue
            slots = [16 * jp + n for n in ((0, 1, 2, 3) if (jp % 2 or (late and jp)) else (0, 1, 4, 5))]
            for n in range(4):
                j, h = 2 * njp + n // 2, n % 2
                def f(nkp=nkp, j=j, h=h, n=n, jp=jp):
                    if n == 0 and jp == 3 and xbar:
                        xbar(nkp)
                    x_read(g, kind, nkp, j, h)
                gaps[slots[n]].append(f)
            gaps[16 * jp + 15].append(lambda njp=njp: g.wait(regs=rs(xreg(2 * njp, 0), 16)))
        if kind == "P" and kp in (3, 7):
            k = "0x10000" if kp == 3 else "0xffff0000"
            gaps[40].append(lambda k=k: g(f"v_add_u32 v{vX0}, {k}, v{vX0}"))
            gaps[41].append(lambda k=k: g(f"v_add_u32 v{vX1}, {k}, v{vX1}"))
        s_, p_ = st(kp + 1)
        if s_:
            gaps[2].append(lambda kp=kp: g.wait(lg=("rb", kp)))
            for m, at in enumerate((3, 7, 11, 14)):
                gaps[at].append(lambda m=m, s_=s_, kp=kp: s_.dma(g, 1, m, ("b", kp + 1)))
        if kp < 7:
            a0 = 37 if late else 21
            adv, am0, aw, ad = (45, 46, 49, (50, 54, 58, 61)) if late else (29, 30, 34, (35, 39, 43, 46))
            if not o.get("novm"):
                gaps[a0 - 1].append(lambda kp=kp: g.wait(vm=("a", kp + 1)))
            for n, (i, h, q) in enumerate(part_reads(kind, 0)):
                gaps[a0 + n].append(lambda i=i, h=h, q=q, kp=kp: tr_read(g, i, h, q, kp + 1, ("ra", kp + 1), kind))
            s_, p_ = st(kp + 2)
            if s_:
                if s_ is not own and s_.kind != kind:
                    for n, f in enumerate(set_kconst(g, s_.kind)):
                        gaps[20 + n].append(f)
                gaps[adv].append(lambda s_=s_, p_=p_: s_.advance(g, p_))
                gaps[am0].append(lambda: set_m0(g, 0))
                gaps[aw].append(lambda kp=kp: g.wait(lg=("ra", kp + 1)))
                for m in range(4):
                    gaps[ad[m]].append(lambda m=m, s_=s_, kp=kp: s_.dma(g, 0, m, ("a", kp + 2)))
                gaps[62].append(lambda: set_m0(g, 1))
            if not o.get("novm"):
                gaps[52].insert(0, lambda kp=kp: g.wait(vm=("b", kp + 1)))
            for n, (i, h, q) in enumerate(part_reads(kind, 1)):
                gaps[53 + n].insert(0, lambda i=i, h=h, q=q, kp=kp: tr_read(g, i, h, q, kp + 1, ("rb", kp + 1), kind))
        if kp == 7 and nxt:
            def fa():
                g.wait(vm=("a", 8), lg="sw")
                g.barrier(hname + "a")
            gaps[o.get("handa", 20) if not late else 36].append(fa)
            def fb():
                g.drain(vm=True, lg=True)
                g.barrier(hname + "b")
            gaps[o.get("handb", 50)].append(fb)
        if halo:
            def hreg(kp, h): return (vT if kp < 6 else VH + 8 * (kp - 6)) + 4 * h
            def hread(kp, h):
                g.ds(f"ds_read_b128 {R(hreg(kp, h))}, v{vD2} offset:{(2*kp + h)*64}", rs(hreg(kp, h)), "halo")
            if kp < 6:
                gaps[6].append(lambda kp=kp: hread(kp, 0))
                gaps[8].append(lambda kp=kp: hread(kp, 1))
            if kp == 4:
                for n in range(4):
                    gaps[21 + n].append(lambda n=n: hread(6 + n // 2, n % 2))
            def f(kp=kp):
                for i in (0, 1, 3, 2):
                    for h in range(2):
                        mfma(g, VH + 16 + 4 * i, wreg(i, h, kp), hreg(kp, h), kp == 0 and h == 0)
            gaps[31].insert(0, f)
        if kp == 0 and o.get("prio", 1):
            gaps[o.get("prioat", 13)].append(lambda: g("s_setprio 2"))
        m = 0
        for jp in range(4):
            for (j, i) in chain_order(jp):
                for h in range(2):
                    mfma(g, ACC(i, j), wreg(i, h, kp, kind), xreg(j, h), kp == 0 and h == 0)
                    for f in gaps[m]:
                        f()
                    if (kp, m) in extra:
                        extra[(kp, m)]()
                    m += 1


def lane(g, v):
    g(f"v_mbcnt_lo_u32_b32 v{v}, -1, 0")
    g(f"v_mbcnt_hi_u32_b32 v{v}, -1, v{v}")


def d2_addr(g, ln, t):
    g(f"v_lshrrev_b32 v{t}, 4, v{ln}")
    g(f"v_lshlrev_b32 v{t}, 1, v{t}")
    g(f"v_and_b32 v{t+1}, 7, v{ln}")
    g(f"v_xor_b32 v{t}, v{t}, v{t+1}")
    g(f"v_lshlrev_b32 v{t}, 4, v{t}")
    g(f"v_lshrrev_b32 v{t+1}, 3, v{ln}")
    g(f"v_lshl_add_u32 v{vD2}, v{t+1}, 10, v{t}")


def s_addr(g, ph):
    g(f"s_lshr_b32 s{sT1}, s{sW}, 1")
    g(f"s_lshl_b32 s{sT1}, s{sT1}, 14")
    g(f"s_and_b32 s{sT2}, s{sW}, 1")
    g(f"s_lshl_b32 s{sT2}, s{sT2}, 10")
    g(f"s_add_u32 s{sT1}, s{sT1}, s{sT2}")
    g(f"s_add_u32 s{sT1}, s{sT1}, {SBLK[ph] * 32768}")
    lane(g, vS)
    g(f"v_lshl_add_u32 v{vS}, v{vS}, 4, s{sT1}")


class Mixer:
    def __init__(self, g):
        self.g, self.q, self.every, self.n = g, [], 2, 0
        self.q2, self.n2 = [], 0

    def __call__(self, s):
        self.g(s)
        self.n += 1
        if self.q2:
            self.n2 += 1
            if self.n2 >= self.g.opt.get("wdelay", 4):
                self.q2.pop(0)(); self.n2 = 0
        if self.q and self.n % self.every == 0:
            f = self.q.pop(0)
            if f: f()

    def flush(self):
        while self.q2:
            self.q2.pop(0)()
        self.n2 = 0
        while self.q:
            f = self.q.pop(0)
            if f: f()


def glu(e, pairs):
    if e.g.opt.get("noE"): return
    for a, b in pairs: e(f"v_mul_f32 v{b}, s{sC}, v{b}")
    for a, b in pairs: e(f"v_exp_f32 v{b}, v{b}")
    for a, b in pairs: e(f"v_fma_f32 v{b}, v{b}, s{sCi}, s{sCi}")
    for a, b in pairs: e(f"v_rcp_f32 v{b}, v{b}")
    for a, b in pairs: e(f"v_mul_f32 v{a}, v{a}, v{b}")


def halo_import(g, ph):
    g(f"s_lshl_b32 s{sT1}, s{sWg}, 11")
    g(f"s_lshl_b32 s{sT2}, s{sG1+ph}, 1")
    g(f"s_add_u32 s{sT3}, s{sT1}, s{sT2}")
    g(f"v_lshlrev_b32 v{vT+2}, 1, v{vT+1}")
    for ct in range(2):
        g.vmem(f"buffer_load_dwordx4 {R(VHI+4*ct)}, v{vT+2}, s[{sWS}:{sWS+3}], s{sT3} offen offset:{ct*64} sc0 sc1", rs(VHI + 4 * ct))


def halo_check(g, ph):
    lab = f"L_poll{ph}"
    g(f"s_mov_b32 s{sT2}, {g.opt.get('spin', 400000)}")
    g.wait(regs=rs(VHI, 8))
    g(f"{lab}:")
    g(f"v_max3_u32 v{vT+3}, v{VHI}, v{VHI+1}, v{VHI+2}")
    g(f"v_max3_u32 v{vT}, v{VHI+3}, v{VHI+4}, v{VHI+5}")
    g(f"v_max3_u32 v{vT+3}, v{vT+3}, v{VHI+6}, v{VHI+7}")
    g(f"v_max_u32 v{vT+3}, v{vT+3}, v{vT}")
    g(f"v_cmp_eq_u32 vcc, -1, v{vT+3}")
    g(f"s_sub_u32 s{sT2}, s{sT2}, 1")
    g(f"s_cbranch_scc1 {lab}_ok")
    g(f"s_cbranch_vccz {lab}_ok")
    for ct in range(2):
        g(f"buffer_load_dwordx4 {R(VHI+4*ct)}, v{vT+2}, s[{sWS}:{sWS+3}], s{sT3} offen offset:{ct*64} sc0 sc1")
    g("s_waitcnt vmcnt(0)")
    g(f"s_branch {lab}")
    g(f"{lab}_ok:")


def e_phase(g, ph, dst, hand=None, after_glu=None, after_tile=None, own_halo=False, glu_tile=None, conv_tile=None):
    o = g.opt
    halo = o.get("halo", 1)
    e = Mixer(g)
    if o.get("prio", 1):
        g("s_setprio 0")
    lane(g, vT)
    g(f"v_lshrrev_b32 v{vT+1}, 4, v{vT}")
    g(f"v_lshlrev_b32 v{vT+1}, 3, v{vT+1}")
    g(f"s_add_u32 s{sT1}, s{sG1+ph}, 4096")
    g("s_nop 4")
    for ct in range(2):
        for d in range(5):
            r = VWF(ct, d) + 2
            so, off = (sG1 + ph, d * 1024 + ct * 32) if d < 4 else (sT1, ct * 32)
            e.q.append(lambda r=r, so=so, off=off: g.vmem(
                f"buffer_load_dwordx2 {R(r, 2)}, v{vT+1}, s[{sDW}:{sDW+3}], s{so} offen offset:{off}", rs(r, 2)))
    e.every = 8
    if halo and own_halo:
        HA = VH + 16
        for n in range(8):
            d = HA + 8 * (n // 4) + n % 4
            e(f"v_cndmask_b32 v{d}, v{d}, v{d+4}, s[{sMask}:{sMask+1}]")
        glu(e, [(HA + n, HA + 8 + n) for n in range(4)])
        for r in range(4):
            e(f"v_min_u32 v{HA+r}, -2, v{HA+r}")
        g.vmem(f"buffer_store_dwordx4 {R(HA)}, v{vS}, s[{sWS}:{sWS+3}], 0 offen sc0 sc1", tag="hst")
        d2_addr(g, vT, vT + 2)
    for j in range(8):
        glu(e, [(ACC(ct, j) + r, ACC(2 + ct, j) + r) for ct in range(2) for r in range(4)])
        if glu_tile:
            glu_tile(e, j)
    e.flush()
    if halo:
        halo_import(g, ph)
    if after_glu:
        after_glu(e)
    g.wait(regs=rs(160, 32) + rs(224, 8))
    for ct in range(2):
        for d in range(5):
            b = VWF(ct, d)
            e(f"v_lshlrev_b32 v{b}, 16, v{b+2}")
            e(f"v_and_b32 v{b+1}, 0xffff0000, v{b+2}")
            e(f"v_lshlrev_b32 v{b+2}, 16, v{b+3}")
            e(f"v_and_b32 v{b+3}, 0xffff0000, v{b+3}")
    el = [(ct, r) for ct in range(2) for r in range(4)]
    for j in range(8):
        if conv_tile:
            conv_tile(e, j)
        if o.get("noE"):
            continue
        for ct, r in el:
            e(f"v_mul_f32 v{ACC(2+ct, j)+r}, v{ACC(ct, j)+r}, v{VWF(ct, 2)+r}")
        for d in (0, 1, 3, 4):
            jj = j + d - 2
            for ct, r in el:
                y, w = ACC(2 + ct, j) + r, VWF(ct, d) + r
                if jj < 0:
                    e(f"v_fmac_f32_dpp v{y}, v{ACC(ct, jj+8)+r}, v{w} row_shr:1 row_mask:0xf bank_mask:0xf")
                elif jj > 7:
                    e(f"v_fmac_f32_dpp v{y}, v{ACC(ct, jj-8)+r}, v{w} row_shl:1 row_mask:0xf bank_mask:0xf")
                else:
                    e(f"v_fmac_f32 v{y}, v{ACC(ct, jj)+r}, v{w}")
    e.flush()
    ta, tb = o.get("ta", 3), o.get("tb", 6)
    chk_tile = ta if hand else 7
    for n_, j in enumerate((0, 1, 2, 3, 4, 5, 7, 6)):
        if n_ == chk_tile and halo:
            halo_check(g, ph)
            for ct, r in el:
                e(f"v_fmac_f32_dpp v{ACC(2+ct, 6)+r}, v{VHI+4*ct+r}, v{VWF(ct, 4)+r} row_shr:15 row_mask:0xf bank_mask:0xf")
        if hand and n_ == ta:
            g.drain(vm=True, lg=True)
            g.barrier(hand[0] + "a")
            e.q += start_a(g, hand[1]) + start_x(g, hand[1]); e.every = 2; e.n = 0
        if hand and n_ == tb:
            e.flush()
            g.barrier(hand[0] + "b")
            if o.get("prio", 1):
                g("s_setprio 1")
            e.q += start_b(g, hand[1])
        ys = [ACC(2 + ct, j) + r for ct, r in el]
        if not o.get("noE"):
            for n, y in enumerate(ys): e(f"v_exp_f32 v{VTMP+n}, v{y}")
            for n, y in enumerate(ys): e(f"v_fma_f32 v{VTMP+n}, v{VTMP+n}, s{sC}, s{sC}")
            for n, y in enumerate(ys): e(f"v_rcp_f32 v{VTMP+n}, v{VTMP+n}")
            for n, y in enumerate(ys): e(f"v_mul_f32 v{y}, v{y}, v{VTMP+n}")
        for n in range(4): e(f"v_cvt_pk_bf16_f32 v{dst+4*j+n}, v{ys[2*n]}, v{ys[2*n+1]}")
        if after_tile:
            after_tile(e, j)
    e.flush()


def out_phase(g, sbase, fl, pace=None):
    vWa, vRa, vG0, vG1, vG2 = 240, 244, 245, 246, 247
    lane(g, vT)
    g(f"v_and_b32 v{vT+1}, 15, v{vT}")
    g(f"v_lshrrev_b32 v{vT+2}, 5, v{vT}")
    g(f"v_and_b32 v{vT+3}, 7, v{vT}")
    g(f"v_xor_b32 v{vT+2}, v{vT+2}, v{vT+3}")
    g(f"v_lshl_add_u32 v{vT+4}, v{vT+1}, 7, s{sbase}")
    g(f"v_lshl_add_u32 v{vT+4}, v{vT+2}, 4, v{vT+4}")
    g(f"v_bfe_u32 v{vT+2}, v{vT}, 4, 1")
    g(f"v_lshl_add_u32 v{vWa}, v{vT+2}, 3, v{vT+4}")
    for i in range(1, 4):
        g(f"v_xor_b32 v{vWa+i}, {32*i}, v{vWa}")
    g(f"v_lshrrev_b32 v{vT+1}, 3, v{vT}")
    g(f"v_xor_b32 v{vT+2}, v{vT+1}, v{vT+3}")
    g(f"v_lshl_add_u32 v{vT+4}, v{vT+1}, 7, s{sbase}")
    g(f"v_lshl_add_u32 v{vRa}, v{vT+2}, 4, v{vT+4}")
    g(f"s_lshl_b32 s{sT1}, s{sWv}, 7")
    g(f"v_lshl_add_u32 v{vG0}, v{vT+1}, 13, s{sT1}")
    g(f"v_lshl_add_u32 v{vG0}, v{vT+3}, 4, v{vG0}")
    g(f"v_cmp_eq_u32 vcc, 0, v{vT+1}")
    g(f"v_mov_b32 v{vG2}, {OOB}")
    g(f"v_add_u32 v{vG1}, 0x10000, v{vG0}")
    g(f"v_cndmask_b32 v{vG2}, v{vG0}, v{vG2}, vcc")
    g(f"s_movk_i32 s{sT2}, 4096")
    def P(j): return 128 + 8 * (j % 2)
    def Q(j): return 160 + 8 * (j % 4)
    def put(j):
        for i in range(4):
            a = ACC(i, j)
            g(f"v_cvt_pk_bf16_f32 v{P(j)+2*i}, v{a}, v{a+1}")
            g(f"v_cvt_pk_bf16_f32 v{P(j)+2*i+1}, v{a+2}, v{a+3}")
        for i in range(4):
            g.ds(f"ds_write_b64 v{vWa+i}, {R(P(j)+2*i, 2)} offset:{(j % 2)*2048}")
        for hh in range(2):
            g.ds(f"ds_read_b128 {R(Q(j)+4*hh)}, v{vRa} offset:{(j % 2)*2048 + hh*1024}", rs(Q(j) + 4 * hh))
    def store(j):
        for hh in range(2):
            g.wait(regs=rs(Q(j) + 4 * hh))
            va = vG1 if hh else (vG2 if j < 2 else vG0)
            so = "0" if j < 4 else f"s{sT2}"
            g.vmem(f"buffer_store_dwordx4 {R(Q(j)+4*hh)}, v{va}, s[{sO}:{sO+3}], {so} offen offset:{(j % 4)*1024} {fl}".rstrip())
    mode = g.opt.get("noout", 0) if pace else 0
    if pace: pace(0)
    if mode < 2: put(0)
    for j in range(8):
        if j + 1 < 8 and mode < 2:
            put(j + 1)
        if not mode: store(j)
        if pace and j < 7: pace(j + 1)


def srd(g, d, lo, size):
    g(f"s_mov_b32 s{d}, s{lo}")
    g(f"s_mov_b32 s{d+1}, s{lo+1}")
    g(f"s_mov_b32 s{d+2}, {size}")
    g(f"s_mov_b32 s{d+3}, 0x20000")


def g_addr(g):
    lane(g, vX0)
    g(f"v_lshrrev_b32 v{vWG+1}, 2, v{vX0}")
    g(f"v_lshl_add_u32 v{vWG}, v{vWG+1}, 7, s{sRing}")
    g(f"v_bfe_u32 v{vWG+1}, v{vX0}, 3, 2")
    g(f"v_lshl_add_u32 v{vWG}, v{vWG+1}, 5, v{vWG}")
    g(f"v_and_b32 v{vWG+1}, 3, v{vX0}")
    g(f"v_lshl_add_u32 v{vWG}, v{vWG+1}, 3, v{vWG}")
    for i in range(1, 4):
        g(f"v_xor_b32 v{vWG+i}, {32*i}, v{vWG}")
    g(f"v_lshlrev_b32 v{vX0}, 4, v{vX0}")
    g(f"v_add_u32 v{vX1}, 0x10000, v{vX0}")


def build(opt):
    g = Gen(opt)
    halo = opt.get("halo", 1)
    xfl = opt.get("xflag", "nt")
    win = opt.get("win", 2)
    rbar = opt.get("rbar", 15)
    stamps = opt.get("stamps")
    kx, kw1, kdw, kw2, kout, kdbg, kws = KA, KA + 2, KA + 4, KA + 6, KA + 8, KA + 10, KA + 12
    g.l.append(HEAD.rstrip("\n"))
    g("; @launch grid=(256,1,1) block=(512,1,1) lds=163840")
    g('.amdgcn_target "amdgcn-amd-amdhsa--gfx950"')
    g(".text")
    g(f".globl {KN}_kernel")
    g(".p2align 8")
    g(f".type {KN}_kernel,@function")
    g(f"{KN}_kernel:")
    g("s_cmp_ge_u32 s2, 256")
    g("s_cbranch_scc1 L_end")
    g(f"s_load_dwordx8 s[{KA}:{KA+7}], s[0:1], 0")
    g(f"s_load_dwordx4 s[{KA+8}:{KA+11}], s[0:1], 32")
    g(f"s_load_dwordx2 s[{KA+12}:{KA+13}], s[0:1], 48")
    if stamps:
        g("s_memrealtime s[74:75]")
        g("s_memtime s[100:101]")
    g(f"v_readfirstlane_b32 s{sWv}, v0")
    g(f"s_mov_b32 s{sWg}, s2")
    g(f"s_and_b32 s{sTau}, s2, 127")
    g(f"s_bfe_u32 s{sQ0}, s2, {0x20000 if opt.get('rot', 1) else 0}")
    g("s_lshr_b32 s3, s2, 7")
    g("s_mul_i32 s3, s3, 16384000")
    g(f"s_mul_i32 s2, s2, 128000")
    g(f"s_lshr_b32 s{sWv}, s{sWv}, 6")
    g(f"s_and_b32 s{sW}, s{sWv}, 3")
    g("v_and_b32 v0, 63, v0")
    g(f"s_cmp_lt_u32 s{sWv}, 4")
    g("s_cbranch_scc1 L_startA")

    P = [Stream("P", ph) for ph in range(4)]
    GA, GB = Stream("G", 0), Stream("G", 1)

    g(f"v_lshrrev_b32 v12, 3, v0")
    g(f"v_and_b32 v13, 7, v0")
    g(f"v_lshrrev_b32 v14, 4, v0")
    g(f"v_xor_b32 v14, v14, v13")
    g(f"s_lshl_b32 s{sT3}, s{sW}, 11")
    g(f"v_lshl_add_u32 v14, v14, 4, s{sT3}")
    g(f"v_lshl_add_u32 v16, v12, 13, v14")
    g(f"v_xor_b32 v17, 0x10040, v16")
    g(f"v_add_u32 v19, 1024, v17")
    g(f"s_cmp_eq_u32 s{sTau}, 0")
    g(f"s_cselect_b32 s{sT3}, 1024, 0")
    g(f"v_cmp_gt_u32 vcc, s{sT3}, v16")
    g(f"v_mov_b32 v15, {OOB}")
    g(f"s_cmp_eq_u32 s{sTau}, 127")
    g(f"v_cndmask_b32 v16, v16, v15, vcc")
    g(f"s_mov_b32 s{sX+3}, 0x20000")
    g(f"s_cselect_b32 s{sX+2}, {127*1024}, s{sX+3}")
    g(f"v_add_u32 v18, 1024, v16")
    g(f"s_lshl_b32 s{sT3}, s{sW}, 12")
    g("s_waitcnt lgkmcnt(0)")
    g(f"s_add_u32 s{sX}, s{kx}, s2")
    g(f"s_addc_u32 s{sX+1}, s{kx+1}, 0")
    g(f"s_sub_u32 s{sX}, s{sX}, 2048")
    g(f"s_subb_u32 s{sX+1}, s{sX+1}, 0")

    def d1_addr():
        g(f"v_lshrrev_b32 v1, 5, v0")
        g(f"v_lshlrev_b32 v1, 1, v1")
        g(f"v_and_b32 v2, 3, v0")
        g(f"v_xor_b32 v1, v1, v2")
        g(f"v_lshlrev_b32 v1, 4, v1")
        g(f"v_lshrrev_b32 v3, 2, v0")
        g(f"v_lshl_add_u32 v{vD1}, v3, 11, v1")
        g(f"s_lshl_b32 s{sRing}, s{sW}, 13")
        g(f"s_add_u32 s{sRing}, s{sRing}, 131072")
        g(f"s_add_u32 s{sRing+1}, s{sRing}, 4096")
        for f in set_kconst(g, "P"): f()

    def g_consts(ph):
        g(f"s_add_u32 s{sT0}, s{sQ0}, {ph}")
        g(f"s_and_b32 s{sT0}, s{sT0}, 3")
        g(f"s_lshl2_add_u32 s{sT1}, s{sT0}, s{sW}")
        g(f"s_lshl_b32 s{sG1+ph}, s{sT1}, 6")
        g(f"s_lshl_b32 s{sT0}, s{sT0}, 17")
        g(f"s_lshl_b32 s{sT1}, s{sW}, 7")
        g(f"s_add_u32 s{sG2+ph}, s{sT0}, s{sT1}")

    def common():
        srd(g, sDW, kdw, 5120)
        srd(g, sW2, kw2, 524288)
        g(f"s_add_u32 s{sO}, s{kout}, s2")
        g(f"s_addc_u32 s{sO+1}, s{kout+1}, 0")
        g(f"s_sub_u32 s{sO}, s{sO}, 2048")
        g(f"s_subb_u32 s{sO+1}, s{sO+1}, 0")
        g(f"s_mov_b32 s{sO+2}, {127*1024}")
        g(f"s_mov_b32 s{sO+3}, 0x20000")
        srd(g, sDBG, kdbg, 256)
        srd(g, sWS, kws, 524288)
        for ph in range(1, 4):
            g_consts(ph)
        g(f"s_mov_b32 s{sC}, 0xbfb8aa3b")
        g(f"s_mov_b32 s{sCi}, 0xbf317218")
        d2_addr(g, 0, 4)
        g(f"v_lshrrev_b32 v3, 4, v0")
        g(f"v_bfe_u32 v4, v0, 4, 1")
        g(f"v_bfe_u32 v5, v0, 2, 2")
        g(f"v_lshl_add_u32 v{vW0}, v3, 9, s{sRing}")
        g(f"v_lshl_add_u32 v{vW0}, v5, 6, v{vW0}")
        g(f"v_lshl_add_u32 v{vW0}, v4, 5, v{vW0}")
        g(f"v_lshl_add_u32 v{vW0}, v2, 3, v{vW0}")
        g(f"v_xor_b32 v{vW1}, 32, v{vW0}")
        g(f"v_and_b32 v4, 15, v0")
        g(f"v_lshrrev_b32 v5, 1, v4")
        g(f"v_xor_b32 v5, v5, v3")
        g(f"v_lshlrev_b32 v5, 4, v5")
        g(f"v_lshl_add_u32 v{vX0}, v4, 7, v5")
        g(f"v_xor_b32 v{vX1}, 64, v{vX0}")
        if stamps:
            g("s_mov_b64 s[76:77], s[100:101]")


    sWB = 0
    sub = (0, 64)
    def wbase(key):
        if key < 4:
            g(f"s_add_u32 s{sT2}, s{sQ0}, {key}")
            g(f"s_and_b32 s{sT2}, s{sT2}, 3")
            g(f"s_lshl_b32 s{sT2}, s{sT2}, 8")
            g(f"s_lshl_b32 s{sSl+1}, s{sSl}, 13")
            g(f"s_add_u32 s{sT2}, s{sT2}, s{sSl+1}")
            ptr = sW1
        else:
            g(f"s_lshl_b32 s{sT2}, s{sSl}, 12")
            ptr = sW2
        g(f"s_add_u32 s{sWB}, s{ptr}, s{sT2}")
        g(f"s_addc_u32 s{sWB+1}, s{ptr+1}, 0")
    def wlines(key):
        if key < 4:
            return [(key, n * 1024 + e * 128 + u) for n in range(8) for e in range(2) for u in sub]
        return [(key, n * 128 + u) for n in range(32) for u in sub]
    def swarm(lines):
        cur = None
        for n, (key, of) in enumerate(lines):
            if key != cur:
                wbase(key); cur = key
            if n % 14 == 0:
                g("s_waitcnt lgkmcnt(1)")
            g(f"s_load_dword s3, s[{sWB}:{sWB+1}], {of}")
    later = wlines(1) + wlines(2) + wlines(3) + wlines(4)
    nb = 14
    rest = later[6 * nb:] if opt.get("warm", 3) == 3 else []
    def e_warm(lines):
        def f(e, j):
            if j % 2 == 0:
                swarm(lines[(j // 2) * 14:(j // 2 + 1) * 14])
            if j == 7:
                g("s_waitcnt lgkmcnt(0)")
        return f

    def x_issue(kp):
        g(f"s_movk_i32 s{sT0}, {kp*128}")
        for jj in range(2):
            for hh in range(2):
                g(f"s_add_u32 m0, s{sT3}, {kp*16384 + jj*2048 + hh*1024}")
                g("s_nop 0")
                g.vmem(f"buffer_load_dwordx4 v{16+2*jj+hh}, s[{sX}:{sX+3}], s{sT0} offen {xfl} lds".replace("  ", " "), tag=("x", kp))
    x_issue(0)
    srd(g, sW1, kw1, 1048576)
    g(f"s_getpc_b64 s[{sCode}:{sCode+1}]")
    g("L_pc:")
    g(f"s_mov_b32 s{sCode+2}, L_code_end-L_pc")
    g(f"s_mov_b32 s{sCode+3}, 0x20000")
    g(f"s_lshr_b32 s{sT1}, s{sWg}, 3")
    g(f"s_lshl2_add_u32 s{sSl}, s{sT1}, s{sW}")
    g(f"v_lshrrev_b32 v6, 1, v0")
    g(f"v_lshlrev_b32 v6, 10, v6")
    g(f"v_and_b32 v7, 1, v0")
    g(f"v_lshl_add_u32 v6, v7, 7, v6")
    g(f"v_lshrrev_b32 v7, 4, v0")
    g(f"v_lshl_add_u32 v6, v7, 28, v6")
    def warm_w1(ph, dst):
        g(f"s_add_u32 s{sT2}, s{sQ0}, {ph}")
        g(f"s_and_b32 s{sT2}, s{sT2}, 3")
        g(f"s_lshl_b32 s{sT2}, s{sT2}, 8")
        g(f"s_lshl_b32 s{sSl+1}, s{sSl}, 13")
        g(f"s_add_u32 s{sT2}, s{sT2}, s{sSl+1}")
        g.vmem(f"buffer_load_dword v{dst}, v6, s[{sW1}:{sW1+3}], s{sT2} offen {opt.get('wfl', '')}", [dst])
    if opt.get("warm0", 1) == 1:
        warm_w1(0, 8)
    g(f"s_lshl_b32 s{sT2}, s{sSl}, 7")
    g(f"v_lshlrev_b32 v7, 14, v0")
    g.vmem(f"buffer_load_dword v9, v7, s[{sCode}:{sCode+3}], s{sT2} offen", [9])
    if halo:
        g(f"s_add_u32 s{sXB}, s{kx}, s3")
        g(f"s_addc_u32 s{sXB+1}, s{kx+1}, 0")
        g(f"s_mov_b32 s{sXB+2}, 16384000")
        g(f"s_mov_b32 s{sXB+3}, 0x20000")
        g(f"s_add_u32 s{sT0}, s{sQ0}, s{sW}")
        g(f"s_and_b32 s{sT0}, s{sT0}, 3")
        g(f"s_and_b32 s{sT1}, s{sTau}, 0x7c")
        g(f"s_add_u32 s{sT0}, s{sT0}, s{sT1}")
        g(f"s_mul_i32 s{sT0}, s{sT0}, 128000")
        g(f"s_add_u32 s{sT0}, s{sT0}, {126*1024}")
        g(f"s_mul_i32 s{sT1}, s{sW}, {HPITCH}")
        g(f"s_add_u32 m0, s{sT1}, {HBASE}")
        g(f"v_lshlrev_b32 v11, 4, v0")
        g.vmem(f"buffer_load_dwordx4 v11, s[{sXB}:{sXB+3}], s{sT0} offen {opt.get('hfl', '')} lds", tag=("x", 0))
    if opt.get("warm0", 1) == 2:
        swarm(wlines(0)[12 * len(sub):])
    d1_addr()
    g_consts(0)
    P[0].advance(g, 0)
    if opt.get("x1first"):
        x_issue(1)
    for ab in range(2):
        set_m0(g, ab)
        g("s_nop 0")
        for m in range(4):
            P[0].dma(g, ab, m, ("x", 0), opt.get("w0fl", ""))
    for kp in range(2 if opt.get("x1first") else 1, win):
        x_issue(kp)
    g.wait(vm=("x", 0))
    g.barrier("x0")
    g("s_branch L_roleB")
    vmB = list(g.vm); g.vm = []; g.bars = []

    g("L_startA:")
    d1_addr()
    g_consts(0)
    g("s_waitcnt lgkmcnt(0)")
    if opt.get("tlb", 0):
        g(f"s_add_u32 s{sO}, s{kout}, s2")
        g(f"s_addc_u32 s{sO+1}, s{kout+1}, 0")
        for n, (k, off) in enumerate(((kw1, 0), (kdw, 0), (kw2, 0), (kws, 0x80000), (sO, 0))):
            g(f"s_load_dword s{90+n}, s[{k}:{k+1}], {off}")
    srd(g, sW1, kw1, 1048576)
    g(f"s_lshr_b32 s{sT1}, s{sWg}, 3")
    g(f"s_lshl2_add_u32 s{sSl}, s{sT1}, s{sW}")
    if opt.get("warm0", 1) == 2:
        swarm(wlines(0)[:12 * len(sub)])
    common()
    if halo:
        g(f"v_mul_u32_u24 v6, {HPITCH}, v2")
        g(f"v_lshl_add_u32 v6, v3, 4, v6")
        g(f"v_add_u32 v{vD2}, {HBASE}, v6")
        g(f"s_and_b32 s{sT1}, s{sWg}, 0xfc")
        g(f"s_lshl_b32 s{sT1}, s{sT1}, 11")
        g(f"s_lshl1_add_u32 s{sT1}, s{sG1}, s{sT1}")
        g(f"v_add_u32 v6, s{sQ0}, v2")
        g(f"v_and_b32 v6, 3, v6")
        g(f"v_lshl_add_u32 v6, v6, 11, s{sT1}")
        g(f"v_bfe_u32 v5, v0, 2, 1")
        g(f"v_lshl_add_u32 v6, v5, 6, v6")
        g(f"v_lshl_add_u32 v6, v3, 4, v6")
        g(f"v_bfe_u32 v5, v0, 3, 1")
        g(f"v_lshl_add_u32 v{vS}, v5, 30, v6")
        g(f"s_mov_b32 s{sMask}, 0x00f000f0")
        g(f"s_mov_b32 s{sMask+1}, 0x00f000f0")
    g("s_waitcnt lgkmcnt(0)")
    g.stamp(8)
    g.barrier("x0")
    g.stamp(9)
    it = start_a(g, P[0])
    run(it[:8] + start_x(g, P[0]) + start_b(g, P[0])[:8])
    run(it[8:10]); g("s_nop 0"); run(it[10:] + start_b(g, P[0])[8:])
    def rb(kp):
        if kp + win == 7:
            g.wait(lg="halo")
        g.barrier(f"r{kp}")
    assert rbar and win == 2
    ex = {(kp, rbar): (lambda kp=kp: rb(kp)) for kp in range(8 - win)}
    g.stamp(1)
    mfma_phase(g, P[0], P[1], "h0", xbar=lambda kp: g.barrier(f"x{kp}"), halo=bool(halo), extra=ex)
    g.stamp(2)
    e_phase(g, 0, VH, hand=("h1", P[2]), own_halo=True, glu_tile=e_warm(rest[:38]))
    g.stamp(3)
    mfma_phase(g, P[2], P[3], "h2")
    g.stamp(4)

    def swr(e, reg, off):
        e.q2.append(lambda: g.ds(f"ds_write_b128 v{vS}, {R(reg)} offset:{off}", tag="sw"))
    def convA(e, j):
        if j != opt.get("m3tile", 5):
            return
        g.barrier("M3")
        s_addr(g, 2)
        g_addr(g)
        for f in set_kconst(g, "G"): f()
    e_phase(g, 2, 0, hand=("h3", GA), conv_tile=convA, after_tile=lambda e, j: swr(e, 4 * j, j * 2048))
    g.stamp(5)
    def xbarA(kp):
        if kp == 2:
            g.wait(lg="sw")
            g.barrier("V")
        if kp == 6:
            g.barrier("Y")
    g.wait(lg="sw")
    FREE = (9, 12, 38, 41)
    ex = {(j // 4, FREE[j % 4]): (lambda j=j: g.ds(f"ds_write_b128 v{vS}, {R(VH+4*j)} offset:{32768 + j*2048}", tag="sw")) for j in range(8)}
    mfma_phase(g, GA, GB, "h4", xbar=xbarA, extra=ex)
    g.stamp(6)
    g("s_setprio 0")
    g(f"s_lshl_b32 s{sT3}, s{sW}, 12")
    npace = opt.get("pace", 4)
    pace_j = [n * 8 // npace for n in range(npace)]
    out_phase(g, sT3, opt.get("stA", "nt"), pace=lambda j: g.barrier(f"Z{pace_j.index(j)}") if j in pace_j else None)
    g.stamp(7)
    barsA = g.bars
    g("s_branch L_fin")

    g.lg, g.vm, g.bars = [], vmB, ["x0"]
    g("L_roleB:")
    if rbar:
        g.barrier("r0")
    x_issue(win)
    common()
    g.stamp(1)
    g(f"s_lshl_b32 s{sT2}, s{sSl}, 7")
    g.vmem(f"buffer_load_dword v10, v7, s[{sDW}:{sDW+3}], s{sT2} offen", [10])
    if opt.get("warm", 3) == 3:
        swarm(later[:nb])
    g(f"s_and_b32 s{sGrp}, s{sWg}, 0xfc")
    if halo:
        g(f"s_lshl2_add_u32 s{sT1}, s{sWg}, s{sW}")
        g(f"s_lshl_b32 s{sT1}, s{sT1}, 9")
        g(f"v_lshlrev_b32 v21, 3, v0")
        g(f"v_mov_b32 v22, -1")
        g(f"v_mov_b32 v23, -1")
        g.vmem(f"buffer_store_dwordx2 v[22:23], v21, s[{sWS}:{sWS+3}], s{sT1} offen sc0 sc1", tag="clr")
    for kp in range(1, 8):
        g.wait(vm=("x", kp))
        g.barrier(f"x{kp}")
        if kp in (3, 7):
            g.stamp({0: 1, 3: 8, 7: 9}[kp])
        if kp == win + 1 and halo:
            assert not any(t == "clr" for _, t in g.vm)
            g(f"s_cmp_lg_u32 s{sW}, 0")
            g("s_cbranch_scc1 L_noann")
            g(f"s_lshl_b32 s{sT1}, 1, s{sQ0}")
            g(f"s_atomic_or s{sT1}, s[{sDBG}:{sDBG+1}], s{sGrp}")
            g("L_noann:")
        if kp + win < 8:
            if rbar:
                g.barrier(f"r{kp}")
            x_issue(kp + win)
            wm = opt.get("warm", 3)
            if wm == 3:
                swarm(later[kp * nb:(kp + 1) * nb])
            if wm == 1 and kp in (1, 2, 3):
                warm_w1(kp, 23 + kp)
            if wm in (1, 2) and kp == 4:
                g(f"s_lshl_b32 s{sT2}, s{sSl}, 12")
                g(f"v_lshlrev_b32 v7, 7, v0")
                g(f"v_lshrrev_b32 v6, 5, v0")
                g(f"v_lshl_add_u32 v7, v6, 28, v7")
                g.vmem(f"buffer_load_dword v20, v7, s[{sW2}:{sW2+3}], s{sT2} offen", [20])
        if kp == 6 and halo:
            g(f"v_mov_b32 v21, s{sGrp}")
            g.vmem(f"buffer_load_dword v22, v21, s[{sDBG}:{sDBG+3}], 0 offen sc0 sc1", [22])
    g.drain(vm=True)
    if halo:
        g(f"s_mov_b32 s{sT2}, {opt.get('spin', 400000)}")
        g("L_rdy:")
        g(f"v_readfirstlane_b32 s{sT0}, v22")
        g(f"s_sub_u32 s{sT2}, s{sT2}, 1")
        g("s_cbranch_scc1 L_rdy_ok")
        g("s_nop 1")
        g(f"s_cmp_eq_u32 s{sT0}, 15")
        g("s_cbranch_scc1 L_rdy_ok")
        g(f"buffer_load_dword v22, v21, s[{sDBG}:{sDBG+3}], 0 offen sc0 sc1")
        g("s_waitcnt vmcnt(0)")
        g("s_branch L_rdy")
        g("L_rdy_ok:")
    g("s_waitcnt lgkmcnt(0)")
    def idle_start(name, own):
        run(start_x(g, own))
        g.barrier(name + "a")
        run(start_a(g, own))
        g.barrier(name + "b")
        g("s_setprio 1")
        run(start_b(g, own))
    idle_start("h0", P[1])
    g.stamp(2)
    mfma_phase(g, P[1], P[2], "h1")
    g.stamp(3)
    e_phase(g, 1, VH, hand=("h2", P[3]), glu_tile=e_warm(rest[38:]))
    g.stamp(4)
    m3k = opt.get("m3k", 4)
    ex = {(m3k, 61): lambda: g.barrier("M3")}
    for j in range(8):
        ex[(5 + j // 4, FREE[j % 4])] = (lambda j=j: g.ds(f"ds_write_b128 v{vS}, {R(VH+4*j)} offset:{j*2048}", tag="sw"))
    s_addr(g, 1)
    mfma_phase(g, P[3], GA, "h3", extra=ex)
    g.stamp(5)
    def vB(e, j):
        if j == opt.get("vtile", 5):
            g.barrier("V")
            g(f"v_add_u32 v{vS}, {3 * 32768}, v{vS}")
    e_phase(g, 3, 0, glu_tile=vB, after_tile=lambda e, j: swr(e, 4 * j, j * 2048))
    g_addr(g)
    g.drain(vm=True, lg=True)
    g.barrier("Y")
    idle_start("h4", GB)
    g.stamp(6)
    ex = {}
    for n in range(npace):
        def f(n=n):
            g.wait(regs=rs(xreg(6, 0), 16))
            g.barrier(f"Z{n}")
        ex[(n * opt.get("pacek", 6) // npace, 53)] = f
    mfma_phase(g, GB, None, None, extra=ex)
    g.stamp(7)
    out_phase(g, sRing, opt.get("stB", "nt"))
    assert g.bars == barsA, (g.bars, barsA)
    g("L_fin:")
    if stamps:
        g("s_waitcnt vmcnt(0)")
        g("s_memrealtime s[98:99]")
        g("s_memtime s[100:101]")
        g(f"s_add_u32 s4, s{sWS}, {STAMP_OFF}\ns_addc_u32 s5, s{sWS+1}, 0\ns_mov_b32 s6, 0x100000\ns_mov_b32 s7, 0x20000")
        g(f"s_lshl_b32 s8, s{sWg}, 3\ns_add_u32 s8, s8, s{sWv}\ns_lshl_b32 s8, s8, 7")
        g("s_waitcnt lgkmcnt(0)")
        g("s_mov_b64 exec, 1")
        g("v_mov_b32 v4, 0")
        order = [74, 98, 76, 100] + [76 + 2 * n for n in range(1, 10)]
        for n, s in enumerate(order):
            g(f"v_mov_b32 v0, s{s}\nv_mov_b32 v1, s{s+1}")
            g(f"buffer_store_dwordx2 v[0:1], v4, s[4:7], s8 offen offset:{8*n}")
            g("s_nop 1")
    g("L_end:")
    g("s_endpgm")
    g("L_code_end:")
    g('.section .rodata,"a"')
    g(".p2align 6")
    g(f".amdhsa_kernel {KN}_kernel")
    g.l += ["  .amdhsa_next_free_vgpr 256", "  .amdhsa_next_free_sgpr 102", "  .amdhsa_accum_offset 256",
            "  .amdhsa_group_segment_fixed_size 0", "  .amdhsa_kernarg_size 56", "  .amdhsa_user_sgpr_count 2",
            "  .amdhsa_user_sgpr_kernarg_segment_ptr 1", "  .amdhsa_system_sgpr_workgroup_id_x 1",
            "  .amdhsa_float_denorm_mode_32 3"]
    g(".end_amdhsa_kernel")
    return g.text()


def parse(args):
    opt = {}
    for a in args:
        k, v = a.split("=", 1)
        try:
            v = int(v)
        except ValueError:
            v = v.replace("+", " ")
        opt[k] = v
    return opt


if __name__ == "__main__":
    open(sys.argv[1], "w").write(build(parse(sys.argv[2:])))
```

```python
import sys
from gen import build, parse, KN, STAMP_OFF
def make(fn, mode, opt):
    opt = dict(opt); opt["stamps"] = 1
    t = build(opt)
    t = t.replace("; @launch grid=(256,1,1) block=(512,1,1) lds=163840",
                  f"; @launch kernel={KN}_kernel grid=(256,1,1) block=(512,1,1) lds=163840\n; @launch kernel=amp_kernel grid=(1,1,1) block=(64,1,1) lds=0")
    a = [".p2align 8", ".globl amp_kernel", ".type amp_kernel,@function", "amp_kernel:",
         "s_cmp_ge_u32 s2, 1", "s_cbranch_scc1 L_amp_end",
         "s_load_dwordx2 s[4:5], s[0:1], 48", "s_waitcnt lgkmcnt(0)",
         f"s_add_u32 s4, s4, {STAMP_OFF}", "s_addc_u32 s5, s5, 0", "s_mov_b32 s6, 0x100000", "s_mov_b32 s7, 0x20000"]
    if mode[0] == "span":
        _, hi, lo, mul = mode
        a += ["s_load_dword s10, s[4:5], 0", "v_lshlrev_b32 v1, 7, v0", "v_mov_b32 v4, 0x80000000", "v_mov_b32 v5, 0x7fffffff", "s_mov_b32 s8, 0", "s_waitcnt lgkmcnt(0)",
              "L_amp_l:", f"buffer_load_dword v2, v1, s[4:7], s8 offen offset:{8*hi}", f"buffer_load_dword v3, v1, s[4:7], s8 offen offset:{8*lo}", "s_waitcnt vmcnt(0)",
              "v_subrev_u32 v2, s10, v2", "v_subrev_u32 v3, s10, v3", "v_max_i32 v4, v4, v2", "v_min_i32 v5, v5, v3",
              "s_add_u32 s8, s8, 8192", "s_cmp_lt_u32 s8, 262144", "s_cbranch_scc1 L_amp_l",
              "s_mov_b32 s12, 0x80000000", "s_mov_b32 s13, 0x7fffffff", "s_nop 4"]
        for l in range(64):
            a += [f"v_readlane_b32 s14, v4, {l}", f"v_readlane_b32 s15, v5, {l}", "s_nop 3", "s_max_i32 s12, s12, s14", "s_min_i32 s13, s13, s15"]
        a += ["s_sub_u32 s12, s12, s13", f"s_mul_i32 s12, s12, {mul}"]
    else:
        _, rec, hi, lo, mul, sh = mode
        a += [f"s_load_dword s12, s[4:5], {rec*128 + 8*hi}", f"s_load_dword s13, s[4:5], {rec*128 + 8*lo}", "s_waitcnt lgkmcnt(0)",
              "s_sub_u32 s12, s12, s13", f"s_mul_i32 s12, s12, {mul}", f"s_lshr_b32 s12, s12, {sh}"]
    a += ["s_min_u32 s12, s12, 200000",
          "s_memrealtime s[16:17]", "s_waitcnt lgkmcnt(0)",
          "L_amp_s:", "s_memrealtime s[18:19]", "s_waitcnt lgkmcnt(0)", "s_sub_u32 s20, s18, s16", "s_cmp_lt_u32 s20, s12", "s_cbranch_scc1 L_amp_s",
          "L_amp_end:", "s_endpgm"]
    t = t.replace('.section .rodata,"a"', "\n".join(a) + '\n.section .rodata,"a"')
    t += """.p2align 6
.amdhsa_kernel amp_kernel
  .amdhsa_next_free_vgpr 16
  .amdhsa_next_free_sgpr 32
  .amdhsa_accum_offset 16
  .amdhsa_group_segment_fixed_size 0
  .amdhsa_kernarg_size 56
  .amdhsa_user_sgpr_count 2
  .amdhsa_user_sgpr_kernarg_segment_ptr 1
  .amdhsa_system_sgpr_workgroup_id_x 1
.end_amdhsa_kernel
"""
    open(fn, "w").write(t)
if __name__ == "__main__":
    opt = parse(sys.argv[1:])
    r = 100*8 + 4
    make("h/amp0_rec0.s", ("rec", r, 1, 0, 0, 0), opt)
    make("h/amp1_span0.s", ("span", 1, 0, 0), opt)
    make("h/amp2_span.s", ("span", 1, 0, 4), opt)
    make("h/amp3_cyc.s", ("rec", r, 3, 2, 1, 2), opt)
    make("h/amp4_dur.s", ("rec", r, 1, 0, 4, 0), opt)
    make("h/amp5_ph0.s", ("rec", r, 5, 2, 1, 1), opt)
```

```python
import sys

KN = "standalone__conformer_conv_module__speech"
STAMP_OFF = 255 * 1024 * 1024

HEAD = """; Kernarg layout for this problem (56 bytes, ptrs only, base s[0:1]):
;   offset   0: d_in[0] x  shape=(2, 16000, 512) dtype=bfloat16 strides=(16384000, 1024, 2) contiguous=True
;   offset   8: d_in[1] w_pw1  shape=(512, 1024) dtype=bfloat16 strides=(2048, 2) contiguous=True
;   offset  16: d_in[2] dw  shape=(5, 512) dtype=bfloat16 strides=(1024, 2) contiguous=True
;   offset  24: d_in[3] w_pw2  shape=(512, 512) dtype=bfloat16 strides=(1024, 2) contiguous=True
; Override launch geometry by editing the next line (default: block=256,
"""

def ACC(i, j): return 4 * (i * 8 + j)
VH = 128
VWX, VWY, VWZ = 160, 176, 192
VXR = 208
vX0, vX1 = 240, 241
vDc, vS = 242, 243
vW0, vW1 = 244, 245
vD1, vD2 = 246, 247
vG8, vM0, vM1, vEX = 248, 249, 250, 251
vT = 248
def AF(ct, n): return 224 + 8 * ct + 4 * n
def CW(ct): return 160 + 4 * ct
def PK(ct, p): return 64 + 32 * ct + 2 * (p + 2)
VEXP = 168
VTMP = 88
sX, sW1, sW2, sO, sDW, sWS, sDBG, sWE = 4, 8, 12, 16, 20, 24, 28, 32
sW64, sW64b, sW128, sSb = 36, 37, 38, 39
sRing = 44
sT0, sT1, sT2, sT3 = 46, 47, 48, 49
sC, sCi = 50, 51
sWv, sW, sTile, sTau, sWg, sGrp = 52, 53, 54, 55, 56, 57
sMask = 58
sK = 66
sSl = 96
sCode = 16
KA = 76
QORD = (1, 2, 0, 3)
SBLK = {1: 0, 2: 1, 0: 2, 3: 3}

OOB = 0x7f000000
HBASE, HPITCH = 7 * 16384, 1088


class Gen:
    def __init__(self, opt):
        self.l = []
        self.opt = opt
        self.lg = []
        self.vm = []
        self.bars = []

    def __call__(self, s=""):
        for line in s.split("\n"):
            self.l.append(line if line.endswith(":") or line.startswith(".") or line.startswith(";") else "    " + line)

    def text(self):
        return "\n".join(self.l) + "\n"

    def ds(self, text, regs=(), tag=None):
        if self.opt.get("nosw") and tag == "sw":
            return
        if len(self.lg) >= 15:
            self("s_waitcnt lgkmcnt(11)"); self.lg = self.lg[-11:]
        self(text); self.lg.append((set(regs), tag))

    def vmem(self, text, regs=(), tag=None):
        self(text); self.vm.append((set(regs), tag))

    def _idx(self, q, regs, tag):
        idx = -1
        for n, (r, t) in enumerate(q):
            if (regs and (r & set(regs))) or (tag is not None and t == tag):
                idx = n
        return idx

    def wait(self, regs=(), lg=None, vm=None):
        parts = []
        i = self._idx(self.vm, regs, vm)
        if i >= 0:
            n = min(len(self.vm) - 1 - i, 63)
            parts.append(f"vmcnt({n})"); self.vm = self.vm[len(self.vm) - n:] if n else []
        i = self._idx(self.lg, regs, lg)
        if i >= 0:
            n = min(len(self.lg) - 1 - i, 15)
            parts.append(f"lgkmcnt({n})"); self.lg = self.lg[len(self.lg) - n:] if n else []
        if parts:
            self("s_waitcnt " + " ".join(parts))

    def drain(self, vm=False, lg=False):
        parts = []
        if vm and self.vm:
            parts.append("vmcnt(0)"); self.vm = []
        if lg and self.lg:
            parts.append("lgkmcnt(0)"); self.lg = []
        if parts:
            self("s_waitcnt " + " ".join(parts))

    def barrier(self, name):
        self.point(name + "_")
        self(f"s_barrier"); self.bars.append(name)
        self.point(name)

    def point(self, name):
        pts = self.opt.get("pts")
        if pts and name in pts.split():
            n = pts.split().index(name) + 1
            self(f"s_memtime s[{76+2*n}:{77+2*n}]")

    def stamp(self, n):
        if self.opt.get("pts"):
            return self.point(f"s{n}")
        if self.opt.get("stamps") in (1, 3):
            self(f"s_mem{'real' if self.opt['stamps'] == 3 else ''}time s[{76+2*n}:{77+2*n}]")
            self("s_waitcnt lgkmcnt(0)")
            self.lg = []


def R(a, n=4): return f"v[{a}:{a+n-1}]"
def rs(a, n=4): return list(range(a, a + n))


def wreg(i, h, p, kind="P"):
    if kind == "G":
        return ((160, 176), (192, 128))[p % 2][h] + 4 * i
    if i < 2:
        return (VWX if p % 2 == 0 else VWY) + 8 * i + 4 * h
    return VWZ + 8 * (i - 2) + 4 * h


def xreg(j, h): return VXR + 8 * (j % 4) + 4 * h


FAKE = [0]
def kconst(kind, ab, m):
    if kind == "P" and FAKE[0]:
        return 8 * m * 2048 + ab * 1024 - m * 1024
    if kind == "P":
        return 16 * m * 2048 + ab * 1024 - m * 1024
    return (32 * ab + 8 * m) * 1024 - m * 1024


def set_kconst(g, kind):
    return [lambda ab=ab, m=m: g(f"s_mov_b32 s{sK + 4*ab + m}, {kconst(kind, ab, m)}") for ab in range(2) for m in range(4)]


class Stream:
    def __init__(self, kind, arg):
        self.kind, self.arg = kind, arg

    def advance(self, g, kp, fresh=False):
        if self.kind == "P":
            g(f"v_add_u32 v{vDc}, {kp * 131072 + self.arg * 256}, v{vD1}")
        else:
            g(f"v_add_u32 v{vDc}, {QORD[kp >> 1] * 131072 + (kp & 1) * 65536 + self.arg * 512}, v{vD2}")

    def dma(self, g, ab, m, tag, fl=""):
        if g.opt.get("nodma"):
            return
        srd = sW1 if self.kind == "P" else sW2
        g.vmem(f"buffer_load_dwordx4 v{vDc}, s[{srd}:{srd+3}], s{sK + 4*ab + m} offen offset:{m*1024} {fl} lds", tag=tag)


def set_m0(g, ab):
    g(f"s_mov_b32 m0, s{sRing + ab}")


vWG = 252


def tr_read(g, i, h, q, p, tag, kind="P"):
    d = wreg(i, h, p, kind) + 2 * q
    if kind == "G":
        off, base = h * 4096 + q * 2048, vWG + i
    else:
        off, base = (i >> 1) * 4096 + h * 2048 + q * 256, vW0 + (i & 1)
    g.ds(f"ds_read_b64_tr_b16 {R(d, 2)}, v{base} offset:{off}", rs(d, 2), tag)


def part_reads(kind, ab):
    if kind == "G":
        return [(i, ab, q) for i in range(4) for q in range(2)]
    return [(i, h, q) for i in ((0, 1) if ab == 0 else (3, 2)) for h in range(2) for q in range(2)]


def x_read(g, kind, kp, j, h):
    d = xreg(j, h)
    if kind == "P":
        off, base = (kp * 8 + j) * 2048, vX0 + h
    else:
        off = (kp * 8 + j) * 2048 + h * 1024
        base = vX0 + (1 if off >= 65536 else 0)
    g.ds(f"ds_read_b128 {R(d)}, v{base} offset:{off % 65536}", rs(d))


def chain_order(jp):
    j0, j1 = 2 * jp, 2 * jp + 1
    if jp % 2 == 0:
        return [(j0, 0), (j0, 1), (j1, 1), (j1, 0), (j1, 2), (j1, 3), (j0, 3), (j0, 2)]
    return [(j0, 2), (j0, 3), (j1, 3), (j1, 2), (j1, 0), (j1, 1), (j0, 1), (j0, 0)]


def mfma(g, acc, A, B, first):
    g.wait(regs=rs(A) + rs(B))
    c = "0" if first else R(acc)
    g(f"v_mfma_f32_16x16x32_bf16 {R(acc)}, {R(A)}, {R(B)}, {c}")


def start_a(g, own):
    it = [lambda i=i, h=h, q=q: tr_read(g, i, h, q, 0, ("ra", 0), own.kind) for i, h, q in part_reads(own.kind, 0)]
    it.append(lambda: own.advance(g, 1, fresh=True))
    it.append(lambda: set_m0(g, 0))
    it += [None] * g.opt.get("sgap", 3)
    it.append(lambda: g.wait(lg=("ra", 0)))
    for m in range(4):
        it.append(lambda m=m: own.dma(g, 0, m, ("a", 1)))
        it += [None] * (g.opt.get("sgap", 3) - 1)
    return it


def start_x(g, own):
    return [lambda j=j, h=h: x_read(g, own.kind, 0, j, h) for j in range(2) for h in range(2)]


def start_b(g, own):
    return [lambda i=i, h=h, q=q: tr_read(g, i, h, q, 0, ("rb", 0), own.kind) for i, h, q in part_reads(own.kind, 1)] + \
           [lambda: set_m0(g, 1)]


def run(items):
    for f in items:
        if f: f()


def mfma_phase(g, own, nxt, hname, xbar=None, first=False, extra=None):
    o = g.opt
    kind = own.kind
    extra = extra or {}

    def st(p):
        return (own, p) if p < 8 else ((nxt, 0) if (nxt and p == 8) else (None, 0))

    for kp in range(8):
        gaps = {m: [] for m in range(64)}
        late = (first and o.get("late0", 1))
        for jp in range(4):
            nkp, njp = (kp, jp + 1) if jp < 3 else (kp + 1, 0)
            if nkp > 7:
                continue
            slots = [16 * jp + n for n in ((0, 1, 2, 3) if (jp % 2 or (late and jp)) else (0, 1, 4, 5))]
            for n in range(4):
                j, h = 2 * njp + n // 2, n % 2
                def f(nkp=nkp, j=j, h=h, n=n, jp=jp):
                    if n == 0 and jp == 3 and xbar:
                        xbar(nkp)
                    x_read(g, kind, nkp, j, h)
                gaps[slots[n]].append(f)
            gaps[16 * jp + 15].append(lambda njp=njp: g.wait(regs=rs(xreg(2 * njp, 0), 16)))
        if kind == "P" and kp in (3, 7):
            k = "0x10000" if kp == 3 else "0xffff0000"
            gaps[40].append(lambda k=k: g(f"v_add_u32 v{vX0}, {k}, v{vX0}"))
            gaps[41].append(lambda k=k: g(f"v_add_u32 v{vX1}, {k}, v{vX1}"))
        s_, p_ = st(kp + 1)
        if s_:
            gaps[2].append(lambda kp=kp: g.wait(lg=("rb", kp)))
            for m, at in enumerate((3, 7, 11, 14)):
                gaps[at].append(lambda m=m, s_=s_, kp=kp: s_.dma(g, 1, m, ("b", kp + 1)))
        if kp < 7:
            a0 = 37 if late else 21
            adv, am0, aw, ad = (45, 46, 49, (50, 54, 58, 61)) if late else (29, 30, 34, (35, 39, 43, 46))
            if not o.get("novm"):
                gaps[a0 - 1].append(lambda kp=kp: g.wait(vm=("a", kp + 1)))
            for n, (i, h, q) in enumerate(part_reads(kind, 0)):
                gaps[a0 + n].append(lambda i=i, h=h, q=q, kp=kp: tr_read(g, i, h, q, kp + 1, ("ra", kp + 1), kind))
            s_, p_ = st(kp + 2)
            if s_:
                if s_ is not own and s_.kind != kind:
                    for n, f in enumerate(set_kconst(g, s_.kind)):
                        gaps[20 + n].append(f)
                gaps[adv].append(lambda s_=s_, p_=p_: s_.advance(g, p_))
                gaps[am0].append(lambda: set_m0(g, 0))
                gaps[aw].append(lambda kp=kp: g.wait(lg=("ra", kp + 1)))
                for m in range(4):
                    gaps[ad[m]].append(lambda m=m, s_=s_, kp=kp: s_.dma(g, 0, m, ("a", kp + 2)))
                gaps[62].append(lambda: set_m0(g, 1))
            if not o.get("novm"):
                gaps[52].insert(0, lambda kp=kp: g.wait(vm=("b", kp + 1)))
            for n, (i, h, q) in enumerate(part_reads(kind, 1)):
                gaps[53 + n].insert(0, lambda i=i, h=h, q=q, kp=kp: tr_read(g, i, h, q, kp + 1, ("rb", kp + 1), kind))
        if kp == 7 and nxt:
            def fa():
                g.wait(vm=("a", 8), lg="sw")
                g.barrier(hname + "a")
            gaps[o.get("handa", 20) if not late else 36].append(fa)
            def fb():
                g.drain(vm=True, lg=True)
                g.barrier(hname + "b")
            gaps[o.get("handb", 50)].append(fb)
        if kp == 0 and o.get("prio", 1):
            gaps[o.get("prioat", 13)].append(lambda: g("s_setprio 2"))
        m = 0
        for jp in range(4):
            for (j, i) in chain_order(jp):
                for h in range(2):
                    mfma(g, ACC(i, j), wreg(i, h, kp, kind), xreg(j, h), kp == 0 and h == 0)
                    for f in gaps[m]:
                        f()
                    if (kp, m) in extra:
                        extra[(kp, m)]()
                    m += 1


def lane(g, v):
    g(f"v_mbcnt_lo_u32_b32 v{v}, -1, 0")
    g(f"v_mbcnt_hi_u32_b32 v{v}, -1, v{v}")


class Mixer:
    def __init__(self, g):
        self.g, self.q, self.every, self.n = g, [], 2, 0
        self.q2, self.n2 = [], 0
        self.q3, self.n3 = [], 0

    def __call__(self, s):
        self.g(s)
        self.n += 1
        self.n3 += 1
        if self.q3 and self.n3 % self.g.opt.get("wev", 12) == 4:
            self.q3.pop(0)()
        if self.q2:
            self.n2 += 1
            if self.n2 >= self.g.opt.get("wdelay", 8):
                self.q2.pop(0)(); self.n2 = 0
        if self.q and self.n % self.every == 0:
            f = self.q.pop(0)
            if f: f()

    def flush(self):
        while self.q2:
            self.q2.pop(0)()
        self.n2 = 0
        while self.q:
            f = self.q.pop(0)
            if f: f()


def glu(e, pairs):
    if e.g.opt.get("noE"): return
    for a, b in pairs: e(f"v_mul_f32 v{b}, s{sC}, v{b}")
    for a, b in pairs: e(f"v_exp_f32 v{b}, v{b}")
    for a, b in pairs: e(f"v_fma_f32 v{b}, v{b}, s{sCi}, s{sCi}")
    for a, b in pairs: e(f"v_rcp_f32 v{b}, v{b}")
    for a, b in pairs: e(f"v_mul_f32 v{a}, v{a}, v{b}")


HFL = ["sc0 sc1"]
def halo_loads(ph):
    return [f"buffer_load_dwordx2 {R(PK(ct, 8), 2)}, v{vG8}, s[{sWS}:{sWS+3}], s{sW128} offen offset:{ph*512 + ct*32} {HFL[0]}" for ct in range(2)]


def halo_check(g, ph):
    lab = f"L_poll{ph}"
    g(f"s_mov_b32 s{sT2}, {g.opt.get('spin', 400000)}")
    g.wait(regs=rs(PK(0, 8), 2) + rs(PK(1, 8), 2))
    g(f"{lab}:")
    g(f"v_max3_u32 v{VTMP}, v{PK(0, 8)}, v{PK(0, 8)+1}, v{PK(1, 8)}")
    g(f"v_max_u32 v{VTMP}, v{VTMP}, v{PK(1, 8)+1}")
    g(f"v_cmp_eq_u32 vcc, -1, v{VTMP}")
    g(f"s_sub_u32 s{sT2}, s{sT2}, 1")
    g(f"s_cbranch_scc1 {lab}_ok")
    g(f"s_cbranch_vccz {lab}_ok")
    for t in halo_loads(ph):
        g(t)
    g("s_waitcnt vmcnt(0)")
    g(f"s_branch {lab}")
    g(f"{lab}_ok:")


def conv_mfmas(j):
    out = []
    for ct in range(2):
        y = ACC(ct, j)
        out.append(f"v_mfma_f32_16x16x32_bf16 {R(y)}, {R(AF(ct, 0))}, {R(PK(ct, j-2))}, {R(y)}")
        out.append(f"v_mfma_f32_16x16x32_bf16 {R(y)}, {R(AF(ct, 1))}, {R(PK(ct, j+1))}, {R(y)}")
    return out


def e_phase(g, ph, dst, hand=None, after_tile=None, glu_tile=None, silu_tile=None, warm=()):
    o = g.opt
    halo = o.get("halo", 1)
    noE = o.get("noE")
    e = Mixer(g)
    prio = 0
    g("s_setprio 0")
    g("s_nop 6")
    for ct in range(2):
        for d in range(5):
            r = CW(ct) + 2 if d == 2 else AF(ct, d // 3) + 2 * (d % 3)
            so, off = (sW64, d * 1024 + ct * 32 + ph * 256) if d < 4 else (sW64b, ct * 32 + ph * 256)
            e.q.append(lambda r=r, so=so, off=off: g.vmem(
                f"buffer_load_dwordx2 {R(r, 2)}, v{vG8}, s[{sDW}:{sDW+3}], s{so} offen offset:{off}", rs(r, 2)))
    q0 = e.q; e.q = []
    e.q3 = list(warm)
    e.every = 8
    for n_, j in enumerate((3, 0, 1, 2, 4, 5, 6, 7)):
        glu(e, [(ACC(ct, j) + r, ACC(2 + ct, j) + r) for ct in range(2) for r in range(4)])
        if n_ == 0:
            if halo:
                for n in range(4):
                    a = ACC(n // 2, 3) + 2 * (n % 2)
                    e(f"v_cvt_pk_bf16_f32 v{VEXP+n}, v{a}, v{a+1}")
                for n in range(4):
                    e(f"v_min_u32 v{VEXP+n}, -2, v{VEXP+n}")
                for ct in range(2):
                    g.vmem(f"buffer_store_dwordx2 {R(VEXP+2*ct, 2)}, v{vEX}, s[{sWE}:{sWE+3}], s{sW128} offen offset:{ph*512 + ct*32} {HFL[0]}")
            e.q = q0
        if glu_tile:
            glu_tile(e, n_)
    e.flush()
    el = [(ct, r) for ct in range(2) for r in range(4)]
    if halo and o.get("ti", 1) < 0:
        for ct, t in enumerate(halo_loads(ph)):
            g.vmem(t, rs(PK(ct, 8), 2))
    if not noE:
        for j in (6, 7, 1, 0, 2, 3, 4, 5):
            for ct in range(2):
                for d in range(2):
                    a = ACC(ct, j) + 2 * d
                    e(f"v_cvt_pk_bf16_f32 v{PK(ct, j)+d}, v{a}, v{a+1}")
        for p, src, sh in ((-2, 6, "shr"), (-1, 7, "shr"), (9, 1, "shl")):
            for ct in range(2):
                for d in range(2):
                    e(f"v_mov_b32_dpp v{PK(ct, p)+d}, v{PK(ct, src)+d} row_{sh}:1 row_mask:0xf bank_mask:0xf bound_ctrl:1")
        g.wait(regs=rs(160, 8) + rs(224, 16))
        for ct in range(2):
            b = CW(ct)
            e(f"v_lshlrev_b32 v{b}, 16, v{b+2}")
            e(f"v_and_b32 v{b+1}, 0xffff0000, v{b+2}")
            e(f"v_lshlrev_b32 v{b+2}, 16, v{b+3}")
            e(f"v_and_b32 v{b+3}, 0xffff0000, v{b+3}")
        for n in range(16):
            e(f"v_and_b32 v{224+n}, v{vM0 + n % 2}, v{224+n}")
        def cmul(j): return [f"v_mul_f32 v{ACC(ct, j)+r}, v{ACC(ct, j)+r}, v{CW(ct)+r}" for ct, r in el]
        for t in cmul(0) + cmul(1): e(t)
        g(f"s_setprio {o.get('cprio', 3)}")
        for j in range(6):
            fill = cmul(j + 2)
            for n, t in enumerate(conv_mfmas(j)):
                g(t); e(fill[2 * n]); e(fill[2 * n + 1])
        g("s_setprio 0")
    while e.q3:
        e.q3.pop(0)()
    ta, tb = o.get(f"ta{ph}", o.get("ta", 8)), o.get(f"tb{ph}", o.get("tb", 8))
    ti, tc = o.get("ti", 1), o.get("tc", 5)
    for j in range(9):
        if silu_tile:
            silu_tile(e, j)
        if j == o.get("tw", 3):
            g("s_waitcnt lgkmcnt(0)"); g.lg = []
        if j == ti:
            if halo:
                for ct, t in enumerate(halo_loads(ph)):
                    g.vmem(t, rs(PK(ct, 8), 2))
        if hand and j == ta:
            g.barrier(hand[0] + "a")
            e.q += start_a(g, hand[1]) + start_x(g, hand[1]); e.every = 2; e.n = 0
        if hand and j == tb:
            e.flush()
            g.barrier(hand[0] + "b")
            prio = 1
            g("s_setprio 1")
            e.q += start_b(g, hand[1])
        if j == 8:
            break
        ys = [ACC(ct, j) + r for ct, r in el]
        mm = []
        if j == tc and not noE:
            if halo:
                halo_check(g, ph)
            for ct in range(2):
                for d in range(2):
                    e(f"v_mov_b32_dpp v{PK(ct, 8)+d}, v{PK(ct, 0)+d} row_shl:1 row_mask:0xf bank_mask:0xf" + ("" if halo else " bound_ctrl:1"))
            c6, c7 = conv_mfmas(6), conv_mfmas(7)
            mm = c6 + c7
            g(f"s_setprio {o.get('cprio', 3)}")
        if not noE:
            for n, y in enumerate(ys):
                if mm: g(mm[n])
                e(f"v_exp_f32 v{VTMP+n}, v{y}")
            if mm: g(f"s_setprio {prio}")
            for n, y in enumerate(ys): e(f"v_fma_f32 v{VTMP+n}, v{VTMP+n}, s{sC}, s{sC}")
            for n, y in enumerate(ys): e(f"v_rcp_f32 v{VTMP+n}, v{VTMP+n}")
            for n, y in enumerate(ys): e(f"v_mul_f32 v{y}, v{y}, v{VTMP+n}")
        for n in range(4): e(f"v_cvt_pk_bf16_f32 v{dst+4*j+n}, v{ys[2*n]}, v{ys[2*n+1]}")
        if after_tile:
            after_tile(e, j)
    e.flush()


def out_phase(g, sbase, fl, pace=None):
    vWa, vRa, vG0, vG1, vG2 = 240, 244, 245, 246, 247
    lane(g, vT)
    g(f"v_and_b32 v{vT+1}, 15, v{vT}")
    g(f"v_lshrrev_b32 v{vT+2}, 5, v{vT}")
    g(f"v_and_b32 v{vT+3}, 7, v{vT}")
    g(f"v_xor_b32 v{vT+2}, v{vT+2}, v{vT+3}")
    g(f"v_lshl_add_u32 v{vT+4}, v{vT+1}, 7, s{sbase}")
    g(f"v_lshl_add_u32 v{vT+4}, v{vT+2}, 4, v{vT+4}")
    g(f"v_bfe_u32 v{vT+2}, v{vT}, 4, 1")
    g(f"v_lshl_add_u32 v{vWa}, v{vT+2}, 3, v{vT+4}")
    for i in range(1, 4):
        g(f"v_xor_b32 v{vWa+i}, {32*i}, v{vWa}")
    g(f"v_lshrrev_b32 v{vT+1}, 3, v{vT}")
    g(f"v_xor_b32 v{vT+2}, v{vT+1}, v{vT+3}")
    g(f"v_lshl_add_u32 v{vT+4}, v{vT+1}, 7, s{sbase}")
    g(f"v_lshl_add_u32 v{vRa}, v{vT+2}, 4, v{vT+4}")
    g(f"s_lshl_b32 s{sT1}, s{sWv}, 7")
    g(f"v_lshl_add_u32 v{vG0}, v{vT+1}, 13, s{sT1}")
    g(f"v_lshl_add_u32 v{vG0}, v{vT+3}, 4, v{vG0}")
    g(f"v_cmp_eq_u32 vcc, 0, v{vT+1}")
    g(f"v_mov_b32 v{vG2}, {OOB}")
    g(f"v_add_u32 v{vG1}, 0x10000, v{vG0}")
    g(f"v_cndmask_b32 v{vG2}, v{vG0}, v{vG2}, vcc")
    g(f"s_movk_i32 s{sT2}, 4096")
    def P(j): return 128 + 8 * (j % 2)
    def Q(j): return 160 + 8 * (j % 4)
    def put(j):
        for i in range(4):
            a = ACC(i, j)
            g(f"v_cvt_pk_bf16_f32 v{P(j)+2*i}, v{a}, v{a+1}")
            g(f"v_cvt_pk_bf16_f32 v{P(j)+2*i+1}, v{a+2}, v{a+3}")
        for i in range(4):
            g.ds(f"ds_write_b64 v{vWa+i}, {R(P(j)+2*i, 2)} offset:{(j % 2)*2048}")
        for hh in range(2):
            g.ds(f"ds_read_b128 {R(Q(j)+4*hh)}, v{vRa} offset:{(j % 2)*2048 + hh*1024}", rs(Q(j) + 4 * hh))
    def store(j):
        for hh in range(2):
            g.wait(regs=rs(Q(j) + 4 * hh))
            va = vG1 if hh else (vG2 if j < 2 else vG0)
            so = "0" if j < 4 else f"s{sT2}"
            g.vmem(f"buffer_store_dwordx4 {R(Q(j)+4*hh)}, v{va}, s[{sO}:{sO+3}], {so} offen offset:{(j % 4)*1024} {fl}".rstrip())
    mode = g.opt.get("noout", 0) if pace else 0
    if pace: pace(0)
    if mode < 2: put(0)
    for j in range(8):
        if j + 1 < 8 and mode < 2:
            put(j + 1)
        if not mode: store(j)
        if pace and j < 7: pace(j + 1)


vG0, vG1, vG2 = 244, 245, 246


def outv_addr(g):
    t = 144
    lane(g, t)
    g(f"s_lshl_b32 s{sT1}, s{sWv}, 7")
    g(f"v_bfe_u32 v{t+1}, v{t}, 1, 3")
    g(f"v_lshl_add_u32 v{vG0}, v{t+1}, 14, s{sT1}")
    g(f"v_lshrrev_b32 v{t+2}, 4, v{t}")
    g(f"v_lshl_add_u32 v{vG0}, v{t+2}, 5, v{vG0}")
    g(f"v_and_b32 v{t+2}, 1, v{t}")
    g(f"v_lshl_add_u32 v{vG0}, v{t+2}, 4, v{vG0}")
    g(f"v_cmp_eq_u32 vcc, 0, v{t+1}")
    g(f"v_mov_b32 v{vG2}, {OOB}")
    g(f"v_add_u32 v{vG1}, 8192, v{vG0}")
    g(f"v_cndmask_b32 v{vG2}, v{vG0}, v{vG2}, vcc")
    g(f"s_movk_i32 s{sT3}, 4096")
    g(f"s_mov_b32 vcc_lo, 0x55555555")
    g(f"s_mov_b32 vcc_hi, 0x55555555")


def outv_items(g, j, n, fl):
    P, S = 144 + 8 * (n % 2), 160 + 8 * (n % 4)
    it = []
    for d in range(2):
        for i in range(4):
            a = ACC(i, j) + 2 * d
            it.append(f"v_cvt_pk_bf16_f32 v{P+2*i+d}, v{a}, v{a+1}")
    for d in range(2):
        for i in (0, 2):
            it.append(f"v_permlane16_swap_b32 v{P+2*i+d}, v{P+2*i+2+d}")
    for d in range(2):
        for i in (0, 1):
            it.append(f"v_permlane32_swap_b32 v{P+2*i+d}, v{P+2*i+4+d}")
    dpp = "quad_perm:[1,0,3,2] row_mask:0xf bank_mask:0xf"
    so = "0" if j < 4 else f"s{sT3}"
    for hb in ((0, 1) if n % 2 == 0 else (1, 0)):
        for k in (0, 2, 1, 3):
            own, oth = (P + k, P + 4 + k) if hb == 0 else (P + 4 + k, P + k)
            it.append(f"v_cndmask_b32_dpp v{S+4*hb+k}, v{oth}, v{own}, vcc {dpp}")
        if hb == n % 2:
            it.append("s_not_b64 vcc, vcc")
        va = vG1 if hb else (vG2 if j < 2 else vG0)
        it.append(f"buffer_store_dwordx4 {R(S+4*hb)}, v{va}, s[{sO}:{sO+3}], {so} offen offset:{(j % 4)*1024} {fl}".rstrip())
    return [(lambda t=t: g.vmem(t) if t.startswith("buffer") else g(t)) for t in it]


def srd(g, d, lo, size):
    g(f"s_mov_b32 s{d}, s{lo}")
    g(f"s_mov_b32 s{d+1}, s{lo+1}")
    g(f"s_mov_b32 s{d+2}, {size}")
    g(f"s_mov_b32 s{d+3}, 0x20000")


def g_addr(g, off):
    g(f"s_add_u32 s{sT1}, s{sSb}, {off}")
    g(f"v_subrev_u32 v{vX0}, s{sT1}, v{vS}")
    g(f"v_add_u32 v{vX1}, 0x10000, v{vX0}")


def build(opt):
    g = Gen(opt)
    FAKE[0] = opt.get("fake128", 0)
    HFL[0] = opt.get("hfl", "sc0 sc1")
    halo = opt.get("halo", 1)
    xfl = opt.get("xflag", "nt")
    win = opt.get("win", 2)
    rbar = opt.get("rbar", 15)
    stamps = opt.get("stamps")
    kx, kw1, kdw, kw2, kout, kdbg, kws = KA, KA + 2, KA + 4, KA + 6, KA + 8, KA + 10, KA + 12
    g.l.append(HEAD.rstrip("\n"))
    g("; @launch grid=(256,1,1) block=(512,1,1) lds=163840")
    g('.amdgcn_target "amdgcn-amd-amdhsa--gfx950"')
    g(".text")
    g(f".globl {KN}_kernel")
    g(".p2align 8")
    g(f".type {KN}_kernel,@function")
    g(f"{KN}_kernel:")
    g("s_cmp_ge_u32 s2, 256")
    g("s_cbranch_scc1 L_end")
    g(f"s_load_dwordx8 s[{KA}:{KA+7}], s[0:1], 0")
    g(f"s_load_dwordx4 s[{KA+8}:{KA+11}], s[0:1], 32")
    g(f"s_load_dwordx2 s[{KA+12}:{KA+13}], s[0:1], 48")
    if stamps:
        g("s_memrealtime s[74:75]")
        g(f"s_mem{'real' if stamps == 3 else ''}time s[100:101]")
    g(f"v_readfirstlane_b32 s{sWv}, v0")
    g(f"s_mov_b32 s{sWg}, s2")
    if opt.get("remap", 1):
        g(f"s_and_b32 s3, s2, 7")
        g(f"s_lshr_b32 s2, s2, 3")
        g(f"s_lshl_b32 s3, s3, 5")
        g(f"s_add_u32 s2, s2, s3")
    g(f"s_mov_b32 s{sTile}, s2")
    g(f"s_and_b32 s{sTau}, s2, 127")
    g(f"s_mul_i32 s2, s2, 128000")
    g(f"s_lshr_b32 s{sWv}, s{sWv}, 6")
    g(f"s_and_b32 s{sW}, s{sWv}, 3")
    g("v_and_b32 v0, 63, v0")
    g(f"s_cmp_lt_u32 s{sWv}, 4")
    g("s_cbranch_scc1 L_startA")

    P = [Stream("P", ph) for ph in range(4)]
    GA, GB = Stream("G", 0), Stream("G", 1)

    g(f"v_lshrrev_b32 v12, 3, v0")
    g(f"v_and_b32 v13, 7, v0")
    g(f"v_lshrrev_b32 v14, 4, v0")
    g(f"v_xor_b32 v14, v14, v13")
    g(f"s_lshl_b32 s{sT3}, s{sW}, 11")
    g(f"v_lshl_add_u32 v14, v14, 4, s{sT3}")
    g(f"v_lshl_add_u32 v16, v12, 13, v14")
    g(f"v_xor_b32 v17, 0x10040, v16")
    g(f"v_add_u32 v19, 1024, v17")
    g(f"s_cmp_eq_u32 s{sTau}, 0")
    g(f"s_cselect_b32 s{sT3}, 1024, 0")
    g(f"v_cmp_gt_u32 vcc, s{sT3}, v16")
    g(f"v_mov_b32 v15, {OOB}")
    g(f"s_cmp_eq_u32 s{sTau}, 127")
    g(f"v_cndmask_b32 v16, v16, v15, vcc")
    g(f"s_mov_b32 s{sX+3}, 0x20000")
    g(f"s_cselect_b32 s{sX+2}, {127*1024}, s{sX+3}")
    g(f"v_add_u32 v18, 1024, v16")
    g(f"s_lshl_b32 s{sT3}, s{sW}, 12")
    g("s_waitcnt lgkmcnt(0)")
    g(f"s_add_u32 s{sX}, s{kx}, s2")
    g(f"s_addc_u32 s{sX+1}, s{kx+1}, 0")
    g(f"s_sub_u32 s{sX}, s{sX}, 2048")
    g(f"s_subb_u32 s{sX+1}, s{sX+1}, 0")
    if opt.get("hd") == 1: g.stamp(8)

    def d1_addr():
        g(f"v_lshrrev_b32 v1, 5, v0")
        g(f"v_lshlrev_b32 v1, 1, v1")
        g(f"v_and_b32 v2, 3, v0")
        g(f"v_xor_b32 v1, v1, v2")
        g(f"s_lshl_b32 s{sW64}, s{sW}, 6")
        g(f"v_lshl_add_u32 v1, v1, 4, s{sW64}")
        g(f"v_lshrrev_b32 v3, 2, v0")
        g(f"v_lshl_add_u32 v{vD1}, v3, 11, v1")
        if opt.get("fake128"):
            g(f"v_lshrrev_b32 v3, 3, v0\nv_and_b32 v1, 7, v0\nv_lshlrev_b32 v1, 4, v1\nv_lshl_add_u32 v1, v3, 11, v1")
            g(f"s_lshr_b32 s{sT0}, s{sW}, 1\ns_lshl_b32 s{sT0}, s{sT0}, 7\ns_and_b32 s{sT1}, s{sW}, 1\ns_lshl_b32 s{sT1}, s{sT1}, 16\ns_add_u32 s{sT0}, s{sT0}, s{sT1}\nv_add_u32 v{vD1}, s{sT0}, v1")
        g(f"s_lshl_b32 s{sRing}, s{sW}, 13")
        g(f"s_add_u32 s{sRing}, s{sRing}, 131072")
        g(f"s_add_u32 s{sRing+1}, s{sRing}, 4096")
        for f in set_kconst(g, "P"): f()

    def common(role):
        srd(g, sDW, kdw, 5120)
        srd(g, sW2, kw2, 524288)
        g(f"s_add_u32 s{sO}, s{kout}, s2")
        g(f"s_addc_u32 s{sO+1}, s{kout+1}, 0")
        g(f"s_sub_u32 s{sO}, s{sO}, 2048")
        g(f"s_subb_u32 s{sO+1}, s{sO+1}, 0")
        g(f"s_mov_b32 s{sO+2}, {127*1024}")
        g(f"s_mov_b32 s{sO+3}, 0x20000")
        srd(g, sDBG, kdbg, 256)
        g(f"s_lshl_b32 s{sT0}, s{sTile}, 11")
        g(f"s_add_u32 s{sWS}, s{kws}, s{sT0}")
        g(f"s_addc_u32 s{sWS+1}, s{kws+1}, 0")
        g(f"s_sub_u32 s{sWE}, s{sWS}, 2048")
        g(f"s_subb_u32 s{sWE+1}, s{sWS+1}, 0")
        g(f"s_cmp_eq_u32 s{sTau}, 127")
        g(f"s_cselect_b32 s{sWS+2}, 0, 2048")
        g(f"s_cmp_eq_u32 s{sTau}, 0")
        g(f"s_cselect_b32 s{sWE+2}, 0, 2048")
        g(f"s_mov_b32 s{sWS+3}, 0x20000")
        g(f"s_mov_b32 s{sWE+3}, 0x20000")
        if stamps:
            g(f"s_mov_b64 s[40:41], s[{kws}:{kws+1}]")
        g(f"s_mov_b32 s{sC}, 0xbfb8aa3b")
        g(f"s_mov_b32 s{sCi}, 0xbf317218")
        g(f"s_add_u32 s{sW64b}, s{sW64}, 4096")
        g(f"s_lshl_b32 s{sW128}, s{sW}, 7")
        g(f"v_lshrrev_b32 v3, 4, v0")
        g(f"v_lshlrev_b32 v4, 1, v3")
        g(f"v_and_b32 v5, 7, v0")
        g(f"v_xor_b32 v5, v4, v5")
        g(f"v_lshl_add_u32 v5, v5, 4, s{sW128}")
        g(f"v_lshrrev_b32 v24, 3, v0")
        g(f"v_lshl_add_u32 v{vD2}, v24, 10, v5")
        g(f"v_lshlrev_b32 v{vG8}, 3, v3")
        g(f"v_and_b32 v5, 1, v0")
        g(f"v_lshlrev_b32 v5, 4, v5")
        g(f"v_mov_b32 v24, 0xffff")
        g(f"v_lshlrev_b32 v5, v5, v24")
        g(f"v_bfe_u32 v24, v0, 1, 3")
        g(f"v_cmp_eq_u32 vcc, v24, v4")
        g(f"v_add_u32 v4, 1, v4")
        g(f"v_and_b32 v25, 15, v0")
        g(f"v_cndmask_b32 v{vM0}, 0, v5, vcc")
        g(f"v_cmp_eq_u32 vcc, v24, v4")
        g(f"v_lshl_add_u32 v{vEX}, v25, 24, v{vG8}")
        g(f"s_lshr_b32 s{sT0}, s{sW}, 1")
        g(f"v_cndmask_b32 v{vM1}, 0, v5, vcc")
        g(f"s_lshl_b32 s{sT0}, s{sT0}, 14")
        g(f"s_and_b32 s{sT1}, s{sW}, 1")
        g(f"s_lshl_b32 s{sT1}, s{sT1}, 10")
        g(f"s_add_u32 s{sSb}, s{sT0}, s{sT1}")
        g(f"s_add_u32 s{sSb}, s{sSb}, {SBLK[2 if role == 0 else 1] * 32768}")
        g(f"v_lshl_add_u32 v{vS}, v0, 4, s{sSb}")
        g(f"v_lshrrev_b32 v5, 2, v0")
        g(f"v_lshl_add_u32 v{vWG}, v5, 7, s{sRing}")
        g(f"v_bfe_u32 v5, v0, 3, 2")
        g(f"v_lshl_add_u32 v{vWG}, v5, 5, v{vWG}")
        g(f"v_lshl_add_u32 v{vWG}, v2, 3, v{vWG}")
        for i in range(1, 4):
            g(f"v_xor_b32 v{vWG+i}, {32*i}, v{vWG}")
        g(f"v_bfe_u32 v4, v0, 4, 1")
        g(f"v_bfe_u32 v5, v0, 2, 2")
        g(f"v_lshl_add_u32 v{vW0}, v3, 9, s{sRing}")
        g(f"v_lshl_add_u32 v{vW0}, v5, 6, v{vW0}")
        g(f"v_lshl_add_u32 v{vW0}, v4, 5, v{vW0}")
        g(f"v_lshl_add_u32 v{vW0}, v2, 3, v{vW0}")
        g(f"v_xor_b32 v{vW1}, 32, v{vW0}")
        g(f"v_and_b32 v4, 15, v0")
        g(f"v_lshrrev_b32 v5, 1, v4")
        g(f"v_xor_b32 v5, v5, v3")
        g(f"v_lshlrev_b32 v5, 4, v5")
        g(f"v_lshl_add_u32 v{vX0}, v4, 7, v5")
        g(f"v_xor_b32 v{vX1}, 64, v{vX0}")
        if stamps:
            g("s_mov_b64 s[76:77], s[100:101]")


    sWB = 0
    sub = (0, 64)
    def wbase(key):
        if key < 4:
            g(f"s_lshl_b32 s{sT2}, s{sSl}, 13")
            g(f"s_add_u32 s{sT2}, s{sT2}, {key * 256}")
            ptr = sW1
        else:
            g(f"s_lshl_b32 s{sT2}, s{sSl}, 12")
            ptr = sW2
        g(f"s_add_u32 s{sWB}, s{ptr}, s{sT2}")
        g(f"s_addc_u32 s{sWB+1}, s{ptr+1}, 0")
    def wlines(key):
        if key < 4:
            return [(key, n * 1024 + e * 128 + u) for n in range(8) for e in range(2) for u in sub]
        return [(key, r * 1024 + (key - 4) * 512 + n * 64) for r in range(4) for n in range(8)]
    def swarm(lines):
        cur = None
        for n, (key, of) in enumerate(lines):
            if key != cur:
                wbase(key); cur = key
            if n % 14 == 0:
                g(f"s_waitcnt lgkmcnt({15 - min(14, len(lines) - n)})")
            g(f"s_load_dword s3, s[{sWB}:{sWB+1}], {of}")
    later = wlines(1)
    nb = 6
    def e_warm(key):
        if opt.get("warm", 3) != 3:
            return []
        def ld(n, of):
            if n >= 14:
                g("s_waitcnt lgkmcnt(13)")
            g(f"s_load_dword s3, s[{sWB}:{sWB+1}], {of}")
        return [lambda: wbase(key)] + [(lambda n=n, of=of: ld(n, of)) for n, (_, of) in enumerate(wlines(key))]

    def x_issue(kp):
        g(f"s_movk_i32 s{sT0}, {kp*128}")
        for jj in range(2):
            for hh in range(2):
                g(f"s_add_u32 m0, s{sT3}, {kp*16384 + jj*2048 + hh*1024}")
                g("s_nop 0")
                g.vmem(f"buffer_load_dwordx4 v{16+2*jj+hh}, s[{sX}:{sX+3}], s{sT0} offen {xfl} lds".replace("  ", " "), tag=("x", kp))
    x_issue(0)
    if opt.get("hd") == 2:
        g("s_waitcnt vmcnt(0)"); g.stamp(8)
    srd(g, sW1, kw1, 1048576)
    g(f"s_getpc_b64 s[{sCode}:{sCode+1}]")
    g("L_pc:")
    g(f"s_mov_b32 s{sCode+2}, L_code_end-L_pc")
    g(f"s_mov_b32 s{sCode+3}, 0x20000")
    g(f"s_lshr_b32 s{sT1}, s{sWg}, 3")
    g(f"s_lshl2_add_u32 s{sSl}, s{sT1}, s{sW}")
    g(f"v_lshrrev_b32 v6, 1, v0")
    g(f"v_lshlrev_b32 v6, 10, v6")
    g(f"v_and_b32 v7, 1, v0")
    g(f"v_lshl_add_u32 v6, v7, 7, v6")
    g(f"v_lshrrev_b32 v7, 4, v0")
    g(f"v_lshl_add_u32 v6, v7, 28, v6")
    def warm_w1(ph, dst):
        g(f"s_lshl_b32 s{sT2}, s{sSl}, 13")
        if ph:
            g(f"s_add_u32 s{sT2}, s{sT2}, {ph * 256}")
        g.vmem(f"buffer_load_dword v{dst}, v6, s[{sW1}:{sW1+3}], s{sT2} offen {opt.get('wfl', '')}", [dst])
    if opt.get("warm0", 1) == 1:
        warm_w1(0, 8)
    g(f"s_lshl_b32 s{sT2}, s{sSl}, 7")
    g(f"v_lshlrev_b32 v7, 14, v0")
    g.vmem(f"buffer_load_dword v9, v7, s[{sCode}:{sCode+3}], s{sT2} offen", [9])
    if opt.get("warm0", 1) == 2:
        swarm(wlines(0)[12 * len(sub):])
    if opt.get("hd") in (2, 3):
        g("s_waitcnt vmcnt(0)"); g.stamp(9)
    d1_addr()
    P[0].advance(g, 0)
    if opt.get("hd") == 1: g.stamp(9)
    if opt.get("x1first"):
        x_issue(1)
    for ab in range(2):
        set_m0(g, ab)
        g("s_nop 0")
        for m in range(4):
            P[0].dma(g, ab, m, ("x", 0), opt.get("w0fl", ""))
    for kp in range(2 if opt.get("x1first") else 1, win):
        x_issue(kp)
    g.wait(vm=("x", 0))
    g.barrier("x0")
    g("s_branch L_roleB")
    vmB = list(g.vm); g.vm = []; g.bars = []

    g("L_startA:")
    d1_addr()
    g("s_waitcnt lgkmcnt(0)")
    if opt.get("tlb", 0):
        g(f"s_add_u32 s{sO}, s{kout}, s2")
        g(f"s_addc_u32 s{sO+1}, s{kout+1}, 0")
        for n, (k, off) in enumerate(((kw1, 0), (kdw, 0), (kw2, 0), (kws, 0x80000), (sO, 0))):
            g(f"s_load_dword s{90+n}, s[{k}:{k+1}], {off}")
    srd(g, sW1, kw1, 1048576)
    g(f"s_lshr_b32 s{sT1}, s{sWg}, 3")
    g(f"s_lshl2_add_u32 s{sSl}, s{sT1}, s{sW}")
    if opt.get("warm0", 1) == 2:
        swarm(wlines(0)[:12 * len(sub)])
    common(0)
    g("s_waitcnt lgkmcnt(0)")
    g.stamp(8)
    g.barrier("x0")
    g.stamp(9)
    it = start_a(g, P[0])
    run(it[:8] + start_x(g, P[0]) + start_b(g, P[0])[:8])
    run(it[8:10]); g("s_nop 0"); run(it[10:] + start_b(g, P[0])[8:])
    ex = {(kp, rbar): (lambda kp=kp: g.barrier(f"r{kp}")) for kp in range(8 - win)} if rbar else {}
    g.stamp(1)
    mfma_phase(g, P[0], P[1], "h0", xbar=lambda kp: g.barrier(f"x{kp}"), first=True, extra=ex)
    g.stamp(2)
    e_phase(g, 0, VH, hand=("h1", P[2]), warm=e_warm(2))
    g.stamp(3)
    mfma_phase(g, P[2], P[3], "h2")
    g.stamp(4)

    def w64(reg, off, k):
        return lambda: g.ds(f"ds_write_b64 v{vS}, {R(reg + 2*k, 2)} offset:{off + 8*k}", tag="sw")
    def swr(e, reg, off, wide):
        if wide:
            e.q2.append(lambda: g.ds(f"ds_write_b128 v{vS}, {R(reg)} offset:{off}", tag="sw"))
        else:
            e.q2 += [w64(reg, off, 0), w64(reg, off, 1)]
    def mwr(kp0, off):
        if opt.get("mw", 128) == 128:
            fr = tuple(int(v) for v in str(opt.get('fr', '9 12 38 41')).split())
            return {(kp0 + j // 4, fr[j % 4]): (lambda j=j: g.ds(f"ds_write_b128 v{vS}, {R(VH+4*j)} offset:{off + j*2048}", tag="sw")) for j in range(8)}
        fr = (6, 9, 12, 38, 41, 44, 8, 42)
        return {(kp0 + n // 8, fr[n % 8]): w64(VH + 4 * (n // 2), off + (n // 2) * 2048, n % 2) for n in range(16)}
    def convA(e, j):
        if j != 0:
            return
        g.barrier("M3")
        g_addr(g, 0)
        for f in set_kconst(g, "G"): f()
    e_phase(g, 2, 0, hand=("h3", GA), warm=e_warm(4), silu_tile=convA, after_tile=lambda e, j: swr(e, 4 * j, j * 2048, opt.get("ew3", 1)))
    g.stamp(5)
    def xbarA(kp):
        if kp == 2:
            g.wait(lg="sw")
            g.barrier("V")
        if kp == 6:
            g.barrier("Y")
    g.wait(lg="sw")
    ex = mwr(0, 32768)
    mfma_phase(g, GA, GB, "h4", xbar=xbarA, extra=ex)
    g.stamp(6)
    g("s_setprio 0")
    g(f"s_lshl_b32 s{sT3}, s{sW}, 12")
    npace = opt.get("pace", 1)
    outA, outB = opt.get("outA", "v"), opt.get("outB", "vi")
    if outA == "v":
        npace = opt.get("pace", 7)
    pace_j = [n * 8 // npace for n in range(npace)] if outA != "v" else [(n + 1) * 8 // (npace + 1) for n in range(npace)]
    if outA == "v":
        outv_addr(g)
        for j in range(8):
            if j in pace_j: g.barrier(f"Z{pace_j.index(j)}")
            run(outv_items(g, j, j, opt.get("stA", "nt")))
    else:
        out_phase(g, sT3, opt.get("stA", "nt"), pace=lambda j: g.barrier(f"Z{pace_j.index(j)}") if j in pace_j else None)
    g.stamp(7)
    barsA = g.bars
    g("s_branch L_fin")

    g.lg, g.vm, g.bars = [], vmB, ["x0"]
    g("L_roleB:")
    if rbar:
        g.barrier("r0")
    x_issue(win)
    common(1)
    g.stamp(1)
    g(f"s_lshl_b32 s{sT2}, s{sSl}, 7")
    g.vmem(f"buffer_load_dword v10, v7, s[{sDW}:{sDW+3}], s{sT2} offen", [10])
    if opt.get("warm", 3) == 3:
        swarm(later[:nb])
    g(f"s_and_b32 s{sGrp}, s{sTile}, 0xfc")
    if halo:
        g(f"s_lshl_b32 s{sT1}, s{sW}, 9")
        g(f"v_lshlrev_b32 v21, 3, v0")
        g(f"v_mov_b32 v22, -1")
        g(f"v_mov_b32 v23, -1")
        g.vmem(f"buffer_store_dwordx2 v[22:23], v21, s[{sWS}:{sWS+3}], s{sT1} offen sc0 sc1", tag="clr")
    for kp in range(1, 8):
        g.wait(vm=("x", kp))
        g.barrier(f"x{kp}")
        if kp in (3, 7) and not opt.get("hd"):
            g.stamp({0: 1, 3: 8, 7: 9}[kp])
        if kp == win + 1 and halo:
            assert not any(t == "clr" for _, t in g.vm)
            g(f"s_cmp_lg_u32 s{sW}, 0")
            g("s_cbranch_scc1 L_noann")
            g(f"s_and_b32 s{sT1}, s{sTile}, 3")
            g(f"s_lshl_b32 s{sT1}, 1, s{sT1}")
            g(f"s_atomic_or s{sT1}, s[{sDBG}:{sDBG+1}], s{sGrp}")
            g("L_noann:")
        if kp + win < 8:
            if rbar:
                g.barrier(f"r{kp}")
            x_issue(kp + win)
            wm = opt.get("warm", 3)
            if wm == 3:
                swarm(later[kp * nb:(kp + 1) * nb])
            if wm == 1 and kp in (1, 2, 3):
                warm_w1(kp, 23 + kp)
            if wm in (1, 2) and kp == 4:
                g(f"s_lshl_b32 s{sT2}, s{sSl}, 12")
                g(f"v_lshlrev_b32 v7, 7, v0")
                g(f"v_lshrrev_b32 v6, 5, v0")
                g(f"v_lshl_add_u32 v7, v6, 28, v7")
                g.vmem(f"buffer_load_dword v20, v7, s[{sW2}:{sW2+3}], s{sT2} offen", [20])
        if kp == 6 and halo:
            g(f"s_sub_u32 s{sMask}, s{sTile}, 1")
            g(f"s_and_b32 s{sMask+1}, s{sMask}, 0xfc")
            g(f"s_and_b32 s{sMask}, s{sMask}, 3")
            g(f"v_mov_b32 v21, s{sMask+1}")
            g.vmem(f"buffer_load_dword v22, v21, s[{sDBG}:{sDBG+3}], 0 offen sc0 sc1", [22])
    g.drain(vm=True)
    if halo:
        g(f"s_mov_b32 s{sT2}, {opt.get('spin', 400000)}")
        g(f"s_cmp_eq_u32 s{sTau}, 0")
        g("s_cbranch_scc1 L_rdy_ok")
        g("L_rdy:")
        g(f"v_readfirstlane_b32 s{sT0}, v22")
        g(f"s_sub_u32 s{sT2}, s{sT2}, 1")
        g("s_cbranch_scc1 L_rdy_ok")
        g("s_nop 1")
        g(f"s_bitcmp1_b32 s{sT0}, s{sMask}")
        g("s_cbranch_scc1 L_rdy_ok")
        g(f"buffer_load_dword v22, v21, s[{sDBG}:{sDBG+3}], 0 offen sc0 sc1")
        g("s_waitcnt vmcnt(0)")
        g("s_branch L_rdy")
        g("L_rdy_ok:")
    g("s_waitcnt lgkmcnt(0)")
    def idle_start(name, own):
        run(start_x(g, own))
        g.barrier(name + "a")
        run(start_a(g, own))
        g.barrier(name + "b")
        g("s_setprio 1")
        run(start_b(g, own))
    idle_start("h0", P[1])
    g.stamp(2)
    mfma_phase(g, P[1], P[2], "h1")
    g.stamp(3)
    e_phase(g, 1, VH, hand=("h2", P[3]), warm=e_warm(3))
    g.stamp(4)
    m3k = opt.get("m3k", 4)
    ex = {(m3k, opt.get("m3g", 13)): lambda: g.barrier("M3")}
    ex.update(mwr(5, 0))
    mfma_phase(g, P[3], GA, "h3", extra=ex)
    g.stamp(5)
    def vB(e, j):
        if j == opt.get("vtile", 5):
            g.barrier("V")
            g(f"v_add_u32 v{vS}, {3 * 32768}, v{vS}")
    e_phase(g, 3, 0, warm=e_warm(5), glu_tile=vB, after_tile=lambda e, j: swr(e, 4 * j, j * 2048, opt.get("ew4", 1)))
    g_addr(g, 3 * 32768)
    g.drain(vm=True, lg=True)
    g.barrier("Y")
    if outB[0] == "v":
        outv_addr(g)
    idle_start("h4", GB)
    g.stamp(6)
    ex = {}
    for n in range(npace):
        if outA == "v":
            t = (n + 1) * opt.get("pstep", 48)
            free = (6, 8, 9, 10, 12, 13, 38, 40, 41, 42, 44, 45, 61)
            at = min(free, key=lambda f: abs(f - t % 64))
            ex[(t // 64, at)] = (lambda n=n: g.barrier(f"Z{n}"))
        else:
            def f(n=n):
                g.wait(regs=rs(xreg(6, 0), 16))
                g.barrier(f"Z{n}")
            ex[(n * opt.get("pacek", 6) // npace, 53)] = f
    order = (1, 0, 3, 2, 5, 4, 7, 6)
    pend = []
    if outB == "vi":
        per = opt.get("oper", 4)
        def f(m):
            for n, j in enumerate(order):
                if m == 16 * (j // 2) + (19 if j % 2 else 23):
                    pend.extend(outv_items(g, j, n, opt.get("stB", "nt")))
            for _ in range(per):
                if pend: pend.pop(0)()
        for m in range(19, 64):
            ex[(7, m)] = (lambda m=m: f(m))
    mfma_phase(g, GB, None, None, extra=ex)
    g.stamp(7)
    if outB[0] == "v":
        if len(pend) < 8:
            g("s_nop 7")
        run(pend)
        for n, j in enumerate(order):
            if outB == "v" or j >= 6:
                run(outv_items(g, j, n, opt.get("stB", "nt")))
    else:
        out_phase(g, sRing, opt.get("stB", "nt"))
    assert g.bars == barsA, (g.bars, barsA)
    g("L_fin:")
    if stamps:
        g("s_waitcnt vmcnt(0)")
        g("s_memrealtime s[98:99]")
        g(f"s_mem{'real' if stamps == 3 else ''}time s[100:101]")
        g(f"s_add_u32 s4, s40, {STAMP_OFF}\ns_addc_u32 s5, s41, 0\ns_mov_b32 s6, 0x100000\ns_mov_b32 s7, 0x20000")
        g(f"s_lshl_b32 s8, s{sWg}, 3\ns_add_u32 s8, s8, s{sWv}\ns_lshl_b32 s8, s8, 7")
        g("s_waitcnt lgkmcnt(0)")
        g("s_mov_b64 exec, 1")
        g("v_mov_b32 v4, 0")
        order = [74, 98, 76, 100] + [76 + 2 * n for n in range(1, 10)]
        for n, s in enumerate(order):
            g(f"v_mov_b32 v0, s{s}\nv_mov_b32 v1, s{s+1}")
            g(f"buffer_store_dwordx2 v[0:1], v4, s[4:7], s8 offen offset:{8*n}")
            g("s_nop 1")
    g("L_end:")
    g("s_endpgm")
    g("L_code_end:")
    g('.section .rodata,"a"')
    g(".p2align 6")
    g(f".amdhsa_kernel {KN}_kernel")
    g.l += ["  .amdhsa_next_free_vgpr 256", "  .amdhsa_next_free_sgpr 102", "  .amdhsa_accum_offset 256",
            "  .amdhsa_group_segment_fixed_size 0", "  .amdhsa_kernarg_size 56", "  .amdhsa_user_sgpr_count 2",
            "  .amdhsa_user_sgpr_kernarg_segment_ptr 1", "  .amdhsa_system_sgpr_workgroup_id_x 1",
            "  .amdhsa_float_denorm_mode_32 3"]
    g(".end_amdhsa_kernel")
    t = g.text()
    if stamps and opt.get("probe", 1):
        t = t.replace("; @launch grid=(256,1,1) block=(512,1,1) lds=163840",
                      f"; @launch kernel={KN}_kernel grid=(256,1,1) block=(512,1,1) lds=163840\n; @launch kernel=probe_kernel grid=(1,1,1) block=(64,1,1) lds=0")
        a = [".p2align 8", ".globl probe_kernel", ".type probe_kernel,@function", "probe_kernel:",
             "s_memrealtime s[8:9]", "s_load_dwordx2 s[4:5], s[0:1], 48", "s_waitcnt lgkmcnt(0)",
             f"s_add_u32 s4, s4, {STAMP_OFF}", "s_addc_u32 s5, s5, 0", "s_mov_b32 s6, 0x100000", "s_mov_b32 s7, 0x20000",
             "v_mov_b32 v2, s8", "v_mov_b32 v3, s9", "v_mov_b32 v1, 120", "buffer_store_dwordx2 v[2:3], v1, s[4:7], 0 offen", "s_endpgm"]
        t = t.replace('.section .rodata,"a"', "\n".join(a) + '\n.section .rodata,"a"')
        t += ".p2align 6\n.amdhsa_kernel probe_kernel\n  .amdhsa_next_free_vgpr 16\n  .amdhsa_next_free_sgpr 32\n  .amdhsa_accum_offset 16\n" \
             "  .amdhsa_group_segment_fixed_size 0\n  .amdhsa_kernarg_size 56\n  .amdhsa_user_sgpr_count 2\n" \
             "  .amdhsa_user_sgpr_kernarg_segment_ptr 1\n  .amdhsa_system_sgpr_workgroup_id_x 1\n.end_amdhsa_kernel\n"
    return t


def parse(args):
    opt = {}
    for a in args:
        k, v = a.split("=", 1)
        try:
            v = int(v)
        except ValueError:
            v = v.replace("+", " ")
        opt[k] = v
    return opt


if __name__ == "__main__":
    open(sys.argv[1], "w").write(build(parse(sys.argv[2:])))
```

```python
import sys

KN = "standalone__conformer_conv_module__speech"
STAMP_OFF = 255 * 1024 * 1024

HEAD = """; Kernarg layout for this problem (56 bytes, ptrs only, base s[0:1]):
;   offset   0: d_in[0] x  shape=(2, 16000, 512) dtype=bfloat16 strides=(16384000, 1024, 2) contiguous=True
;   offset   8: d_in[1] w_pw1  shape=(512, 1024) dtype=bfloat16 strides=(2048, 2) contiguous=True
;   offset  16: d_in[2] dw  shape=(5, 512) dtype=bfloat16 strides=(1024, 2) contiguous=True
;   offset  24: d_in[3] w_pw2  shape=(512, 512) dtype=bfloat16 strides=(1024, 2) contiguous=True
; Override launch geometry by editing the next line (default: block=256,
"""

def ACC(i, j): return 4 * (i * 8 + j)
VH = 128
VWX, VWY, VWZ = 160, 176, 192
VXR = 208
vDc, vW0, vW1, vD1 = 240, 242, 243, 244
def DW(i, h, p): return 160 + 32 * (p % 2) + 8 * i + 4 * h
def DX(n, h): return 224 + 8 * (n % 3) + 4 * h
vX0, vX1, vS = 248, 249, 250
vG8, vM0, vM1, vEX = 251, 252, 253, 254
def AF(ct, n): return 192 + 8 * ct + 4 * n
def CW(ct): return 208 + 4 * ct
def PK(ct, p): return 64 + 32 * ct + 2 * (p + 2)
VEXP = 216
VTMP = 88
sX, sW1, sW2, sO, sDW, sWS, sDBG, sWE = 4, 8, 12, 16, 20, 24, 28, 32
sW64, sW64b, sW128, sSb = 36, 37, 38, 39
sRing = 44
sT0, sT1, sT2, sT3 = 46, 47, 48, 49
sC, sCi = 50, 51
sWv, sW, sTile, sTau, sWg, sGrp = 52, 53, 54, 55, 56, 57
sWP = 60
sWq = 58
sK = 66
sSl = 96
sCode = 16
KA = 76
QORD = (1, 2, 0, 3)
WPOFF = 1 << 20

OOB = 0x7f000000
SCR = 7 * 16384


class Gen:
    def __init__(self, opt):
        self.l = []
        self.opt = opt
        self.lg = []
        self.vm = []
        self.bars = []

    def __call__(self, s=""):
        for line in s.split("\n"):
            self.l.append(line if line.endswith(":") or line.startswith(".") or line.startswith(";") else "    " + line)

    def text(self):
        return "\n".join(self.l) + "\n"

    def ds(self, text, regs=(), tag=None):
        if self.opt.get("nosw") and tag == "sw":
            return
        if len(self.lg) >= 15:
            self("s_waitcnt lgkmcnt(11)"); self.lg = self.lg[-11:]
        self(text); self.lg.append((set(regs), tag))

    def vmem(self, text, regs=(), tag=None):
        self(text); self.vm.append((set(regs), tag))

    def _idx(self, q, regs, tag):
        idx = -1
        for n, (r, t) in enumerate(q):
            if (regs and (r & set(regs))) or (tag is not None and t == tag):
                idx = n
        return idx

    def wait(self, regs=(), lg=None, vm=None):
        parts = []
        i = self._idx(self.vm, regs, vm)
        if i >= 0:
            n = min(len(self.vm) - 1 - i, 63)
            parts.append(f"vmcnt({n})"); self.vm = self.vm[len(self.vm) - n:] if n else []
        i = self._idx(self.lg, regs, lg)
        if i >= 0:
            n = min(len(self.lg) - 1 - i, 15)
            parts.append(f"lgkmcnt({n})"); self.lg = self.lg[len(self.lg) - n:] if n else []
        if parts:
            self("s_waitcnt " + " ".join(parts))

    def drain(self, vm=False, lg=False):
        parts = []
        if vm and self.vm:
            parts.append("vmcnt(0)"); self.vm = []
        if lg and self.lg:
            parts.append("lgkmcnt(0)"); self.lg = []
        if parts:
            self("s_waitcnt " + " ".join(parts))

    def barrier(self, name):
        self.point(name + "_")
        self(f"s_barrier"); self.bars.append(name)
        self.point(name)

    def point(self, name):
        pts = self.opt.get("pts")
        if pts and name in pts.split():
            n = pts.split().index(name) + 1
            self(f"s_memtime s[{76+2*n}:{77+2*n}]")

    def stamp(self, n):
        if self.opt.get("pts"):
            return self.point(f"s{n}")
        if self.opt.get("stamps") in (1, 3):
            self(f"s_mem{'real' if self.opt['stamps'] == 3 else ''}time s[{76+2*n}:{77+2*n}]")
            self("s_waitcnt lgkmcnt(0)")
            self.lg = []


def R(a, n=4): return f"v[{a}:{a+n-1}]"
def rs(a, n=4): return list(range(a, a + n))


def wreg(i, h, p, kind="P"):
    if i < 2:
        return (VWX if p % 2 == 0 else VWY) + 8 * i + 4 * h
    return VWZ + 8 * (i - 2) + 4 * h


def xreg(j, h): return VXR + 8 * (j % 4) + 4 * h


def kconst(kind, ab, m):
    return 16 * m * 2048 + ab * 1024 - m * 1024


def set_kconst(g, kind):
    return [lambda ab=ab, m=m: g(f"s_mov_b32 s{sK + 4*ab + m}, {kconst(kind, ab, m)}") for ab in range(2) for m in range(4)]


class Stream:
    def __init__(self, kind, arg):
        self.kind, self.arg = kind, arg

    def advance(self, g, kp, fresh=False):
        g(f"v_add_u32 v{vDc}, {kp * 131072 + self.arg * 256}, v{vD1}")

    def dma(self, g, ab, m, tag, fl=""):
        if g.opt.get("nodma"):
            return
        srd = sW1
        g.vmem(f"buffer_load_dwordx4 v{vDc}, s[{srd}:{srd+3}], s{sK + 4*ab + m} offen offset:{m*1024} {fl} lds", tag=tag)


def set_m0(g, ab):
    g(f"s_mov_b32 m0, s{sRing + ab}")


def tr_read(g, i, h, q, p, tag, kind="P"):
    d = wreg(i, h, p, kind) + 2 * q
    off, base = (i >> 1) * 4096 + h * 2048 + q * 256, vW0 + (i & 1)
    g.ds(f"ds_read_b64_tr_b16 {R(d, 2)}, v{base} offset:{off}", rs(d, 2), tag)


def part_reads(kind, ab):
    return [(i, h, q) for i in ((0, 1) if ab == 0 else (3, 2)) for h in range(2) for q in range(2)]


def x_read(g, kind, kp, j, h, d=None):
    if d is None:
        d = xreg(j, h)
    if kind == "P":
        off, base = (kp * 8 + j) * 2048 % 65536, vX0 + h
    else:
        off = (1 - (kp >> 1) % 2) * 32768 + (kp & 1) * 16384 + j * 2048 + h * 1024
        base = vX0 + (kp >> 2)
    g.ds(f"ds_read_b128 {R(d)}, v{base} offset:{off}", rs(d))


def chain_order(jp):
    j0, j1 = 2 * jp, 2 * jp + 1
    if jp % 2 == 0:
        return [(j0, 0), (j0, 1), (j1, 1), (j1, 0), (j1, 2), (j1, 3), (j0, 3), (j0, 2)]
    return [(j0, 2), (j0, 3), (j1, 3), (j1, 2), (j1, 0), (j1, 1), (j0, 1), (j0, 0)]


def mfma(g, acc, A, B, first):
    g.wait(regs=rs(A) + rs(B))
    c = "0" if first else R(acc)
    g(f"v_mfma_f32_16x16x32_bf16 {R(acc)}, {R(A)}, {R(B)}, {c}")


def start_a(g, own):
    it = [lambda i=i, h=h, q=q: tr_read(g, i, h, q, 0, ("ra", 0), own.kind) for i, h, q in part_reads(own.kind, 0)]
    it.append(lambda: own.advance(g, 1, fresh=True))
    it.append(lambda: set_m0(g, 0))
    it += [None] * g.opt.get("sgap", 3)
    it.append(lambda: g.wait(lg=("ra", 0)))
    for m in range(4):
        it.append(lambda m=m: own.dma(g, 0, m, ("a", 1)))
        it += [None] * (g.opt.get("sgap", 3) - 1)
    return it


def start_x(g, own):
    return [lambda j=j, h=h: x_read(g, own.kind, 0, j, h) for j in range(2) for h in range(2)]


def start_b(g, own):
    return [lambda i=i, h=h, q=q: tr_read(g, i, h, q, 0, ("rb", 0), own.kind) for i, h, q in part_reads(own.kind, 1)] + \
           [lambda: set_m0(g, 1)]


def run(items):
    for f in items:
        if f: f()


def mfma_phase(g, own, nxt, hname, xbar=None, first=False, extra=None):
    o = g.opt
    kind = own.kind
    extra = extra or {}

    def st(p):
        return (own, p) if p < 8 else ((nxt, 0) if (nxt and p == 8) else (None, 0))

    for kp in range(8):
        gaps = {m: [] for m in range(64)}
        late = (first and o.get("late0", 1))
        for jp in range(4):
            nkp, njp = (kp, jp + 1) if jp < 3 else (kp + 1, 0)
            if nkp > 7:
                continue
            slots = [16 * jp + n for n in ((0, 1, 2, 3) if (jp % 2 or (late and jp)) else (0, 1, 4, 5))]
            for n in range(4):
                j, h = 2 * njp + n // 2, n % 2
                def f(nkp=nkp, j=j, h=h, n=n, jp=jp):
                    if n == 0 and jp == 3 and xbar:
                        xbar(nkp)
                    x_read(g, kind, nkp, j, h)
                gaps[slots[n]].append(f)
            gaps[16 * jp + 15].append(lambda njp=njp: g.wait(regs=rs(xreg(2 * njp, 0), 16)))
        if kind == "P" and kp in (3, 7):
            k = "0x10000" if kp == 3 else "0xffff0000"
            gaps[40].append(lambda k=k: g(f"v_add_u32 v{vX0}, {k}, v{vX0}"))
            gaps[41].append(lambda k=k: g(f"v_add_u32 v{vX1}, {k}, v{vX1}"))
        s_, p_ = st(kp + 1)
        if s_:
            gaps[2].append(lambda kp=kp: g.wait(lg=("rb", kp)))
            for m, at in enumerate((3, 7, 11, 14)):
                gaps[at].append(lambda m=m, s_=s_, kp=kp: s_.dma(g, 1, m, ("b", kp + 1)))
        if kp < 7:
            a0 = 37 if late else 21
            adv, am0, aw, ad = (45, 46, 49, (50, 54, 58, 61)) if late else (29, 30, 34, (35, 39, 43, 46))
            if not o.get("novm"):
                gaps[a0 - 1].append(lambda kp=kp: g.wait(vm=("a", kp + 1)))
            for n, (i, h, q) in enumerate(part_reads(kind, 0)):
                gaps[a0 + n].append(lambda i=i, h=h, q=q, kp=kp: tr_read(g, i, h, q, kp + 1, ("ra", kp + 1), kind))
            s_, p_ = st(kp + 2)
            if s_:
                gaps[adv].append(lambda s_=s_, p_=p_: s_.advance(g, p_))
                gaps[am0].append(lambda: set_m0(g, 0))
                gaps[aw].append(lambda kp=kp: g.wait(lg=("ra", kp + 1)))
                for m in range(4):
                    gaps[ad[m]].append(lambda m=m, s_=s_, kp=kp: s_.dma(g, 0, m, ("a", kp + 2)))
                gaps[62].append(lambda: set_m0(g, 1))
            if not o.get("novm"):
                gaps[52].insert(0, lambda kp=kp: g.wait(vm=("b", kp + 1)))
            for n, (i, h, q) in enumerate(part_reads(kind, 1)):
                gaps[53 + n].insert(0, lambda i=i, h=h, q=q, kp=kp: tr_read(g, i, h, q, kp + 1, ("rb", kp + 1), kind))
        if kp == 7 and nxt:
            def fa():
                g.wait(vm=("a", 8), lg="sw")
                g.barrier(hname + "a")
            gaps[o.get("handa", 20) if not late else 36].append(fa)
            def fb():
                g.drain(vm=True, lg=True)
                g.barrier(hname + "b")
            gaps[o.get("handb", 50)].append(fb)
        if kp == 0 and o.get("prio", 1):
            gaps[o.get("prioat", 13)].append(lambda: g("s_setprio 2"))
        m = 0
        for jp in range(4):
            for (j, i) in chain_order(jp):
                for h in range(2):
                    mfma(g, ACC(i, j), wreg(i, h, kp, kind), xreg(j, h), kp == 0 and h == 0)
                    for f in gaps[m]:
                        f()
                    if (kp, m) in extra:
                        extra[(kp, m)]()
                    m += 1


class Direct:
    def __init__(self, idx):
        self.idx, self.kind = idx, "PPPGG"[idx]

    def soff(self, g, kp, half):
        src = kp if self.kind == "P" else QORD[kp >> 1] * 2 + (kp & 1)
        g(f"s_mov_b32 s{sT0 + half}, {self.idx * 262144 + src * 8192 + half * 4096}")

    merge = False

    def wr(self, i, h, kp):
        return VH + 8 * i + 4 * h if (self.merge and kp == 7) else DW(i, h, kp)

    def load(self, g, kp, f):
        if g.opt.get("nodma"):
            return
        d = self.wr(f >> 1, f & 1, kp)
        g.vmem(f"buffer_load_dwordx4 {R(d)}, v{vS}, s[{sWP}:{sWP+3}], s{sT0 + (f >> 2)} offen offset:{(f & 3) * 1024} {g.opt.get('wpfl', 'sc1')}".rstrip(), rs(d))

    def start_w(self, g):
        it = [lambda: self.soff(g, 0, 0), lambda: self.soff(g, 0, 1)]
        for f in range(8):
            it += [lambda f=f: self.load(g, 0, f), None, None]
        return it + [lambda: self.soff(g, 1, 0), lambda: self.soff(g, 1, 1)]

    def start_x(self, g):
        return [lambda j=j, h=h: x_read(g, self.kind, 0, j, h, DX(j, h)) for j in range(2) for h in range(2)]


def direct_phase(g, own, xbar=None, extra=None, reset=False):
    o = g.opt
    kind = own.kind
    extra = extra or {}
    wat = [int(v) for v in str(o.get("wat", "2 5 10 13 18 21 26 29")).split()]
    g("s_setprio 1")
    seq = [(n // 8, n % 8) for n in range(64)]
    if own.merge:
        seq = seq[:48] + [(6 + n % 2, n // 2) for n in range(16)]
    for blk in range(8):
        gaps = {m: [] for m in range(64)}
        for t in range(8):
            n = blk * 8 + t + 2
            if n < 64:
                for h in range(2):
                    def f(n=n, h=h):
                        if n % 8 == 0 and h == 0 and xbar:
                            xbar(n // 8)
                        x_read(g, kind, seq[n][0], seq[n][1], h, DX(n, h))
                    gaps[8 * t + h].append(f)
            if n - 1 < 64:
                r = rs(DX(n - 1, 0), 8)
                if seq[n - 1][1] == 0 and not o.get("novm"):
                    r = r + rs(own.wr(0, 0, seq[n - 1][0]), 16 if t == 7 else 32)
                gaps[8 * t + 7].append(lambda r=r: g.wait(regs=r))
        if not o.get("novm"):
            gaps[3].append(lambda blk=blk: g.wait(regs=rs(own.wr(2, 0, seq[8 * blk][0]), 16)))
        if kind == "P" and blk == 3:
            gaps[43].append(lambda: g(f"v_add_u32 v{vX0}, 0x10000, v{vX0}"))
            gaps[44].append(lambda: g(f"v_add_u32 v{vX1}, 0x10000, v{vX1}"))
        if reset and blk == 7:
            gaps[43].append(lambda: g(f"v_add_u32 v{vX0}, 0xffff0000, v{vX0}"))
            gaps[44].append(lambda: g(f"v_add_u32 v{vX1}, 0xffff0000, v{vX1}"))
        if blk < (6 if own.merge else 7):
            for f in range(8):
                gaps[wat[f]].append(lambda f=f, blk=blk: own.load(g, blk + 1, f))
        if own.merge and blk == 4:
            gaps[30].append(lambda: own.soff(g, 7, 0))
            gaps[31].append(lambda: own.soff(g, 7, 1))
            for f in range(8):
                gaps[min(wat[f] + 32, 58)].append(lambda f=f: own.load(g, 7, f))
        if blk < (5 if own.merge else 6):
            gaps[59].append(lambda blk=blk: own.soff(g, blk + 2, 0))
            gaps[60].append(lambda blk=blk: own.soff(g, blk + 2, 1))
        if blk == 3:
            gaps[36].append(lambda: g("s_setprio 2"))
        m = 0
        for t in range(8):
            kp, j = seq[blk * 8 + t]
            for i in (range(4) if t % 2 == 0 else range(3, -1, -1)):
                for h in range(2):
                    if o.get("novm"):
                        g.vm = [(set(), tg) for _, tg in g.vm]
                    mfma(g, ACC(i, j), own.wr(i, h, kp), DX(blk * 8 + t, h), kp == 0 and h == 0)
                    for f in gaps[m]:
                        f()
                    if (blk, m) in extra:
                        extra[(blk, m)]()
                    m += 1


def lane(g, v):
    g(f"v_mbcnt_lo_u32_b32 v{v}, -1, 0")
    g(f"v_mbcnt_hi_u32_b32 v{v}, -1, v{v}")


class Mixer:
    def __init__(self, g):
        self.g, self.q, self.every, self.n = g, [], 2, 0
        self.q2, self.n2 = [], 0
        self.q3, self.n3 = [], 0

    def __call__(self, s):
        self.g(s)
        self.n += 1
        self.n3 += 1
        if self.q3 and self.n3 % self.ev3 == 4:
            self.q3.pop(0)()
        if self.q2:
            self.n2 += 1
            if self.n2 >= self.g.opt.get("wdelay", 8):
                self.q2.pop(0)(); self.n2 = 0
        if self.q and self.n % self.every == 0:
            f = self.q.pop(0)
            if f: f()

    def flush(self):
        while self.q2:
            self.q2.pop(0)()
        self.n2 = 0
        while self.q:
            f = self.q.pop(0)
            if f: f()


def glu(e, pairs):
    if e.g.opt.get("noE"): return
    for a, b in pairs: e(f"v_mul_f32 v{b}, s{sC}, v{b}")
    for a, b in pairs: e(f"v_exp_f32 v{b}, v{b}")
    for a, b in pairs: e(f"v_fma_f32 v{b}, v{b}, s{sCi}, s{sCi}")
    for a, b in pairs: e(f"v_rcp_f32 v{b}, v{b}")
    for a, b in pairs: e(f"v_mul_f32 v{a}, v{a}, v{b}")


HFL = ["sc0 sc1"]
def halo_loads(ph):
    return [f"buffer_load_dwordx2 {R(PK(ct, 8), 2)}, v{vG8}, s[{sWS}:{sWS+3}], s{sW128} offen offset:{ph*512 + ct*32} {HFL[0]}" for ct in range(2)]


def halo_check(g, ph):
    lab = f"L_poll{ph}"
    g(f"s_mov_b32 s{sT2}, {g.opt.get('spin', 400000)}")
    g.wait(regs=rs(PK(0, 8), 2) + rs(PK(1, 8), 2))
    g(f"{lab}:")
    g(f"v_max3_u32 v{VTMP}, v{PK(0, 8)}, v{PK(0, 8)+1}, v{PK(1, 8)}")
    g(f"v_max_u32 v{VTMP}, v{VTMP}, v{PK(1, 8)+1}")
    g(f"v_cmp_eq_u32 vcc, -1, v{VTMP}")
    g(f"s_sub_u32 s{sT2}, s{sT2}, 1")
    g(f"s_cbranch_scc1 {lab}_ok")
    g(f"s_cbranch_vccz {lab}_ok")
    for t in halo_loads(ph):
        g(t)
    g("s_waitcnt vmcnt(0)")
    g(f"s_branch {lab}")
    g(f"{lab}_ok:")


def conv_mfmas(j):
    out = []
    for ct in range(2):
        y = ACC(ct, j)
        out.append(f"v_mfma_f32_16x16x32_bf16 {R(y)}, {R(AF(ct, 0))}, {R(PK(ct, j-2))}, {R(y)}")
        out.append(f"v_mfma_f32_16x16x32_bf16 {R(y)}, {R(AF(ct, 1))}, {R(PK(ct, j+1))}, {R(y)}")
    return out


def e_phase(g, ph, dst, pre=(), after_tile=None, glu_tile=None, silu_tile=None, warm=()):
    o = g.opt
    halo = o.get("halo", 1)
    noE = o.get("noE")
    e = Mixer(g)
    prio = 0
    g("s_setprio 0")
    g("s_nop 6")
    for ct in range(2):
        for d in range(5):
            r = CW(ct) + 2 if d == 2 else AF(ct, d // 3) + 2 * (d % 3)
            so, off = (sW64, d * 1024 + ct * 32 + ph * 256) if d < 4 else (sW64b, ct * 32 + ph * 256)
            e.q.append(lambda r=r, so=so, off=off: g.vmem(
                f"buffer_load_dwordx2 {R(r, 2)}, v{vG8}, s[{sDW}:{sDW+3}], s{so} offen offset:{off}", rs(r, 2)))
    q0 = e.q; e.q = []
    e.q3 = list(warm); e.ev3 = 12 if len(e.q3) < 40 else 6
    e.every = 8
    for n_, j in enumerate((3, 0, 1, 2, 4, 5, 6, 7)):
        glu(e, [(ACC(ct, j) + r, ACC(2 + ct, j) + r) for ct in range(2) for r in range(4)])
        if n_ == 0:
            if halo:
                for n in range(4):
                    a = ACC(n // 2, 3) + 2 * (n % 2)
                    e(f"v_cvt_pk_bf16_f32 v{VEXP+n}, v{a}, v{a+1}")
                for n in range(4):
                    e(f"v_min_u32 v{VEXP+n}, -2, v{VEXP+n}")
                for ct in range(2):
                    g.vmem(f"buffer_store_dwordx2 {R(VEXP+2*ct, 2)}, v{vEX}, s[{sWE}:{sWE+3}], s{sW128} offen offset:{ph*512 + ct*32} {HFL[0]}")
            e.q = q0
        if glu_tile:
            glu_tile(e, n_)
    e.flush()
    el = [(ct, r) for ct in range(2) for r in range(4)]
    if halo and o.get("ti", 1) < 0:
        for ct, t in enumerate(halo_loads(ph)):
            g.vmem(t, rs(PK(ct, 8), 2))
    if not noE:
        for j in (6, 7, 1, 0, 2, 3, 4, 5):
            for ct in range(2):
                for d in range(2):
                    a = ACC(ct, j) + 2 * d
                    e(f"v_cvt_pk_bf16_f32 v{PK(ct, j)+d}, v{a}, v{a+1}")
        for p, src, sh in ((-2, 6, "shr"), (-1, 7, "shr"), (9, 1, "shl")):
            for ct in range(2):
                for d in range(2):
                    e(f"v_mov_b32_dpp v{PK(ct, p)+d}, v{PK(ct, src)+d} row_{sh}:1 row_mask:0xf bank_mask:0xf bound_ctrl:1")
        g.wait(regs=rs(192, 24))
        for ct in range(2):
            b = CW(ct)
            e(f"v_lshlrev_b32 v{b}, 16, v{b+2}")
            e(f"v_and_b32 v{b+1}, 0xffff0000, v{b+2}")
            e(f"v_lshlrev_b32 v{b+2}, 16, v{b+3}")
            e(f"v_and_b32 v{b+3}, 0xffff0000, v{b+3}")
        for n in range(16):
            e(f"v_and_b32 v{192+n}, v{vM0 + n % 2}, v{192+n}")
        def cmul(j): return [f"v_mul_f32 v{ACC(ct, j)+r}, v{ACC(ct, j)+r}, v{CW(ct)+r}" for ct, r in el]
        for t in cmul(0) + cmul(1): e(t)
        g(f"s_setprio {o.get('cprio', 3)}")
        for j in range(6):
            fill = cmul(j + 2)
            for n, t in enumerate(conv_mfmas(j)):
                g(t); e(fill[2 * n]); e(fill[2 * n + 1])
        g("s_setprio 0")
    while e.q3:
        e.q3.pop(0)()
    ta = o.get("ta", 6)
    ti, tc = o.get("ti", 1), o.get("tc", 5)
    for j in range(8):
        if silu_tile:
            silu_tile(e, j)
        if j == o.get("tw", 3) and warm:
            g("s_waitcnt lgkmcnt(0)"); g.lg = []
        if j == ti:
            if halo:
                for ct, t in enumerate(halo_loads(ph)):
                    g.vmem(t, rs(PK(ct, 8), 2))
        if j == ta:
            g("s_setprio 1"); prio = 1
            e.q += list(pre); e.every = 2; e.n = 0
        ys = [ACC(ct, j) + r for ct, r in el]
        mm = []
        if j == tc and not noE:
            if halo:
                halo_check(g, ph)
            for ct in range(2):
                for d in range(2):
                    e(f"v_mov_b32_dpp v{PK(ct, 8)+d}, v{PK(ct, 0)+d} row_shl:1 row_mask:0xf bank_mask:0xf" + ("" if halo else " bound_ctrl:1"))
            c6, c7 = conv_mfmas(6), conv_mfmas(7)
            mm = c6 + c7
            g(f"s_setprio {o.get('cprio', 3)}")
        if not noE:
            for n, y in enumerate(ys):
                if mm: g(mm[n])
                e(f"v_exp_f32 v{VTMP+n}, v{y}")
            if mm: g(f"s_setprio {prio}")
            for n, y in enumerate(ys): e(f"v_fma_f32 v{VTMP+n}, v{VTMP+n}, s{sC}, s{sC}")
            for n, y in enumerate(ys): e(f"v_rcp_f32 v{VTMP+n}, v{VTMP+n}")
            for n, y in enumerate(ys): e(f"v_mul_f32 v{y}, v{y}, v{VTMP+n}")
        for n in range(4): e(f"v_cvt_pk_bf16_f32 v{dst+4*j+n}, v{ys[2*n]}, v{ys[2*n+1]}")
        if after_tile:
            after_tile(e, j)
    e.flush()


vG0, vG1, vG2 = vM0, vM1, vEX


def outv_addr(g):
    t = 144
    lane(g, t)
    g(f"s_lshl_b32 s{sT2}, s{sWv}, 7")
    g(f"v_bfe_u32 v{t+1}, v{t}, 1, 3")
    g(f"v_lshl_add_u32 v{vG0}, v{t+1}, 14, s{sT2}")
    g(f"v_lshrrev_b32 v{t+2}, 4, v{t}")
    g(f"v_lshl_add_u32 v{vG0}, v{t+2}, 5, v{vG0}")
    g(f"v_and_b32 v{t+2}, 1, v{t}")
    g(f"v_lshl_add_u32 v{vG0}, v{t+2}, 4, v{vG0}")
    g(f"v_cmp_eq_u32 vcc, 0, v{t+1}")
    g(f"v_mov_b32 v{vG2}, {OOB}")
    g(f"v_add_u32 v{vG1}, 8192, v{vG0}")
    g(f"v_cndmask_b32 v{vG2}, v{vG0}, v{vG2}, vcc")
    g(f"s_movk_i32 s{sT3}, 4096")
    g(f"s_mov_b32 vcc_lo, 0x55555555")
    g(f"s_mov_b32 vcc_hi, 0x55555555")


def outv_items(g, j, n, fl, mode=2, inflight=None, tight=False):
    P, S = (128 + 8 * (n % 2), 160 + 8 * (n % 4)) if not tight else (192, 200 + 8 * (n % 3))
    it = []
    for d in range(2):
        for i in range(4):
            a = ACC(i, j) + 2 * d
            it.append(f"v_cvt_pk_bf16_f32 v{P+2*i+d}, v{a}, v{a+1}")
    for d in range(2):
        for i in (0, 2):
            it.append(f"v_permlane16_swap_b32 v{P+2*i+d}, v{P+2*i+2+d}")
    for d in range(2):
        for i in (0, 1):
            it.append(f"v_permlane32_swap_b32 v{P+2*i+d}, v{P+2*i+4+d}")
    dpp = "quad_perm:[1,0,3,2] row_mask:0xf bank_mask:0xf"
    so = "0" if j < 4 else f"s{sT3}"
    for hb in ((0, 1) if n % 2 == 0 else (1, 0)):
        for k in (0, 2, 1, 3):
            own, oth = (P + k, P + 4 + k) if hb == 0 else (P + 4 + k, P + k)
            it.append(f"v_cndmask_b32_dpp v{S+4*hb+k}, v{oth}, v{own}, vcc {dpp}")
        if hb == n % 2:
            it.append("s_not_b64 vcc, vcc")
        va = vG1 if hb else (vG2 if j < 2 else vG0)
        if inflight is not None:
            it.append(f"s_waitcnt vmcnt({inflight})")
        it.append(f"buffer_store_dwordx4 {R(S+4*hb)}, v{va}, s[{sO}:{sO+3}], {so} offen offset:{(j % 4)*1024} {fl}".rstrip())
    if mode == 1: it = [t for t in it if not t.startswith("buffer")]
    if mode == 3: it = [t for t in it if t.startswith("buffer")]
    return [(lambda t=t: g.vmem(t) if t.startswith("buffer") else g(t)) for t in it]


def srd(g, d, lo, size):
    g(f"s_mov_b32 s{d}, s{lo}")
    g(f"s_mov_b32 s{d+1}, s{lo+1}")
    g(f"s_mov_b32 s{d+2}, {size}")
    g(f"s_mov_b32 s{d+3}, 0x20000")


def g_addr(g):
    g(f"v_subrev_u32 v{vX1}, s{sSb}, v{vS}")
    g(f"v_add_u32 v{vX0}, 98304, v{vX1}")
    g(f"v_add_u32 v{vX1}, 32768, v{vX1}")


def build(opt):
    g = Gen(opt)
    HFL[0] = opt.get("hfl", "sc0 sc1")
    halo = opt.get("halo", 1)
    xfl = opt.get("xflag", "nt")
    win = opt.get("win", 2)
    rbar = opt.get("rbar", 15)
    stamps = opt.get("stamps")
    kx, kw1, kdw, kw2, kout, kdbg, kws = KA, KA + 2, KA + 4, KA + 6, KA + 8, KA + 10, KA + 12
    g.l.append(HEAD.rstrip("\n"))
    g("; @launch grid=(256,1,1) block=(512,1,1) lds=163840")
    g('.amdgcn_target "amdgcn-amd-amdhsa--gfx950"')
    g(".text")
    g(f".globl {KN}_kernel")
    g(".p2align 8")
    g(f".type {KN}_kernel,@function")
    g(f"{KN}_kernel:")
    g("s_cmp_ge_u32 s2, 256")
    g("s_cbranch_scc1 L_end")
    g(f"s_load_dwordx8 s[{KA}:{KA+7}], s[0:1], 0")
    g(f"s_load_dwordx4 s[{KA+8}:{KA+11}], s[0:1], 32")
    g(f"s_load_dwordx2 s[{KA+12}:{KA+13}], s[0:1], 48")
    if stamps:
        g("s_memrealtime s[74:75]")
        g(f"s_mem{'real' if stamps == 3 else ''}time s[100:101]")
    g(f"v_readfirstlane_b32 s{sWv}, v0")
    g(f"s_mov_b32 s{sWg}, s2")
    if opt.get("remap", 1):
        g(f"s_and_b32 s3, s2, 7")
        g(f"s_lshr_b32 s2, s2, 3")
        g(f"s_lshl_b32 s3, s3, 5")
        g(f"s_add_u32 s2, s2, s3")
    g(f"s_mov_b32 s{sTile}, s2")
    g(f"s_and_b32 s{sTau}, s2, 127")
    g(f"s_mul_i32 s2, s2, 128000")
    g(f"s_lshr_b32 s{sWv}, s{sWv}, 6")
    g(f"s_and_b32 s{sW}, s{sWv}, 3")
    g("v_and_b32 v0, 63, v0")
    g(f"s_cmp_lt_u32 s{sWv}, 4")
    g("s_cbranch_scc1 L_startA")

    P = [Stream("P", ph) for ph in range(2)]
    P1, P2, P3, GA, GB = (Direct(n) for n in range(5))
    d1 = opt.get('d1', 1)

    g(f"v_lshrrev_b32 v12, 3, v0")
    g(f"v_and_b32 v13, 7, v0")
    g(f"v_lshrrev_b32 v14, 4, v0")
    g(f"v_xor_b32 v14, v14, v13")
    g(f"s_lshl_b32 s{sT3}, s{sW}, 11")
    g(f"v_lshl_add_u32 v14, v14, 4, s{sT3}")
    g(f"v_lshl_add_u32 v16, v12, 13, v14")
    g(f"v_xor_b32 v17, 0x10040, v16")
    g(f"v_add_u32 v19, 1024, v17")
    g(f"s_cmp_eq_u32 s{sTau}, 0")
    g(f"s_cselect_b32 s{sT3}, 1024, 0")
    g(f"v_cmp_gt_u32 vcc, s{sT3}, v16")
    g(f"v_mov_b32 v15, {OOB}")
    g(f"s_cmp_eq_u32 s{sTau}, 127")
    g(f"v_cndmask_b32 v16, v16, v15, vcc")
    g(f"s_mov_b32 s{sX+3}, 0x20000")
    g(f"s_cselect_b32 s{sX+2}, {127*1024}, s{sX+3}")
    g(f"v_add_u32 v18, 1024, v16")
    g(f"s_lshl_b32 s{sT3}, s{sW}, 12")
    g("s_waitcnt lgkmcnt(0)")
    g(f"s_add_u32 s{sX}, s{kx}, s2")
    g(f"s_addc_u32 s{sX+1}, s{kx+1}, 0")
    g(f"s_sub_u32 s{sX}, s{sX}, 2048")
    g(f"s_subb_u32 s{sX+1}, s{sX+1}, 0")
    if opt.get("hd") == 1: g.stamp(8)

    def d1_addr():
        g(f"v_lshrrev_b32 v1, 5, v0")
        g(f"v_lshlrev_b32 v1, 1, v1")
        g(f"v_and_b32 v2, 3, v0")
        g(f"v_xor_b32 v1, v1, v2")
        g(f"s_lshl_b32 s{sW64}, s{sW}, 6")
        g(f"v_lshl_add_u32 v1, v1, 4, s{sW64}")
        g(f"v_lshrrev_b32 v3, 2, v0")
        g(f"v_lshl_add_u32 v{vD1}, v3, 11, v1")
        g(f"s_lshl_b32 s{sRing}, s{sW}, 13")
        g(f"s_add_u32 s{sRing}, s{sRing}, 131072")
        g(f"s_add_u32 s{sRing+1}, s{sRing}, 4096")
        for f in set_kconst(g, "P"): f()

    def common(role):
        srd(g, sDW, kdw, 5120)
        srd(g, sW2, kw2, 524288)
        g(f"s_add_u32 s{sO}, s{kout}, s2")
        g(f"s_addc_u32 s{sO+1}, s{kout+1}, 0")
        g(f"s_sub_u32 s{sO}, s{sO}, 2048")
        g(f"s_subb_u32 s{sO+1}, s{sO+1}, 0")
        g(f"s_mov_b32 s{sO+2}, {127*1024}")
        g(f"s_mov_b32 s{sO+3}, 0x20000")
        srd(g, sDBG, kdbg, 256)
        g(f"s_lshl_b32 s{sT0}, s{sTile}, 11")
        g(f"s_add_u32 s{sWS}, s{kws}, s{sT0}")
        g(f"s_addc_u32 s{sWS+1}, s{kws+1}, 0")
        g(f"s_sub_u32 s{sWE}, s{sWS}, 2048")
        g(f"s_subb_u32 s{sWE+1}, s{sWS+1}, 0")
        g(f"s_cmp_eq_u32 s{sTau}, 127")
        g(f"s_cselect_b32 s{sWS+2}, 0, 2048")
        g(f"s_cmp_eq_u32 s{sTau}, 0")
        g(f"s_cselect_b32 s{sWE+2}, 0, 2048")
        g(f"s_mov_b32 s{sWS+3}, 0x20000")
        g(f"s_mov_b32 s{sWE+3}, 0x20000")
        if stamps:
            g(f"s_mov_b64 s[40:41], s[{kws}:{kws+1}]")
        g(f"s_mov_b32 s{sC}, 0xbfb8aa3b")
        g(f"s_mov_b32 s{sCi}, 0xbf317218")
        g(f"s_add_u32 s{sW64b}, s{sW64}, 4096")
        g(f"s_lshl_b32 s{sW128}, s{sW}, 7")
        g(f"v_lshrrev_b32 v3, 4, v0")
        g(f"v_lshlrev_b32 v4, 1, v3")
        g(f"v_lshlrev_b32 v{vG8}, 3, v3")
        g(f"v_and_b32 v5, 1, v0")
        g(f"v_lshlrev_b32 v5, 4, v5")
        g(f"v_mov_b32 v24, 0xffff")
        g(f"v_lshlrev_b32 v5, v5, v24")
        g(f"v_bfe_u32 v24, v0, 1, 3")
        g(f"v_cmp_eq_u32 vcc, v24, v4")
        g(f"v_add_u32 v4, 1, v4")
        g(f"v_and_b32 v25, 15, v0")
        g(f"v_cndmask_b32 v{vM0}, 0, v5, vcc")
        g(f"v_cmp_eq_u32 vcc, v24, v4")
        g(f"v_lshl_add_u32 v{vEX}, v25, 24, v{vG8}")
        g(f"s_lshr_b32 s{sT0}, s{sW}, 1")
        g(f"v_cndmask_b32 v{vM1}, 0, v5, vcc")
        g(f"s_lshl_b32 s{sT0}, s{sT0}, 14")
        g(f"s_and_b32 s{sT1}, s{sW}, 1")
        g(f"s_lshl_b32 s{sT1}, s{sT1}, 10")
        g(f"s_add_u32 s{sSb}, s{sT0}, s{sT1}")
        g(f"s_add_u32 s{sSb}, s{sSb}, {65536 if role == 0 else 131072}")
        g(f"v_lshl_add_u32 v{vS}, v0, 4, s{sSb}")
        g(f"s_add_u32 s{sWq}, s{kws}, {WPOFF}")
        g(f"s_addc_u32 s{sWq+1}, s{kws+1}, 0")
        g(f"s_lshl_b32 s{sT0}, s{sW}, 16")
        g(f"s_add_u32 s{sWP}, s{sWq}, s{sT0}")
        g(f"s_addc_u32 s{sWP+1}, s{sWq+1}, 0")
        g(f"s_sub_u32 s{sWP}, s{sWP}, s{sSb}")
        g(f"s_subb_u32 s{sWP+1}, s{sWP+1}, 0")
        g(f"s_mov_b32 s{sWP+2}, 0x200000")
        g(f"s_mov_b32 s{sWP+3}, 0x20000")
        g(f"v_bfe_u32 v4, v0, 4, 1")
        g(f"v_bfe_u32 v5, v0, 2, 2")
        g(f"v_lshl_add_u32 v{vW0}, v3, 9, s{sRing}")
        g(f"v_lshl_add_u32 v{vW0}, v5, 6, v{vW0}")
        g(f"v_lshl_add_u32 v{vW0}, v4, 5, v{vW0}")
        g(f"v_lshl_add_u32 v{vW0}, v2, 3, v{vW0}")
        g(f"v_xor_b32 v{vW1}, 32, v{vW0}")
        g(f"v_and_b32 v4, 15, v0")
        g(f"v_lshrrev_b32 v5, 1, v4")
        g(f"v_xor_b32 v5, v5, v3")
        g(f"v_lshlrev_b32 v5, 4, v5")
        g(f"v_lshl_add_u32 v{vX0}, v4, 7, v5")
        g(f"v_xor_b32 v{vX1}, 64, v{vX0}")
        if stamps:
            g("s_mov_b64 s[76:77], s[100:101]")


    sWB = 0
    sub = (0, 64)
    def wbase(key):
        if key < 2 - d1:
            g(f"s_lshl_b32 s{sT2}, s{sSl}, 13")
            g(f"s_add_u32 s{sT2}, s{sT2}, {key * 256}")
            ptr = sW1
        else:
            g(f"s_lshl_b32 s{sT2}, s{sSl}, 11")
            g(f"s_add_u32 s{sT2}, s{sT2}, {(key - 1) * 262144}")
            ptr = sWq
        g(f"s_add_u32 s{sWB}, s{ptr}, s{sT2}")
        g(f"s_addc_u32 s{sWB+1}, s{ptr+1}, 0")
    def wlines(key):
        if key < 2 - d1:
            return [(key, n * 1024 + e * 64) for n in range(8) for e in range(4)]
        return [(key, n * 64) for n in range(32)]
    def swarm(lines):
        cur = None
        for n, (key, of) in enumerate(lines):
            if key != cur:
                wbase(key); cur = key
            if n % 14 == 0:
                g(f"s_waitcnt lgkmcnt({15 - min(14, len(lines) - n)})")
            g(f"s_load_dword s3, s[{sWB}:{sWB+1}], {of}")
    later = wlines(1)
    nb = 8
    def e_warm(key, n0=0):
        if opt.get("warm", 3) != 3:
            return []
        def ld(n, of):
            if n + n0 >= 14:
                g("s_waitcnt lgkmcnt(13)")
            g(f"s_load_dword s3, s[{sWB}:{sWB+1}], {of}")
        return [lambda: wbase(key)] + [(lambda n=n, of=of: ld(n, of)) for n, (_, of) in enumerate(wlines(key))]

    def x_issue(kp):
        g(f"s_movk_i32 s{sT0}, {kp*128}")
        for jj in range(2):
            for hh in range(2):
                g(f"s_add_u32 m0, s{sT3}, {kp*16384 + jj*2048 + hh*1024}")
                g("s_nop 0")
                g.vmem(f"buffer_load_dwordx4 v{16+2*jj+hh}, s[{sX}:{sX+3}], s{sT0} offen {xfl} lds".replace("  ", " "), tag=("x", kp))
    x_issue(0)
    if opt.get("hd") == 2:
        g("s_waitcnt vmcnt(0)"); g.stamp(8)
    srd(g, sW1, kw1, 1048576)
    g(f"s_getpc_b64 s[{sCode}:{sCode+1}]")
    g("L_pc:")
    g(f"s_mov_b32 s{sCode+2}, L_code_end-L_pc")
    g(f"s_mov_b32 s{sCode+3}, 0x20000")
    g(f"s_lshr_b32 s{sT1}, s{sWg}, 3")
    g(f"s_lshl2_add_u32 s{sSl}, s{sT1}, s{sW}")
    g(f"v_lshrrev_b32 v6, 1, v0")
    g(f"v_lshlrev_b32 v6, 10, v6")
    g(f"v_and_b32 v7, 1, v0")
    g(f"v_lshl_add_u32 v6, v7, 7, v6")
    g(f"v_lshrrev_b32 v7, 4, v0")
    g(f"v_lshl_add_u32 v6, v7, 28, v6")
    def warm_w1(ph, dst):
        g(f"s_lshl_b32 s{sT2}, s{sSl}, 13")
        if ph:
            g(f"s_add_u32 s{sT2}, s{sT2}, {ph * 256}")
        g.vmem(f"buffer_load_dword v{dst}, v6, s[{sW1}:{sW1+3}], s{sT2} offen {opt.get('wfl', '')}", [dst])
    if opt.get("warm0", 1) == 1:
        warm_w1(0, 8)
    g(f"s_lshl_b32 s{sT2}, s{sSl}, 7")
    g(f"v_lshlrev_b32 v7, 14, v0")
    g.vmem(f"buffer_load_dword v9, v7, s[{sCode}:{sCode+3}], s{sT2} offen", [9])
    if opt.get("warm0", 1) == 2:
        swarm(wlines(0)[12 * len(sub):])
    if opt.get("hd") in (2, 3):
        g("s_waitcnt vmcnt(0)"); g.stamp(9)
    d1_addr()
    common(1)
    sTs, sTd = 64, 65
    g(f"v_lshrrev_b32 v26, 3, v0")
    g(f"v_lshlrev_b32 v27, 4, v13")
    g(f"s_and_b32 s{sT0}, s{sWg}, 15")
    g(f"s_lshr_b32 s{sT1}, s{sT0}, 1")
    g(f"s_lshl_b32 s{sTd}, s{sT1}, 13")
    g(f"s_and_b32 s{sT1}, s{sT0}, 1")
    g(f"s_lshl_b32 s{sT1}, s{sT1}, 10")
    g(f"s_add_u32 s{sTd}, s{sTd}, s{sT1}")
    g(f"s_lshl_b32 s{sT1}, s{sW}, 10")
    g(f"s_add_u32 m0, s{sT1}, {SCR}")
    g(f"s_cmp_ge_u32 s{sWg}, 128")
    g("s_cbranch_scc1 L_task2")
    g(f"v_and_b32 v28, 3, v26")
    g(f"v_lshrrev_b32 v26, 2, v26")
    g(f"v_lshl_add_u32 v26, v26, 3, v28")
    g(f"v_lshl_add_u32 v26, v26, 11, v27")
    g(f"s_lshl_b32 s{sTs}, s{sT0}, 16")
    g(f"s_and_b32 s{sT1}, s{sW}, 1")
    g(f"s_lshl_b32 s{sT2}, s{sT1}, 15")
    g(f"s_add_u32 s{sTs}, s{sTs}, s{sT2}")
    g(f"s_lshl_b32 s{sT2}, s{sT1}, 11")
    g(f"s_add_u32 s{sTd}, s{sTd}, s{sT2}")
    g(f"s_lshr_b32 s{sT1}, s{sW}, 1")
    g(f"s_lshl_b32 s{sT2}, s{sT1}, 13")
    g(f"s_add_u32 s{sTs}, s{sTs}, s{sT2}")
    g(f"s_lshl_b32 s{sT2}, s{sT1}, 16")
    g(f"s_add_u32 s{sTd}, s{sTd}, s{sT2}")
    g(f"s_bfe_u32 s{sT1}, s{sWg}, 0x10004")
    g(f"s_lshl_b32 s{sT2}, s{sT1}, 10")
    g(f"s_add_u32 s{sTs}, s{sTs}, s{sT2}")
    g(f"s_lshl_b32 s{sT2}, s{sT1}, 12")
    g(f"s_add_u32 s{sTd}, s{sTd}, s{sT2}")
    g(f"s_lshr_b32 s{sT1}, s{sWg}, 5")
    g(f"s_lshl_b32 s{sT2}, s{sT1}, 7")
    g(f"s_add_u32 s{sTs}, s{sTs}, s{sT2}")
    g(f"s_add_u32 s{sTs}, s{sTs}, 512")
    g(f"s_lshl_b32 s{sT2}, s{sT1}, 17")
    g(f"s_add_u32 s{sTd}, s{sTd}, s{sT2}")
    g(f"buffer_load_dwordx4 v26, s[{sW1}:{sW1+3}], s{sTs} offen lds")
    g("s_branch L_task3")
    g("L_task2:")
    g(f"v_lshl_add_u32 v26, v26, 10, v27")
    g(f"s_lshl_b32 s{sTs}, s{sT0}, 15")
    g(f"s_lshl_b32 s{sT2}, s{sW}, 13")
    g(f"s_add_u32 s{sTs}, s{sTs}, s{sT2}")
    g(f"s_lshl_b32 s{sT2}, s{sW}, 11")
    g(f"s_add_u32 s{sTd}, s{sTd}, s{sT2}")
    g(f"s_lshr_b32 s{sT1}, s{sWg}, 4")
    g(f"s_lshl_b32 s{sT2}, s{sT1}, 16")
    g(f"s_add_u32 s{sTd}, s{sTd}, s{sT2}")
    g(f"s_and_b32 s{sT1}, s{sT1}, 7")
    g(f"s_lshl_b32 s{sT2}, s{sT1}, 7")
    g(f"s_add_u32 s{sTs}, s{sTs}, s{sT2}")
    g.vmem(f"buffer_load_dwordx4 v26, s[{sW2}:{sW2+3}], s{sTs} offen lds", tag="task")
    g("L_task3:")
    if d1:
        g(f"s_cmp_lt_u32 s{sWg}, 64")
        g(f"s_cselect_b32 s{sT1}, 0, 0x40000000")
        g(f"s_sub_u32 s{sT2}, s{sTs}, 256")
        g(f"s_max_i32 s{sT2}, s{sT2}, 0")
        g(f"v_add_u32 v26, s{sT1}, v26")
        g(f"v_lshl_add_u32 v25, v0, 4, s{sT1}")
        g(f"s_add_u32 m0, m0, 4096")
        g("s_nop 0")
        g.vmem(f"buffer_load_dwordx4 v26, s[{sW1}:{sW1+3}], s{sT2} offen lds", tag="task")
    g(f"s_lshl_b32 s{sT1}, s{sW}, 5")
    g(f"s_add_u32 s{sT1}, s{sT1}, {SCR}")
    g(f"v_lshrrev_b32 v26, 2, v0")
    g(f"v_lshl_add_u32 v26, v26, 7, s{sT1}")
    g(f"v_lshl_add_u32 v26, v2, 3, v26")
    g(f"v_lshlrev_b32 v27, 4, v0")
    srd(g, sW2, sWq, 0x140000)
    assert rbar and win == 2
    def w_first():
        P[0].advance(g, 0)
        for ab in range(2):
            set_m0(g, ab)
            g("s_nop 0")
            for m in range(4):
                P[0].dma(g, ab, m, ("x", 0))
    wA = opt.get("wA", 2)
    if wA:
        g.barrier("w0")
    else:
        w_first()
    for kp in range(1, win):
        x_issue(kp)
    g.wait(vm=("x", 0))
    g.barrier("x0")
    g("s_branch L_roleB")
    vmB = list(g.vm); g.vm = []; g.bars = []

    g("L_startA:")
    d1_addr()
    g("s_waitcnt lgkmcnt(0)")
    if opt.get("tlb", 0):
        g(f"s_add_u32 s{sO}, s{kout}, s2")
        g(f"s_addc_u32 s{sO+1}, s{kout+1}, 0")
        for n, (k, off) in enumerate(((kw1, 0), (kdw, 0), (kw2, 0), (kws, 0x80000), (sO, 0))):
            g(f"s_load_dword s{90+n}, s[{k}:{k+1}], {off}")
    srd(g, sW1, kw1, 1048576)
    g(f"s_lshr_b32 s{sT1}, s{sWg}, 3")
    g(f"s_lshl2_add_u32 s{sSl}, s{sT1}, s{sW}")
    if opt.get("warm0", 1) == 2:
        swarm(wlines(0)[:12 * len(sub)])
    if wA == 2:
        w_first()
    common(0)
    if wA == 1:
        w_first()
    if wA:
        g.barrier("w0")
        g.drain(vm=True)
    g.stamp(8)
    g.barrier("x0")
    g.stamp(9)
    it = start_a(g, P[0])
    run(it[:8] + start_x(g, P[0]) + start_b(g, P[0])[:8])
    run(it[8:10]); g("s_nop 0"); run(it[10:] + start_b(g, P[0])[8:])
    ex = {(kp, rbar): (lambda kp=kp: g.barrier(f"r{kp}")) for kp in range(8 - win)} if rbar else {}
    g.stamp(1)
    if d1:
        def h0():
            g.wait(lg=("rb", 7))
            g.barrier("h0")
        ex[(7, opt.get("h0g", 45))] = h0
    mfma_phase(g, P[0], None if d1 else P[1], "h0", xbar=lambda kp: g.barrier(f"x{kp}"), first=True, extra=ex)
    g.stamp(2)
    def sw(reg, off, va=vS):
        return lambda: g.ds(f"ds_write_b128 v{va}, {R(reg)} offset:{off}", tag="sw")
    e_phase(g, 0, VH, pre=P2.start_w(g) + P2.start_x(g), warm=e_warm(2))
    if not d1:
        g.barrier("h1")
    g.stamp(3)
    direct_phase(g, P2)
    g.stamp(4)
    e_phase(g, 2, 0, pre=GA.start_w(g), warm=e_warm(4))
    g_addr(g)
    g.barrier("h3")
    run([sw(0, 32768), sw(4, 32768 + 2048)] + GA.start_x(g) + [sw(8, 32768 + 4096)])
    g.stamp(5)
    def xbarA(kp):
        if kp == 2:
            g.wait(lg="sw")
            g.barrier("V")
        if kp == 6:
            g.barrier("Y")
    ex = {(0, 8 * (j - 3) + 4): sw(4 * j, 32768 + j * 2048) for j in range(3, 8)}
    fr = ((0, 44), (0, 52), (1, 4), (1, 12), (1, 20), (1, 28), (1, 34), (1, 38))
    ex.update({fr[j]: sw(VH + 4 * j, j * 2048) for j in range(8)})
    direct_phase(g, GA, xbar=xbarA, extra=ex)
    g.stamp(6)
    g("s_setprio 0")
    npace = opt.get("pace", 0)
    pace_j = [(n + 1) * 8 // (npace + 1) for n in range(npace)]
    outv_addr(g)
    for j in range(8):
        if j in pace_j: g.barrier(f"Z{pace_j.index(j)}")
        if opt.get("outA", 2): run(outv_items(g, j, j, opt.get("stA", "nt"), opt.get("outA", 2), opt.get("infl", 1)))
    g.stamp(7)
    barsA = g.bars
    g("s_branch L_fin")

    g.lg, g.vm, g.bars = [], vmB, ["w0", "x0"] if wA else ["x0"]
    g("L_roleB:")
    def task_read():
        assert not any(t == "task" for _, t in g.vm)
        for n in range(1 + d1):
            g(f"ds_read_b64_tr_b16 v[{28+4*n}:{29+4*n}], v26 offset:{4096*n}")
            g(f"ds_read_b64_tr_b16 v[{30+4*n}:{31+4*n}], v26 offset:{4096*n + 2048}")
        g("s_waitcnt lgkmcnt(0)")
    def task_store():
        g.vmem(f"buffer_store_dwordx4 v[28:31], v27, s[{sW2}:{sW2+3}], s{sTs} offen sc0 sc1", tag="clr")
        if d1:
            g.vmem(f"buffer_store_dwordx4 v[32:35], v25, s[{sW2}:{sW2+3}], s{sTd} offen sc0 sc1", tag="clr")
    g.barrier("r0")
    x_issue(win)
    g(f"s_and_b32 s{sGrp}, s{sTile}, 0xfc")
    g(f"s_lshl_b32 s{sT1}, s{sW}, 9")
    g(f"v_lshlrev_b32 v21, 3, v0")
    g(f"v_mov_b32 v22, -1")
    g(f"v_mov_b32 v23, -1")
    g(f"s_add_u32 s{sTs}, s{sTd}, 262144")
    g(f"s_lshl_b32 s{sT2}, s{sSl}, 7")
    g.vmem(f"buffer_store_dwordx2 v[22:23], v21, s[{sWS}:{sWS+3}], s{sT1} offen sc0 sc1", tag="clr")
    g.vmem(f"buffer_load_dword v10, v7, s[{sDW}:{sDW+3}], s{sT2} offen", [10])
    g.stamp(1)
    def ready():
        g(f"s_mov_b32 s{sT2}, {opt.get('spin', 400000)}")
        g.wait(regs=[22])
        g.point("rdy_")
        g("L_rdy:")
        g(f"v_cmp_ne_u32 vcc, 15, v22")
        g(f"s_sub_u32 s{sT2}, s{sT2}, 1")
        g("s_cbranch_scc1 L_rdy_ok")
        g("s_cbranch_vccz L_rdy_ok")
        g(f"buffer_load_dword v22, v21, s[{sDBG}:{sDBG+3}], 0 offen sc0 sc1")
        g("s_waitcnt vmcnt(0)")
        g("s_branch L_rdy")
        g("L_rdy_ok:")
        g.point("rdy")
    pk = opt.get("pk", 6) if d1 else 7
    for kp in range(1, 8):
        g.wait(vm=("x", kp))
        g.barrier(f"x{kp}")
        if kp in (3, 7) and not opt.get("hd"):
            g.stamp({0: 1, 3: 8, 7: 9}[kp])
        if kp == 1:
            task_read()
            if opt.get("stearly", 1): task_store()
        if kp == 3:
            assert not any(t == "clr" for _, t in g.vm)
            g(f"s_cmp_lg_u32 s{sW}, 0")
            g("s_cbranch_scc1 L_noann")
            g(f"s_and_b32 s{sT1}, s{sTile}, 3")
            g(f"s_lshl_b32 s{sT1}, 1, s{sT1}")
            g(f"s_atomic_or s{sT1}, s[{sDBG}:{sDBG+1}], s{sGrp}")
            g("L_noann:")
        if kp + win < 8:
            g.barrier(f"r{kp}")
        if kp == 1 and not opt.get("stearly", 1):
            task_store()
        if kp == pk - 1:
            g(f"v_lshlrev_b32 v21, 2, v0")
            g.vmem(f"buffer_load_dword v22, v21, s[{sDBG}:{sDBG+3}], 0 offen sc0 sc1", [22])
        if kp + win < 8:
            x_issue(kp + win)
        if kp == pk:
            ready()
        if opt.get("warm", 3) == 3:
            if d1:
                nb = -(-32 // (8 - pk))
                if kp >= pk: swarm(later[(kp - pk) * nb:(kp - pk + 1) * nb])
            elif 2 <= kp < 6:
                swarm(later[(kp - 2) * nb:(kp - 1) * nb])
    g.drain(vm=True)
    def idle_start(name, own):
        run(start_x(g, own))
        g.barrier(name + "a")
        run(start_a(g, own))
        g.barrier(name + "b")
        g("s_setprio 1")
        run(start_b(g, own))
    if d1:
        run(P1.start_w(g))
        g("s_waitcnt lgkmcnt(0)")
        run(P1.start_x(g))
        g.barrier("h0")
        g.stamp(2)
        direct_phase(g, P1, reset=True)
    else:
        g("s_waitcnt lgkmcnt(0)")
        idle_start("h0", P[1])
        g.stamp(2)
        def h1():
            g.wait(lg=("rb", 7))
            g.barrier("h1")
        mfma_phase(g, P[1], None, None, extra={(7, opt.get("h1g", 20)): h1})
    g.stamp(3)
    e_phase(g, 1, 0, pre=P3.start_w(g) + P3.start_x(g), warm=e_warm(3), after_tile=lambda e, j: e.q2.append(sw(4 * j, j * 2048)))
    g.wait(lg="sw")
    g.stamp(4)
    def h3():
        g.drain(lg=True)
        g.barrier("h3")
    direct_phase(g, P3, extra={(7, opt.get("h3g", 48)): h3})
    g.stamp(5)
    def vB(e, j):
        if j == opt.get("vtile", 5):
            g.barrier("V")
            g_addr(g)
            g(f"v_add_u32 v255, {-98304 & 0xffffffff}, v{vS}")
    e_phase(g, 3, 0, pre=GB.start_w(g) + GB.start_x(g), glu_tile=vB,
            warm=e_warm(5), after_tile=lambda e, j: e.q2.append(sw(4 * j, j * 2048, 255)))
    g.drain(lg=True)
    g.barrier("Y")
    outv_addr(g)
    g.stamp(6)
    ex = {}
    for n in range(npace):
        t = opt.get("p0", 64) + n * opt.get("pstep", 48)
        ex[(t // 64, t % 64 // 8 * 8 + 4)] = (lambda n=n: g.barrier(f"Z{n}"))
    pend = []
    GB.merge = bool(opt.get("merge", 1))
    per = opt.get("oper", 2 if GB.merge else 4)
    step = 16 if GB.merge else 8
    def f(m):
        if m % step == 7 and m >= step:
            j = m // step - 1
            pend.extend(outv_items(g, j, j, opt.get("stB", "nt"), tight=GB.merge))
        for _ in range(per):
            if pend: pend.pop(0)()
    for m in range(8 * step):
        mm = 512 - 8 * step + m
        ex[(mm // 64, mm % 64)] = (lambda m=m: f(m))
    direct_phase(g, GB, extra=ex)
    g.stamp(7)
    if len(pend) < 8:
        g("s_nop 7")
    run(pend)
    run(outv_items(g, 7, 7, opt.get("stB", "nt"), tight=GB.merge))
    assert g.bars == barsA, (g.bars, barsA)
    g("L_fin:")
    if stamps:
        g("s_waitcnt vmcnt(0)")
        g("s_memrealtime s[98:99]")
        g(f"s_mem{'real' if stamps == 3 else ''}time s[100:101]")
        g(f"s_add_u32 s4, s40, {STAMP_OFF}\ns_addc_u32 s5, s41, 0\ns_mov_b32 s6, 0x100000\ns_mov_b32 s7, 0x20000")
        g(f"s_lshl_b32 s8, s{sWg}, 3\ns_add_u32 s8, s8, s{sWv}\ns_lshl_b32 s8, s8, 7")
        g("s_waitcnt lgkmcnt(0)")
        g("s_mov_b64 exec, 1")
        g("v_mov_b32 v4, 0")
        order = [74, 98, 76, 100] + [76 + 2 * n for n in range(1, 10)]
        for n, s in enumerate(order):
            g(f"v_mov_b32 v0, s{s}\nv_mov_b32 v1, s{s+1}")
            g(f"buffer_store_dwordx2 v[0:1], v4, s[4:7], s8 offen offset:{8*n}")
            g("s_nop 1")
    g("L_end:")
    g("s_endpgm")
    g("L_code_end:")
    g('.section .rodata,"a"')
    g(".p2align 6")
    g(f".amdhsa_kernel {KN}_kernel")
    g.l += ["  .amdhsa_next_free_vgpr 256", "  .amdhsa_next_free_sgpr 102", "  .amdhsa_accum_offset 256",
            "  .amdhsa_group_segment_fixed_size 0", "  .amdhsa_kernarg_size 56", "  .amdhsa_user_sgpr_count 2",
            "  .amdhsa_user_sgpr_kernarg_segment_ptr 1", "  .amdhsa_system_sgpr_workgroup_id_x 1",
            "  .amdhsa_float_denorm_mode_32 3"]
    g(".end_amdhsa_kernel")
    t = g.text()
    if stamps and opt.get("probe", 1):
        t = t.replace("; @launch grid=(256,1,1) block=(512,1,1) lds=163840",
                      f"; @launch kernel={KN}_kernel grid=(256,1,1) block=(512,1,1) lds=163840\n; @launch kernel=probe_kernel grid=(1,1,1) block=(64,1,1) lds=0")
        a = [".p2align 8", ".globl probe_kernel", ".type probe_kernel,@function", "probe_kernel:",
             "s_memrealtime s[8:9]", "s_load_dwordx2 s[4:5], s[0:1], 48", "s_waitcnt lgkmcnt(0)",
             f"s_add_u32 s4, s4, {STAMP_OFF}", "s_addc_u32 s5, s5, 0", "s_mov_b32 s6, 0x100000", "s_mov_b32 s7, 0x20000",
             "v_mov_b32 v2, s8", "v_mov_b32 v3, s9", "v_mov_b32 v1, 120", "buffer_store_dwordx2 v[2:3], v1, s[4:7], 0 offen", "s_endpgm"]
        t = t.replace('.section .rodata,"a"', "\n".join(a) + '\n.section .rodata,"a"')
        t += ".p2align 6\n.amdhsa_kernel probe_kernel\n  .amdhsa_next_free_vgpr 16\n  .amdhsa_next_free_sgpr 32\n  .amdhsa_accum_offset 16\n" \
             "  .amdhsa_group_segment_fixed_size 0\n  .amdhsa_kernarg_size 56\n  .amdhsa_user_sgpr_count 2\n" \
             "  .amdhsa_user_sgpr_kernarg_segment_ptr 1\n  .amdhsa_system_sgpr_workgroup_id_x 1\n.end_amdhsa_kernel\n"
    return t


def parse(args):
    opt = {}
    for a in args:
        k, v = a.split("=", 1)
        try:
            v = int(v)
        except ValueError:
            v = v.replace("+", " ")
        opt[k] = v
    return opt


if __name__ == "__main__":
    open(sys.argv[1], "w").write(build(parse(sys.argv[2:])))
```

```python
import sys

KN = "standalone__conformer_conv_module__speech"
STAMP_OFF = 255 * 1024 * 1024

HEAD = """; Kernarg layout for this problem (56 bytes, ptrs only, base s[0:1]):
;   offset   0: d_in[0] x  shape=(2, 16000, 512) dtype=bfloat16 strides=(16384000, 1024, 2) contiguous=True
;   offset   8: d_in[1] w_pw1  shape=(512, 1024) dtype=bfloat16 strides=(2048, 2) contiguous=True
;   offset  16: d_in[2] dw  shape=(5, 512) dtype=bfloat16 strides=(1024, 2) contiguous=True
;   offset  24: d_in[3] w_pw2  shape=(512, 512) dtype=bfloat16 strides=(1024, 2) contiguous=True
; Override launch geometry by editing the next line (default: block=256,
"""

def ACC(i, j): return 4 * (i * 8 + j)
VH = 128
VWX, VWY, VWZ = 160, 176, 192
VXR = 208
vDc, vW0, vW1, vD1 = 240, 242, 243, 244
def DW(i, h, p): return 160 + 32 * (p % 2) + 8 * i + 4 * h
def DX(n, h): return 224 + 8 * (n % 3) + 4 * h
vX0, vX1, vS = 248, 249, 250
vG8, vM0, vM1, vEX = 251, 252, 253, 254
def AF(ct, r): return 192 + 16 * ct + 4 * r
def TP(ct, r, q):
    n = 4 * ct + r
    return (160 + 6 * n if n < 5 else 224 + 6 * (n - 5)) + q + 1
def YY(ct, r, j): return 64 + 32 * ct + 8 * r + j
VEXP = 160
VTMP, VIMP = 32, 40
CTOFF = 0x140000
sX, sW1, sW2, sO, sDW, sWS, sDBG, sWE = 4, 8, 12, 16, 20, 24, 28, 32
sW64, sW64b, sW128, sSb = 36, 37, 38, 39
sRing = 44
sT0, sT1, sT2, sT3 = 46, 47, 48, 49
sC, sCi = 50, 51
sWv, sW, sTile, sTau, sWg, sGrp = 52, 53, 54, 55, 56, 57
sWP = 60
sWq = 58
sK = 66
sSl = 96
sCode = 16
KA = 76
QORD = (1, 2, 0, 3)
WPOFF = 1 << 20

OOB = 0x7f000000
SCR = 7 * 16384


class Gen:
    def __init__(self, opt):
        self.l = []
        self.opt = opt
        self.lg = []
        self.vm = []
        self.bars = []

    def __call__(self, s=""):
        for line in s.split("\n"):
            self.l.append(line if line.endswith(":") or line.startswith(".") or line.startswith(";") else "    " + line)

    def text(self):
        return "\n".join(self.l) + "\n"

    def ds(self, text, regs=(), tag=None):
        if self.opt.get("nosw") and tag == "sw":
            return
        if len(self.lg) >= 15:
            self("s_waitcnt lgkmcnt(11)"); self.lg = self.lg[-11:]
        self(text); self.lg.append((set(regs), tag))

    def vmem(self, text, regs=(), tag=None):
        abl = str(self.opt.get("abl", ""))
        if ("s" in abl and tag == "clr" and "dwordx4" in text) or ("c" in abl and tag == "clr" and "dwordx2" in text) or \
           ("p" in abl and regs == [22]) or ("d" in abl and regs == [10]) or ("t" in abl and tag == "task"):
            return
        self(text); self.vm.append((set(regs), tag))

    def _idx(self, q, regs, tag):
        idx = -1
        for n, (r, t) in enumerate(q):
            if (regs and (r & set(regs))) or (tag is not None and t == tag):
                idx = n
        return idx

    def wait(self, regs=(), lg=None, vm=None):
        parts = []
        i = self._idx(self.vm, regs, vm)
        if i >= 0:
            n = min(len(self.vm) - 1 - i, 63)
            parts.append(f"vmcnt({n})"); self.vm = self.vm[len(self.vm) - n:] if n else []
        i = self._idx(self.lg, regs, lg)
        if i >= 0:
            n = min(len(self.lg) - 1 - i, 15)
            parts.append(f"lgkmcnt({n})"); self.lg = self.lg[len(self.lg) - n:] if n else []
        if parts:
            self("s_waitcnt " + " ".join(parts))

    def drain(self, vm=False, lg=False):
        parts = []
        if vm and self.vm:
            parts.append("vmcnt(0)"); self.vm = []
        if lg and self.lg:
            parts.append("lgkmcnt(0)"); self.lg = []
        if parts:
            self("s_waitcnt " + " ".join(parts))

    def barrier(self, name):
        self.point(name + "_")
        self(f"s_barrier"); self.bars.append(name)
        self.point(name)

    def point(self, name):
        pts = self.opt.get("pts")
        if pts and name in pts.split():
            n = pts.split().index(name) + 1
            self(f"s_mem{'real' if self.opt['stamps'] == 3 else ''}time s[{76+2*n}:{77+2*n}]")

    def stamp(self, n):
        if self.opt.get("pts"):
            return self.point(f"s{n}")
        if self.opt.get("stamps") in (1, 3):
            self(f"s_mem{'real' if self.opt['stamps'] == 3 else ''}time s[{76+2*n}:{77+2*n}]")
            self("s_waitcnt lgkmcnt(0)")
            self.lg = []


def R(a, n=4): return f"v[{a}:{a+n-1}]"
def rs(a, n=4): return list(range(a, a + n))


def wreg(i, h, p, kind="P"):
    if i < 2:
        return (VWX if p % 2 == 0 else VWY) + 8 * i + 4 * h
    return VWZ + 8 * (i - 2) + 4 * h


def xreg(j, h): return VXR + 8 * (j % 4) + 4 * h


def kconst(kind, ab, m):
    return 16 * m * 2048 + ab * 1024 - m * 1024


def set_kconst(g, kind):
    return [lambda ab=ab, m=m: g(f"s_mov_b32 s{sK + 4*ab + m}, {kconst(kind, ab, m)}") for ab in range(2) for m in range(4)]


class Stream:
    def __init__(self, kind, arg):
        self.kind, self.arg = kind, arg

    def advance(self, g, kp, fresh=False):
        g(f"v_add_u32 v{vDc}, {kp * 131072 + self.arg * 256}, v{vD1}")

    def dma(self, g, ab, m, tag, fl=""):
        if g.opt.get("nodma"):
            return
        srd = sW1
        g.vmem(f"buffer_load_dwordx4 v{vDc}, s[{srd}:{srd+3}], s{sK + 4*ab + m} offen offset:{m*1024} {fl} lds", tag=tag)


def set_m0(g, ab):
    g(f"s_mov_b32 m0, s{sRing + ab}")


def tr_read(g, i, h, q, p, tag, kind="P"):
    d = wreg(i, h, p, kind) + 2 * q
    off, base = (i >> 1) * 4096 + h * 2048 + q * 256, vW0 + (i & 1)
    g.ds(f"ds_read_b64_tr_b16 {R(d, 2)}, v{base} offset:{off}", rs(d, 2), tag)


def part_reads(kind, ab):
    return [(i, h, q) for i in ((0, 1) if ab == 0 else (3, 2)) for h in range(2) for q in range(2)]


def x_read(g, kind, kp, j, h, d=None):
    if d is None:
        d = xreg(j, h)
    if kind == "P":
        off, base = (kp * 8 + j) * 2048 % 65536, vX0 + h
    else:
        off = (1 - (kp >> 1) % 2) * 32768 + (kp & 1) * 16384 + j * 2048 + h * 1024
        base = vX0 + (kp >> 2)
    g.ds(f"ds_read_b128 {R(d)}, v{base} offset:{off}", rs(d))


def chain_order(jp):
    j0, j1 = 2 * jp, 2 * jp + 1
    if jp % 2 == 0:
        return [(j0, 0), (j0, 1), (j1, 1), (j1, 0), (j1, 2), (j1, 3), (j0, 3), (j0, 2)]
    return [(j0, 2), (j0, 3), (j1, 3), (j1, 2), (j1, 0), (j1, 1), (j0, 1), (j0, 0)]


def mfma(g, acc, A, B, first):
    g.wait(regs=rs(A) + rs(B))
    c = "0" if first else R(acc)
    g(f"v_mfma_f32_16x16x32_bf16 {R(acc)}, {R(A)}, {R(B)}, {c}")


def start_a(g, own):
    it = [lambda i=i, h=h, q=q: tr_read(g, i, h, q, 0, ("ra", 0), own.kind) for i, h, q in part_reads(own.kind, 0)]
    it.append(lambda: own.advance(g, 1, fresh=True))
    it.append(lambda: set_m0(g, 0))
    it += [None] * g.opt.get("sgap", 3)
    it.append(lambda: g.wait(lg=("ra", 0)))
    for m in range(4):
        it.append(lambda m=m: own.dma(g, 0, m, ("a", 1)))
        it += [None] * (g.opt.get("sgap", 3) - 1)
    return it


def start_x(g, own):
    return [lambda j=j, h=h: x_read(g, own.kind, 0, j, h) for j in range(2) for h in range(2)]


def start_b(g, own):
    return [lambda i=i, h=h, q=q: tr_read(g, i, h, q, 0, ("rb", 0), own.kind) for i, h, q in part_reads(own.kind, 1)] + \
           [lambda: set_m0(g, 1)]


def run(items):
    for f in items:
        if f: f()


def mfma_phase(g, own, nxt, hname, xbar=None, first=False, extra=None):
    o = g.opt
    kind = own.kind
    extra = extra or {}

    def st(p):
        return (own, p) if p < 8 else ((nxt, 0) if (nxt and p == 8) else (None, 0))

    for kp in range(8):
        gaps = {m: [] for m in range(64)}
        late = (first and o.get("late0", 1))
        for jp in range(4):
            nkp, njp = (kp, jp + 1) if jp < 3 else (kp + 1, 0)
            if nkp > 7:
                continue
            slots = [16 * jp + n for n in ((0, 1, 2, 3) if (jp % 2 or (late and jp)) else (0, 1, 4, 5))]
            for n in range(4):
                j, h = 2 * njp + n // 2, n % 2
                def f(nkp=nkp, j=j, h=h, n=n, jp=jp):
                    if n == 0 and jp == 3 and xbar:
                        xbar(nkp)
                    x_read(g, kind, nkp, j, h)
                gaps[slots[n]].append(f)
            gaps[16 * jp + 15].append(lambda njp=njp: g.wait(regs=rs(xreg(2 * njp, 0), 16)))
        if kind == "P" and kp in (3, 7):
            k = "0x10000" if kp == 3 else "0xffff0000"
            gaps[40].append(lambda k=k: g(f"v_add_u32 v{vX0}, {k}, v{vX0}"))
            gaps[41].append(lambda k=k: g(f"v_add_u32 v{vX1}, {k}, v{vX1}"))
        s_, p_ = st(kp + 1)
        if s_:
            gaps[2].append(lambda kp=kp: g.wait(lg=("rb", kp)))
            for m, at in enumerate((3, 7, 11, 14)):
                gaps[at].append(lambda m=m, s_=s_, kp=kp: s_.dma(g, 1, m, ("b", kp + 1)))
        if kp < 7:
            a0 = 37 if late else 21
            adv, am0, aw, ad = (45, 46, 49, (50, 54, 58, 61)) if late else (29, 30, 34, (35, 39, 43, 46))
            if not o.get("novm"):
                gaps[a0 - 1].append(lambda kp=kp: g.wait(vm=("a", kp + 1)))
            for n, (i, h, q) in enumerate(part_reads(kind, 0)):
                gaps[a0 + n].append(lambda i=i, h=h, q=q, kp=kp: tr_read(g, i, h, q, kp + 1, ("ra", kp + 1), kind))
            s_, p_ = st(kp + 2)
            if s_:
                gaps[adv].append(lambda s_=s_, p_=p_: s_.advance(g, p_))
                gaps[am0].append(lambda: set_m0(g, 0))
                gaps[aw].append(lambda kp=kp: g.wait(lg=("ra", kp + 1)))
                for m in range(4):
                    gaps[ad[m]].append(lambda m=m, s_=s_, kp=kp: s_.dma(g, 0, m, ("a", kp + 2)))
                gaps[62].append(lambda: set_m0(g, 1))
            if not o.get("novm"):
                gaps[52].insert(0, lambda kp=kp: g.wait(vm=("b", kp + 1)))
            for n, (i, h, q) in enumerate(part_reads(kind, 1)):
                gaps[53 + n].insert(0, lambda i=i, h=h, q=q, kp=kp: tr_read(g, i, h, q, kp + 1, ("rb", kp + 1), kind))
        if kp == 7 and nxt:
            def fa():
                g.wait(vm=("a", 8), lg="sw")
                g.barrier(hname + "a")
            gaps[o.get("handa", 20) if not late else 36].append(fa)
            def fb():
                g.drain(vm=True, lg=True)
                g.barrier(hname + "b")
            gaps[o.get("handb", 50)].append(fb)
        if kp == 0 and o.get("prio", 1):
            gaps[o.get("prioat", 13)].append(lambda: g("s_setprio 2"))
        m = 0
        for jp in range(4):
            for (j, i) in chain_order(jp):
                for h in range(2):
                    mfma(g, ACC(i, j), wreg(i, h, kp, kind), xreg(j, h), kp == 0 and h == 0)
                    for f in gaps[m]:
                        f()
                    if (kp, m) in extra:
                        extra[(kp, m)]()
                    m += 1


class Direct:
    def __init__(self, idx):
        self.idx, self.kind = idx, "PPPGG"[idx]

    def soff(self, g, kp, half):
        src = kp if self.kind == "P" else QORD[kp >> 1] * 2 + (kp & 1)
        g(f"s_mov_b32 s{sT0 + half}, {self.idx * 262144 + src * 8192 + half * 4096}")

    early7 = False
    merge = False

    def wr(self, i, h, kp):
        return VH + 8 * i + 4 * h if (self.merge and kp == 7) else DW(i, h, kp)

    def load(self, g, kp, f):
        if g.opt.get("nodma"):
            return
        d = self.wr(f >> 1, f & 1, kp)
        g.vmem(f"buffer_load_dwordx4 {R(d)}, v{vS}, s[{sWP}:{sWP+3}], s{sT0 + (f >> 2)} offen offset:{(f & 3) * 1024} {g.opt.get('wpfl', 'sc1')}".rstrip(), rs(d))

    def start_w(self, g):
        it = [lambda: self.soff(g, 0, 0), lambda: self.soff(g, 0, 1)]
        for f in range(8):
            it += [lambda f=f: self.load(g, 0, f), None, None]
        return it + [lambda: self.soff(g, 1, 0), lambda: self.soff(g, 1, 1)]

    def start_x(self, g):
        return [lambda j=j, h=h: x_read(g, self.kind, 0, j, h, DX(j, h)) for j in range(2) for h in range(2)]


def direct_phase(g, own, xbar=None, extra=None, reset=False):
    o = g.opt
    kind = own.kind
    extra = extra or {}
    wat = [int(v) for v in str(o.get("wat", "2 5 10 13 18 21 26 29")).split()]
    g("s_setprio 1")
    seq = [(n // 8, n % 8) for n in range(64)]
    if own.merge:
        seq = seq[:48] + [(6 + n % 2, n // 2) for n in range(16)]
    for blk in range(8):
        gaps = {m: [] for m in range(64)}
        for t in range(8):
            n = blk * 8 + t + 2
            if n < 64:
                for h in range(2):
                    def f(n=n, h=h):
                        if h == 0 and xbar:
                            xbar(*seq[n])
                        x_read(g, kind, seq[n][0], seq[n][1], h, DX(n, h))
                    gaps[8 * t + h].append(f)
            if n - 1 < 64:
                r = rs(DX(n - 1, 0), 8)
                if seq[n - 1][1] == 0 and not o.get("novm"):
                    r = r + rs(own.wr(0, 0, seq[n - 1][0]), 16 if t == 7 else 32)
                gaps[8 * t + 7].append(lambda r=r: g.wait(regs=r))
        if not o.get("novm"):
            gaps[3].append(lambda blk=blk: g.wait(regs=rs(own.wr(2, 0, seq[8 * blk][0]), 16)))
        if kind == "P" and blk == 3:
            gaps[43].append(lambda: g(f"v_add_u32 v{vX0}, 0x10000, v{vX0}"))
            gaps[44].append(lambda: g(f"v_add_u32 v{vX1}, 0x10000, v{vX1}"))
        if reset and blk == 7:
            gaps[43].append(lambda: g(f"v_add_u32 v{vX0}, 0xffff0000, v{vX0}"))
            gaps[44].append(lambda: g(f"v_add_u32 v{vX1}, 0xffff0000, v{vX1}"))
        if blk < (6 if own.merge else 7):
            for f in range(8):
                gaps[wat[f]].append(lambda f=f, blk=blk: own.load(g, blk + 1, f))
        if own.merge and blk == 4 and not own.early7:
            gaps[30].append(lambda: own.soff(g, 7, 0))
            gaps[31].append(lambda: own.soff(g, 7, 1))
            for f in range(8):
                gaps[min(wat[f] + 32, 58)].append(lambda f=f: own.load(g, 7, f))
        if blk < (5 if own.merge else 6):
            gaps[59].append(lambda blk=blk: own.soff(g, blk + 2, 0))
            gaps[60].append(lambda blk=blk: own.soff(g, blk + 2, 1))
        if blk == 3:
            gaps[36].append(lambda: g("s_setprio 2"))
        m = 0
        g.point(f"b{own.idx}{blk}")
        for t in range(8):
            kp, j = seq[blk * 8 + t]
            for i in (range(4) if t % 2 == 0 else range(3, -1, -1)):
                for h in range(2):
                    if o.get("novm"):
                        g.vm = [(set(), tg) for _, tg in g.vm]
                    mfma(g, ACC(i, j), own.wr(i, h, kp), DX(blk * 8 + t, h), kp == 0 and h == 0)
                    for f in gaps[m]:
                        f()
                    if (blk, m) in extra:
                        extra[(blk, m)]()
                    m += 1


def lane(g, v):
    g(f"v_mbcnt_lo_u32_b32 v{v}, -1, 0")
    g(f"v_mbcnt_hi_u32_b32 v{v}, -1, v{v}")


class Mixer:
    def __init__(self, g):
        self.g, self.q, self.every, self.n = g, [], 2, 0
        self.q2, self.n2 = [], 0
        self.q3, self.n3 = [], 0

    def __call__(self, s):
        self.g(s)
        self.n += 1
        self.n3 += 1
        if self.q3 and self.n3 % self.ev3 == 4:
            self.q3.pop(0)()
        if self.q2:
            self.n2 += 1
            if self.n2 >= self.g.opt.get("wdelay", 8):
                self.q2.pop(0)(); self.n2 = 0
        if self.q and self.n % self.every == 0:
            f = self.q.pop(0)
            if f: f()

    def flush(self):
        while self.q2:
            self.q2.pop(0)()
        self.n2 = 0
        while self.q:
            f = self.q.pop(0)
            if f: f()


def glu(e, pairs):
    if e.g.opt.get("noE"): return
    for a, b in pairs: e(f"v_mul_f32 v{b}, s{sC}, v{b}")
    for a, b in pairs: e(f"v_exp_f32 v{b}, v{b}")
    for a, b in pairs: e(f"v_fma_f32 v{b}, v{b}, s{sCi}, s{sCi}")
    for a, b in pairs: e(f"v_rcp_f32 v{b}, v{b}")
    for a, b in pairs: e(f"v_mul_f32 v{a}, v{a}, v{b}")


HFL = ["sc0 sc1"]
def halo_loads(ph):
    return [f"buffer_load_dwordx4 {R(VIMP + 4*ct)}, v{vG8}, s[{sWS}:{sWS+3}], s{sW128} offen offset:{ph*512 + ct*64} {HFL[0]}" for ct in range(2)]


def halo_check(g, ph):
    lab = f"L_poll{ph}"
    g(f"s_mov_b32 s{sT2}, {g.opt.get('spin', 400000)}")
    g.wait(regs=rs(VIMP, 8))
    g(f"{lab}:")
    g(f"v_max3_u32 v{VTMP}, v{VIMP}, v{VIMP+1}, v{VIMP+2}")
    g(f"v_max3_u32 v{VTMP+1}, v{VIMP+3}, v{VIMP+4}, v{VIMP+5}")
    g(f"v_max3_u32 v{VTMP}, v{VTMP}, v{VIMP+6}, v{VIMP+7}")
    g(f"v_max_u32 v{VTMP}, v{VTMP}, v{VTMP+1}")
    g(f"v_cmp_eq_u32 vcc, -1, v{VTMP}")
    g(f"s_sub_u32 s{sT2}, s{sT2}, 1")
    g(f"s_cbranch_scc1 {lab}_ok")
    g(f"s_cbranch_vccz {lab}_ok")
    for t in halo_loads(ph):
        g(t)
    g("s_waitcnt vmcnt(0)")
    g(f"s_branch {lab}")
    g(f"{lab}_ok:")


def conv_mfma(ct, r, half):
    return f"v_mfma_f32_16x16x32_bf16 {R(YY(ct, r, 4*half))}, {R(AF(ct, r))}, {R(TP(ct, r, 2*half - 1))}, 0"


def e_phase(g, ph, dst, pre=(), after_tile=None, glu_tile=None, silu_tile=None, warm=(), tw=3):
    o = g.opt
    halo = o.get("halo", 1)
    noE = o.get("noE")
    e = Mixer(g)
    prio = 0
    g("s_setprio 0")
    g(f"s_movk_i32 s{sT3}, {ph * 8192}")
    g("s_nop 5")
    el = [(ct, r) for ct in range(2) for r in range(4)]
    for ct, r in el:
        e.q.append(lambda ct=ct, r=r: g.vmem(
            f"buffer_load_dwordx4 {R(AF(ct, r))}, v{vM0}, s[{sDW}:{sDW+3}], s{sT3} offen offset:{ct*1024 + r*64} sc1", rs(AF(ct, r))))
    q0 = e.q; e.q = []
    e.q3 = list(warm); e.ev3 = 12 if len(e.q3) < 40 else 6
    e.every = 8
    for n_, j in enumerate((3, 0, 1, 2, 4, 5, 6, 7)):
        glu(e, [(ACC(ct, j) + r, ACC(2 + ct, j) + r) for ct in range(2) for r in range(4)])
        if n_ == 0:
            if halo:
                for n, (ct, r) in enumerate(el):
                    e(f"v_cvt_pk_bf16_f32 v{VEXP+n}, v{ACC(ct, 3)+r}, 0")
                for ct in range(2):
                    g.vmem(f"buffer_store_dwordx4 {R(VEXP+4*ct)}, v{vEX}, s[{sWE}:{sWE+3}], s{sW128} offen offset:{ph*512 + ct*64} {HFL[0]}")
            e.q = q0
        if glu_tile:
            glu_tile(e, n_)
    e.flush()
    if not noE:
        def pack(q): return [f"v_cvt_pk_bf16_f32 v{TP(ct, r, q)}, v{ACC(ct, 2*q)+r}, v{ACC(ct, 2*q+1)+r}" for ct, r in el]
        for t in pack(3) + pack(0): e(t)
        for ct, r in el:
            e(f"v_mov_b32_dpp v{TP(ct, r, -1)}, v{TP(ct, r, 3)} row_shr:1 row_mask:0xf bank_mask:0xf bound_ctrl:1")
        p1, p2 = pack(1), pack(2)
        fill = [t for n in range(8) for t in (p1[n], p2[n])]
        for t in fill[:4]: e(t)
        g.wait(regs=rs(192, 32))
        g(f"s_setprio {o.get('cprio', 3)}")
        for n, (ct, r) in enumerate(el):
            g(conv_mfma(ct, r, 0))
            for t in fill[2*n + 4:2*n + 6]: e(t)
            if n == 5: g("s_nop 0")
        g("s_setprio 0")
    if halo and o.get("ti", -1) < 0:
        for ct, t in enumerate(halo_loads(ph)):
            g.vmem(t, rs(VIMP + 4 * ct))
    while e.q3:
        e.q3.pop(0)()
    ta = o.get("ta", 6)
    ti, tc = o.get("ti", -1), o.get("tc", 3)
    for j in range(8):
        if silu_tile:
            silu_tile(e, j)
        if j == tw and warm:
            g("s_waitcnt lgkmcnt(0)"); g.lg = []
        if j == ti:
            if halo:
                for ct, t in enumerate(halo_loads(ph)):
                    g.vmem(t, rs(VIMP + 4 * ct))
        if j == ta:
            g("s_setprio 1"); prio = 1
            e.q += list(pre); e.every = 2; e.n = 0
        ys = [YY(ct, r, j) for ct, r in el]
        mm = []
        if j == tc and not noE:
            if halo:
                halo_check(g, ph)
            g(f"s_mov_b32 vcc_lo, {0x80008000 if halo else 0}")
            g(f"s_mov_b32 vcc_hi, {0x80008000 if halo else 0}")
            for n, (ct, r) in enumerate(el):
                e(f"v_cndmask_b32_dpp v{TP(ct, r, 4)}, v{TP(ct, r, 0)}, v{VIMP+n}, vcc row_shl:1 row_mask:0xf bank_mask:0xf bound_ctrl:1")
            mm = [conv_mfma(ct, r, 1) for ct, r in el]
            g(f"s_setprio {o.get('cprio', 3)}")
        if not noE:
            for n, y in enumerate(ys):
                if mm: g(mm[n])
                e(f"v_exp_f32 v{VTMP+n}, v{y}")
            if mm: g(f"s_setprio {prio}")
            for n, y in enumerate(ys): e(f"v_fma_f32 v{VTMP+n}, v{VTMP+n}, s{sC}, s{sC}")
            for n, y in enumerate(ys): e(f"v_rcp_f32 v{VTMP+n}, v{VTMP+n}")
            for n, y in enumerate(ys): e(f"v_mul_f32 v{y}, v{y}, v{VTMP+n}")
        for n in range(4): e(f"v_cvt_pk_bf16_f32 v{dst+4*j+n}, v{ys[2*n]}, v{ys[2*n+1]}")
        if after_tile:
            after_tile(e, j)
    e.flush()


vG0, vG1, vG2 = vM0, vM1, vEX


def outv_addr(g, t=144):
    lane(g, t)
    g(f"s_lshl_b32 s{sT2}, s{sWv}, 7")
    g(f"v_bfe_u32 v{t+1}, v{t}, 1, 3")
    g(f"v_lshl_add_u32 v{vG0}, v{t+1}, 14, s{sT2}")
    g(f"v_lshrrev_b32 v{t+2}, 4, v{t}")
    g(f"v_lshl_add_u32 v{vG0}, v{t+2}, 5, v{vG0}")
    g(f"v_and_b32 v{t+2}, 1, v{t}")
    g(f"v_lshl_add_u32 v{vG0}, v{t+2}, 4, v{vG0}")
    if g.opt.get("fakeo") == 8:
        g(f"v_lshrrev_b32 v{t+1}, 3, v{t}\nv_lshl_add_u32 v{vG0}, v{t+1}, 14, s{sT2}\nv_and_b32 v{t+2}, 7, v{t}\nv_lshl_add_u32 v{vG0}, v{t+2}, 4, v{vG0}")
    if g.opt.get("fakeo") == 4:
        g(f"v_bfe_u32 v{t+1}, v{t}, 2, 3\nv_lshl_add_u32 v{vG0}, v{t+1}, 14, s{sT2}\nv_and_b32 v{t+2}, 3, v{t}\nv_lshl_add_u32 v{vG0}, v{t+2}, 4, v{vG0}\nv_lshrrev_b32 v{t+2}, 5, v{t}\nv_lshl_add_u32 v{vG0}, v{t+2}, 6, v{vG0}")
    g(f"v_cmp_eq_u32 vcc, 0, v{t+1}")
    g(f"v_mov_b32 v{vG2}, {OOB}")
    g(f"v_add_u32 v{vG1}, 8192, v{vG0}")
    g(f"v_cndmask_b32 v{vG2}, v{vG0}, v{vG2}, vcc")
    g(f"s_movk_i32 s{sT3}, 4096")
    g(f"s_mov_b32 vcc_lo, 0x55555555")
    g(f"s_mov_b32 vcc_hi, 0x55555555")


def outv_items(g, j, n, fl, mode=2, inflight=None):
    def T(i, d): return ACC(i >> 1, j) + 2 * (i & 1) + d
    it = []
    for i in range(4):
        for d in range(2):
            a = ACC(i, j) + 2 * d
            it.append(f"v_cvt_pk_bf16_f32 v{T(i, d)}, v{a}, v{a+1}")
    for d in range(2):
        for i in (0, 2):
            it.append(f"v_permlane16_swap_b32 v{T(i, d)}, v{T(i+1, d)}")
    for d in range(2):
        for i in (0, 1):
            it.append(f"v_permlane32_swap_b32 v{T(i, d)}, v{T(i+2, d)}")
    dpp = "quad_perm:[1,0,3,2] row_mask:0xf bank_mask:0xf"
    so = "0" if j < 4 else f"s{sT3}"
    for hb in ((0, 1) if n % 2 == 0 else (1, 0)):
        S = ACC(2 + hb, j)
        for k in (0, 2, 1, 3):
            it.append(f"v_cndmask_b32_dpp v{S+k}, v{ACC(1-hb, j)+k}, v{ACC(hb, j)+k}, vcc {dpp}")
        if hb == n % 2:
            it.append("s_not_b64 vcc, vcc")
        va = vG1 if hb else (vG2 if j < 2 else vG0)
        if inflight is not None:
            it.append(f"s_waitcnt vmcnt({inflight})")
        it.append(f"buffer_store_dwordx4 {R(S)}, v{va}, s[{sO}:{sO+3}], {so} offen offset:{(j % 4)*1024} {fl}".rstrip())
    if mode == 1: it = [t for t in it if not t.startswith("buffer")]
    if mode == 3: it = [t for t in it if t.startswith("buffer")]
    return [(lambda t=t: g.vmem(t) if t.startswith("buffer") else g(t)) for t in it]


def out_interleave(g, ex, merge, per, ntiles, fl, mode=2):
    pend = []
    step = 16 if merge else 8
    def f(m):
        if m % step == 7 and m >= step and m // step - 1 < ntiles:
            j = m // step - 1
            pend.extend(outv_items(g, j, j, fl, mode))
        for _ in range(per[m % len(per)]):
            if pend: pend.pop(0)()
    for m in range(8 * step):
        mm = 512 - 8 * step + m
        assert (mm // 64, mm % 64) not in ex
        ex[(mm // 64, mm % 64)] = (lambda m=m: f(m))
    return pend


def srd(g, d, lo, size):
    g(f"s_mov_b32 s{d}, s{lo}")
    g(f"s_mov_b32 s{d+1}, s{lo+1}")
    g(f"s_mov_b32 s{d+2}, {size}")
    g(f"s_mov_b32 s{d+3}, 0x20000")


def g_addr(g):
    g(f"v_subrev_u32 v{vX1}, s{sSb}, v{vS}")
    g(f"v_add_u32 v{vX0}, 98304, v{vX1}")
    g(f"v_add_u32 v{vX1}, 32768, v{vX1}")


def build(opt):
    g = Gen(opt)
    HFL[0] = opt.get("hfl", "sc0 sc1")
    halo = opt.get("halo", 1)
    xfl = opt.get("xflag", "nt")
    win = opt.get("win", 2)
    rbar = opt.get("rbar", 15)
    stamps = opt.get("stamps")
    kx, kw1, kdw, kw2, kout, kdbg, kws = KA, KA + 2, KA + 4, KA + 6, KA + 8, KA + 10, KA + 12
    g.l.append(HEAD.rstrip("\n"))
    g("; @launch grid=(256,1,1) block=(512,1,1) lds=163840")
    g('.amdgcn_target "amdgcn-amd-amdhsa--gfx950"')
    g(".text")
    g(f".globl {KN}_kernel")
    g(".p2align 8")
    g(f".type {KN}_kernel,@function")
    g(f"{KN}_kernel:")
    g("s_cmp_ge_u32 s2, 256")
    g("s_cbranch_scc1 L_end")
    g(f"s_load_dwordx8 s[{KA}:{KA+7}], s[0:1], 0")
    g(f"s_load_dwordx4 s[{KA+8}:{KA+11}], s[0:1], 32")
    g(f"s_load_dwordx2 s[{KA+12}:{KA+13}], s[0:1], 48")
    if stamps:
        g("s_memrealtime s[74:75]")
        g(f"s_mem{'real' if stamps == 3 else ''}time s[100:101]")
    g(f"v_readfirstlane_b32 s{sWv}, v0")
    g(f"s_mov_b32 s{sWg}, s2")
    if opt.get("remap", 1):
        g(f"s_and_b32 s3, s2, 7")
        g(f"s_lshr_b32 s2, s2, 3")
        g(f"s_lshl_b32 s3, s3, 5")
        g(f"s_add_u32 s2, s2, s3")
    g(f"s_mov_b32 s{sTile}, s2")
    g(f"s_and_b32 s{sTau}, s2, 127")
    g(f"s_mul_i32 s2, s2, 128000")
    g(f"s_lshr_b32 s{sWv}, s{sWv}, 6")
    g(f"s_and_b32 s{sW}, s{sWv}, 3")
    g("v_and_b32 v0, 63, v0")
    g(f"s_cmp_lt_u32 s{sWv}, 4")
    g("s_cbranch_scc1 L_startA")

    P = [Stream("P", ph) for ph in range(2)]
    P1, P2, P3, GA, GB = (Direct(n) for n in range(5))
    d1 = opt.get('d1', 1)

    g(f"v_lshrrev_b32 v12, 3, v0")
    g(f"v_and_b32 v13, 7, v0")
    g(f"v_lshrrev_b32 v14, 4, v0")
    g(f"v_xor_b32 v14, v14, v13")
    g(f"s_lshl_b32 s{sT3}, s{sW}, 11")
    g(f"v_lshl_add_u32 v14, v14, 4, s{sT3}")
    g(f"v_lshl_add_u32 v16, v12, 13, v14")
    g(f"v_xor_b32 v17, 0x10040, v16")
    g(f"v_add_u32 v19, 1024, v17")
    g(f"s_cmp_eq_u32 s{sTau}, 0")
    g(f"s_cselect_b32 s{sT3}, 1024, 0")
    g(f"v_cmp_gt_u32 vcc, s{sT3}, v16")
    g(f"v_mov_b32 v15, {OOB}")
    g(f"s_cmp_eq_u32 s{sTau}, 127")
    g(f"v_cndmask_b32 v16, v16, v15, vcc")
    g(f"s_mov_b32 s{sX+3}, 0x20000")
    g(f"s_cselect_b32 s{sX+2}, {127*1024}, s{sX+3}")
    g(f"v_add_u32 v18, 1024, v16")
    g(f"s_lshl_b32 s{sT3}, s{sW}, 12")
    g("s_waitcnt lgkmcnt(0)")
    g(f"s_add_u32 s{sX}, s{kx}, s2")
    g(f"s_addc_u32 s{sX+1}, s{kx+1}, 0")
    g(f"s_sub_u32 s{sX}, s{sX}, 2048")
    g(f"s_subb_u32 s{sX+1}, s{sX+1}, 0")
    if opt.get("hd") == 1: g.stamp(8)

    def d1_addr():
        g(f"v_lshrrev_b32 v1, 5, v0")
        g(f"v_lshlrev_b32 v1, 1, v1")
        g(f"v_and_b32 v2, 3, v0")
        g(f"v_xor_b32 v1, v1, v2")
        g(f"s_lshl_b32 s{sW64}, s{sW}, 6")
        g(f"v_lshl_add_u32 v1, v1, 4, s{sW64}")
        g(f"v_lshrrev_b32 v3, 2, v0")
        g(f"v_lshl_add_u32 v{vD1}, v3, 11, v1")
        g(f"s_lshl_b32 s{sRing}, s{sW}, 13")
        g(f"s_add_u32 s{sRing}, s{sRing}, 131072")
        g(f"s_add_u32 s{sRing+1}, s{sRing}, 4096")
        for f in set_kconst(g, "P"): f()

    def ct_srd():
        g(f"s_lshl_b32 s{sT0}, s{sW}, 11")
        g(f"s_add_u32 s{sT0}, s{sT0}, {CTOFF}")
        g(f"s_add_u32 s{sDW}, s{sWq}, s{sT0}")
        g(f"s_addc_u32 s{sDW+1}, s{sWq+1}, 0")
        g(f"s_mov_b32 s{sDW+2}, 32768")
        g(f"s_mov_b32 s{sDW+3}, 0x20000")

    def common(role):
        srd(g, sW2, kw2, 524288)
        g(f"s_add_u32 s{sO}, s{kout}, s2")
        g(f"s_addc_u32 s{sO+1}, s{kout+1}, 0")
        g(f"s_sub_u32 s{sO}, s{sO}, 2048")
        g(f"s_subb_u32 s{sO+1}, s{sO+1}, 0")
        g(f"s_mov_b32 s{sO+2}, {127*1024}")
        g(f"s_mov_b32 s{sO+3}, 0x20000")
        srd(g, sDBG, kdbg, 256)
        g(f"s_lshl_b32 s{sT0}, s{sTile}, 11")
        g(f"s_add_u32 s{sWS}, s{kws}, s{sT0}")
        g(f"s_addc_u32 s{sWS+1}, s{kws+1}, 0")
        g(f"s_sub_u32 s{sWE}, s{sWS}, 2048")
        g(f"s_subb_u32 s{sWE+1}, s{sWS+1}, 0")
        g(f"s_cmp_eq_u32 s{sTau}, 127")
        g(f"s_cselect_b32 s{sWS+2}, 0, 2048")
        g(f"s_cmp_eq_u32 s{sTau}, 0")
        g(f"s_cselect_b32 s{sWE+2}, 0, 2048")
        g(f"s_mov_b32 s{sWS+3}, 0x20000")
        g(f"s_mov_b32 s{sWE+3}, 0x20000")
        if stamps:
            g(f"s_mov_b64 s[40:41], s[{kws}:{kws+1}]")
        g(f"s_mov_b32 s{sC}, 0xbfb8aa3b")
        g(f"s_mov_b32 s{sCi}, 0xbf317218")
        g(f"s_lshl_b32 s{sW128}, s{sW}, 7")
        g(f"v_lshrrev_b32 v3, 4, v0")
        g(f"v_lshlrev_b32 v4, 1, v3")
        g(f"v_lshlrev_b32 v{vG8}, 4, v3")
        g(f"v_bfe_u32 v5, v0, 2, 2")
        g(f"v_xor_b32 v24, v5, v3")
        g(f"v_lshlrev_b32 v24, 24, v24")
        g(f"v_lshl_add_u32 v24, v5, 8, v24")
        g(f"v_lshl_add_u32 v{vM0}, v2, 4, v24")
        g(f"v_and_b32 v25, 15, v0")
        g(f"v_lshl_add_u32 v{vEX}, v25, 24, v{vG8}")
        g(f"s_lshr_b32 s{sT0}, s{sW}, 1")
        g(f"s_lshl_b32 s{sT0}, s{sT0}, 14")
        g(f"s_and_b32 s{sT1}, s{sW}, 1")
        g(f"s_lshl_b32 s{sT1}, s{sT1}, 10")
        g(f"s_add_u32 s{sSb}, s{sT0}, s{sT1}")
        g(f"s_add_u32 s{sSb}, s{sSb}, {65536 if role == 0 else 131072}")
        g(f"v_lshl_add_u32 v{vS}, v0, 4, s{sSb}")
        g(f"s_add_u32 s{sWq}, s{kws}, {WPOFF}")
        g(f"s_addc_u32 s{sWq+1}, s{kws+1}, 0")
        g(f"s_lshl_b32 s{sT0}, s{sW}, 16")
        g(f"s_add_u32 s{sWP}, s{sWq}, s{sT0}")
        g(f"s_addc_u32 s{sWP+1}, s{sWq+1}, 0")
        g(f"s_sub_u32 s{sWP}, s{sWP}, s{sSb}")
        g(f"s_subb_u32 s{sWP+1}, s{sWP+1}, 0")
        g(f"s_mov_b32 s{sWP+2}, 0x200000")
        g(f"s_mov_b32 s{sWP+3}, 0x20000")
        g(f"v_bfe_u32 v4, v0, 4, 1")
        g(f"v_bfe_u32 v5, v0, 2, 2")
        g(f"v_lshl_add_u32 v{vW0}, v3, 9, s{sRing}")
        g(f"v_lshl_add_u32 v{vW0}, v5, 6, v{vW0}")
        g(f"v_lshl_add_u32 v{vW0}, v4, 5, v{vW0}")
        g(f"v_lshl_add_u32 v{vW0}, v2, 3, v{vW0}")
        g(f"v_xor_b32 v{vW1}, 32, v{vW0}")
        g(f"v_and_b32 v4, 15, v0")
        g(f"v_lshrrev_b32 v5, 1, v4")
        g(f"v_xor_b32 v5, v5, v3")
        g(f"v_lshlrev_b32 v5, 4, v5")
        g(f"v_lshl_add_u32 v{vX0}, v4, 7, v5")
        g(f"v_xor_b32 v{vX1}, 64, v{vX0}")
        if stamps:
            g("s_mov_b64 s[76:77], s[100:101]")


    sWB = 0
    sub = (0, 64)
    def wbase(key):
        if key < 2 - d1:
            g(f"s_lshl_b32 s{sT2}, s{sSl}, 13")
            g(f"s_add_u32 s{sT2}, s{sT2}, {key * 256}")
            ptr = sW1
        else:
            g(f"s_lshl_b32 s{sT2}, s{sSl}, 11")
            g(f"s_add_u32 s{sT2}, s{sT2}, {(key - 1) * 262144}")
            ptr = sWq
        g(f"s_add_u32 s{sWB}, s{ptr}, s{sT2}")
        g(f"s_addc_u32 s{sWB+1}, s{ptr+1}, 0")
    def wlines(key):
        if key < 2 - d1:
            return [(key, n * 1024 + e * 64) for n in range(8) for e in range(4)]
        return [(key, n * 64) for n in range(32)]
    def swarm(lines):
        cur = None
        for n, (key, of) in enumerate(lines):
            if key != cur:
                wbase(key); cur = key
            if n % 14 == 0:
                g(f"s_waitcnt lgkmcnt({15 - min(14, len(lines) - n)})")
            g(f"s_load_dword s3, s[{sWB}:{sWB+1}], {of}")
    later = wlines(1)
    nb = 8
    def e_warm(key, n0=0):
        if str(key) not in str(opt.get("wk", "5")):
            return []
        def ld(n, of):
            if n + n0 >= 14:
                g("s_waitcnt lgkmcnt(13)")
            g(f"s_load_dword s3, s[{sWB}:{sWB+1}], {of}")
        return [lambda: wbase(key)] + [(lambda n=n, of=of: ld(n, of)) for n, (_, of) in enumerate(wlines(key))]

    def x_issue(kp):
        g(f"s_movk_i32 s{sT0}, {kp*128}")
        for jj in range(2):
            for hh in range(2):
                g(f"s_add_u32 m0, s{sT3}, {kp*16384 + jj*2048 + hh*1024}")
                g("s_nop 0")
                g.vmem(f"buffer_load_dwordx4 v{16+2*jj+hh}, s[{sX}:{sX+3}], s{sT0} offen {xfl} lds".replace("  ", " "), tag=("x", kp))
    x_issue(0)
    if opt.get("hd") == 2:
        g("s_waitcnt vmcnt(0)"); g.stamp(8)
    srd(g, sW1, kw1, 1048576)
    g(f"s_getpc_b64 s[{sCode}:{sCode+1}]")
    g("L_pc:")
    g(f"s_mov_b32 s{sCode+2}, L_code_end-L_pc")
    g(f"s_mov_b32 s{sCode+3}, 0x20000")
    g(f"s_lshr_b32 s{sT1}, s{sWg}, 3")
    g(f"s_lshl2_add_u32 s{sSl}, s{sT1}, s{sW}")
    g(f"v_lshrrev_b32 v6, 1, v0")
    g(f"v_lshlrev_b32 v6, 10, v6")
    g(f"v_and_b32 v7, 1, v0")
    g(f"v_lshl_add_u32 v6, v7, 7, v6")
    g(f"v_lshrrev_b32 v7, 4, v0")
    g(f"v_lshl_add_u32 v6, v7, 28, v6")
    def warm_w1(ph, dst):
        g(f"s_lshl_b32 s{sT2}, s{sSl}, 13")
        if ph:
            g(f"s_add_u32 s{sT2}, s{sT2}, {ph * 256}")
        g.vmem(f"buffer_load_dword v{dst}, v6, s[{sW1}:{sW1+3}], s{sT2} offen {opt.get('wfl', '')}", [dst])
    if opt.get("warm0", 1) == 1:
        warm_w1(0, 8)
    g(f"s_lshl_b32 s{sT2}, s{sSl}, 7")
    g(f"v_lshlrev_b32 v7, 14, v0")
    g.vmem(f"buffer_load_dword v9, v7, s[{sCode}:{sCode+3}], s{sT2} offen", [9])
    if opt.get("warm0", 1) == 2:
        swarm(wlines(0)[12 * len(sub):])
    if opt.get("hd") in (2, 3):
        g("s_waitcnt vmcnt(0)"); g.stamp(9)
    d1_addr()
    common(1)
    sTs, sTd = 64, 65
    g(f"v_lshrrev_b32 v26, 3, v0")
    g(f"v_lshlrev_b32 v27, 4, v13")
    g(f"s_and_b32 s{sT0}, s{sWg}, 15")
    g(f"s_lshr_b32 s{sT1}, s{sT0}, 1")
    g(f"s_lshl_b32 s{sTd}, s{sT1}, 13")
    g(f"s_and_b32 s{sT1}, s{sT0}, 1")
    g(f"s_lshl_b32 s{sT1}, s{sT1}, 10")
    g(f"s_add_u32 s{sTd}, s{sTd}, s{sT1}")
    g(f"s_cmp_ge_u32 s{sWg}, 128")
    g("s_cbranch_scc1 L_task2")
    g(f"v_and_b32 v28, 3, v26")
    g(f"v_lshrrev_b32 v26, 2, v26")
    g(f"v_lshl_add_u32 v26, v26, 3, v28")
    g(f"v_lshl_add_u32 v26, v26, 11, v27")
    g(f"s_lshl_b32 s{sTs}, s{sT0}, 16")
    g(f"s_and_b32 s{sT1}, s{sW}, 1")
    g(f"s_lshl_b32 s{sT2}, s{sT1}, 15")
    g(f"s_add_u32 s{sTs}, s{sTs}, s{sT2}")
    g(f"s_lshl_b32 s{sT2}, s{sT1}, 11")
    g(f"s_add_u32 s{sTd}, s{sTd}, s{sT2}")
    g(f"s_lshr_b32 s{sT1}, s{sW}, 1")
    g(f"s_lshl_b32 s{sT2}, s{sT1}, 13")
    g(f"s_add_u32 s{sTs}, s{sTs}, s{sT2}")
    g(f"s_lshl_b32 s{sT2}, s{sT1}, 16")
    g(f"s_add_u32 s{sTd}, s{sTd}, s{sT2}")
    g(f"s_bfe_u32 s{sT1}, s{sWg}, 0x10004")
    g(f"s_lshl_b32 s{sT2}, s{sT1}, 10")
    g(f"s_add_u32 s{sTs}, s{sTs}, s{sT2}")
    g(f"s_lshl_b32 s{sT2}, s{sT1}, 12")
    g(f"s_add_u32 s{sTd}, s{sTd}, s{sT2}")
    g(f"s_lshr_b32 s{sT1}, s{sWg}, 5")
    g(f"s_lshl_b32 s{sT2}, s{sT1}, 7")
    g(f"s_add_u32 s{sTs}, s{sTs}, s{sT2}")
    g(f"s_add_u32 s{sTs}, s{sTs}, 512")
    g(f"s_lshl_b32 s{sT2}, s{sT1}, 17")
    g(f"s_add_u32 s{sTd}, s{sTd}, s{sT2}")
    srd(g, sW2, sW1, 1048576)
    g("s_branch L_task3")
    g("L_task2:")
    g(f"v_lshl_add_u32 v26, v26, 10, v27")
    g(f"s_lshl_b32 s{sTs}, s{sT0}, 15")
    g(f"s_lshl_b32 s{sT2}, s{sW}, 13")
    g(f"s_add_u32 s{sTs}, s{sTs}, s{sT2}")
    g(f"s_lshl_b32 s{sT2}, s{sW}, 11")
    g(f"s_add_u32 s{sTd}, s{sTd}, s{sT2}")
    g(f"s_lshr_b32 s{sT1}, s{sWg}, 4")
    g(f"s_lshl_b32 s{sT2}, s{sT1}, 16")
    g(f"s_add_u32 s{sTd}, s{sTd}, s{sT2}")
    g(f"s_and_b32 s{sT1}, s{sT1}, 7")
    g(f"s_lshl_b32 s{sT2}, s{sT1}, 7")
    g(f"s_add_u32 s{sTs}, s{sTs}, s{sT2}")
    g("L_task3:")
    g(f"v_mov_b32 v42, v26")
    if d1:
        g(f"s_cmp_lt_u32 s{sWg}, 64")
        g(f"s_cselect_b32 s{sT1}, 0, 0x40000000")
        g(f"s_sub_u32 s{sSl+1}, s{sTs}, 256")
        g(f"s_max_i32 s{sSl+1}, s{sSl+1}, 0")
        g(f"v_add_u32 v43, s{sT1}, v26")
        g(f"v_lshl_add_u32 v41, v0, 4, s{sT1}")
    g(f"s_lshl_b32 s{sT1}, s{sW}, 5")
    g(f"s_add_u32 s{sT1}, s{sT1}, {SCR}")
    g(f"v_lshrrev_b32 v26, 2, v0")
    g(f"v_lshl_add_u32 v26, v26, 7, s{sT1}")
    g(f"v_lshl_add_u32 v26, v2, 3, v26")
    g(f"v_lshlrev_b32 v27, 4, v0")
    srd(g, sDW, kdw, 5120)
    g(f"s_lshl_b32 s{sT1}, s{sW}, 28")
    g(f"v_lshrrev_b32 v36, 5, v0")
    g(f"v_lshl_add_u32 v36, v36, 27, s{sT1}")
    g(f"v_bfe_u32 v37, v0, 2, 2")
    g(f"v_lshlrev_b32 v38, 1, v2")
    g(f"v_sub_u32 v37, v38, v37")
    g(f"s_lshl_b32 s{sT1}, s{sWg}, 2")
    g(f"v_lshl_add_u32 v37, v37, 10, s{sT1}")
    g(f"v_bfe_u32 v38, v0, 4, 1")
    g(f"v_lshl_add_u32 v37, v38, 1, v37")
    g(f"v_add_u32 v37, v37, v36")
    g(f"v_add_u32 v38, 1024, v37")
    g(f"s_lshl_b32 s{sT1}, s{sWg}, 7")
    g(f"s_add_u32 s{sT1}, s{sT1}, {CTOFF}")
    g(f"v_lshl_add_u32 v39, v0, 2, s{sT1}")
    g(f"v_add_u32 v36, v36, v39")
    def task_load():
        g(f"s_lshl_b32 s{sT1}, s{sW}, 10")
        g(f"s_add_u32 m0, s{sT1}, {SCR}")
        g.vmem(f"buffer_load_ushort v39, v37, s[{sDW}:{sDW+3}], 0 offen", [39], tag="task")
        g.vmem(f"buffer_load_dwordx4 v42, s[{sW2}:{sW2+3}], s{sTs} offen {opt.get('tnt', 'nt')} lds", tag="task")
        g(f"s_add_u32 m0, m0, 4096")
        g.vmem(f"buffer_load_ushort v40, v38, s[{sDW}:{sDW+3}], 0 offen", [40], tag="task")
        if d1:
            g.vmem(f"buffer_load_dwordx4 v43, s[{sW1}:{sW1+3}], s{sSl+1} offen {opt.get('tnt', 'nt')} lds", tag="task")
        ct_srd()
        srd(g, sW2, sWq, 0x148000)
    tk = opt.get("tk", 1)
    if tk == 1:
        task_load()
    assert rbar and win == 2
    def w_first():
        P[0].advance(g, 0)
        for ab in range(2):
            set_m0(g, ab)
            g("s_nop 0")
            for m in range(4):
                P[0].dma(g, ab, m, ("x", 0))
    wA = opt.get("wA", 2)
    if wA:
        g.barrier("w0")
    else:
        w_first()
    for kp in range(1, win):
        x_issue(kp)
    g.wait(vm=("x", 0))
    g.barrier("x0")
    g("s_branch L_roleB")
    vmB = list(g.vm); g.vm = []; g.bars = []

    g("L_startA:")
    d1_addr()
    g("s_waitcnt lgkmcnt(0)")
    if opt.get("tlb", 0):
        g(f"s_add_u32 s{sO}, s{kout}, s2")
        g(f"s_addc_u32 s{sO+1}, s{kout+1}, 0")
        for n, (k, off) in enumerate(((kw1, 0), (kdw, 0), (kw2, 0), (kws, 0x80000), (sO, 0))):
            g(f"s_load_dword s3, s[{k}:{k+1}], {off}")
    srd(g, sW1, kw1, 1048576)
    g(f"s_lshr_b32 s{sT1}, s{sWg}, 3")
    g(f"s_lshl2_add_u32 s{sSl}, s{sT1}, s{sW}")
    if opt.get("warm0", 1) == 2:
        swarm(wlines(0)[:12 * len(sub)])
    if wA == 2:
        w_first()
    common(0)
    ct_srd()
    if wA == 1:
        w_first()
    if wA:
        g.barrier("w0")
        g.drain(vm=True)
        g("s_waitcnt lgkmcnt(0)")
    g.stamp(8)
    g.barrier("x0")
    g.stamp(9)
    it = start_a(g, P[0])
    run(it[:8] + start_x(g, P[0]) + start_b(g, P[0])[:8])
    run(it[8:10]); g("s_nop 0"); run(it[10:] + start_b(g, P[0])[8:])
    ex = {(kp, rbar): (lambda kp=kp: g.barrier(f"r{kp}")) for kp in range(8 - win)} if rbar else {}
    g.stamp(1)
    if d1:
        def h0():
            g.wait(lg=("rb", 7))
            g.barrier("h0")
        ex[(7, opt.get("h0g", 45))] = h0
    mfma_phase(g, P[0], None if d1 else P[1], "h0", xbar=lambda kp: g.barrier(f"x{kp}"), first=True, extra=ex)
    g.stamp(2)
    def sw(reg, off, va=vS):
        return lambda: g.ds(f"ds_write_b128 v{va}, {R(reg)} offset:{off}", tag="sw")
    e_phase(g, 0, VH, pre=P2.start_w(g) + P2.start_x(g), warm=e_warm(2))
    if not d1:
        g.barrier("h1")
    g.stamp(3)
    direct_phase(g, P2)
    g.stamp(4)
    e_phase(g, 2, 0, pre=GA.start_w(g), warm=e_warm(4) + (e_warm(5, 14 if e_warm(4) else 0) if opt.get('w5', 2) == 2 else []))
    g_addr(g)
    outv_addr(g, 64)
    g.barrier("h3")
    run([sw(0, 32768), sw(4, 32768 + 2048)] + GA.start_x(g) + [sw(8, 32768 + 4096)])
    g.stamp(5)
    yl = [int(v) for v in str(opt.get("yl", "4 6 7")).split()]
    GA.merge = len(yl) > 1
    def xbarA(kp, j):
        if kp == 2 and j == 0:
            g.wait(lg="sw")
            g.barrier("V")
        if kp == 6 and (j == 0 or j - 1 in yl):
            g.barrier(f"Y{min(v for v in yl if v >= j)}")
    ex = {(0, 8 * (j - 3) + 4): sw(4 * j, 32768 + j * 2048) for j in range(3, 8)}
    fr = ((0, 44), (0, 52), (1, 4), (1, 12), (1, 20), (1, 28), (1, 34), (1, 38))
    ex.update({fr[j]: sw(VH + 4 * j, j * 2048) for j in range(8)})
    na = opt.get("na", 0) if GA.merge else 0
    pend = out_interleave(g, ex, True, [int(c) for c in str(opt.get("opera", 2))], na, opt.get("stA", "nt")) if na else []
    direct_phase(g, GA, xbar=xbarA, extra=ex)
    g.stamp(6)
    g("s_setprio 0")
    g("s_nop 6")
    run(pend)
    zg = [int(v) for v in str(opt.get("zg", "0")).split() if int(v)]
    j = na
    assert na + sum(zg) <= 8
    for n, cnt in enumerate(zg):
        for jj in range(j, j + cnt):
            run(outv_items(g, jj, jj, opt.get("stA", "nt"), 1))
        g.barrier(f"Z{n}")
        for jj in range(j, j + cnt):
            run(outv_items(g, jj, jj, opt.get("stA", "nt"), 3))
        j += cnt
    for jj in range(j, 8):
        if opt.get("outA", 2): run(outv_items(g, jj, jj, opt.get("stA", "nt"), opt.get("outA", 2), opt.get("infl", 1)))
    g.stamp(7)
    barsA = g.bars
    g("s_branch L_fin")

    g.lg, g.vm, g.bars = [], vmB, ["w0", "x0"] if wA else ["x0"]
    g("L_roleB:")
    def task_read():
        assert not any(t == "task" for _, t in g.vm)
        for n in range(1 + d1):
            g(f"ds_read_b64_tr_b16 v[{28+4*n}:{29+4*n}], v26 offset:{4096*n}")
            g(f"ds_read_b64_tr_b16 v[{30+4*n}:{31+4*n}], v26 offset:{4096*n + 2048}")
        g("s_waitcnt lgkmcnt(0)")
    def task_store():
        g(f"v_lshl_or_b32 v39, v40, 16, v39")
        g.vmem(f"buffer_store_dword v39, v36, s[{sW2}:{sW2+3}], 0 offen {opt.get('tfl', 'sc0 sc1')}", tag="clr")
        g.vmem(f"buffer_store_dwordx4 v[28:31], v27, s[{sW2}:{sW2+3}], s{sTs} offen {opt.get('tfl', 'sc0 sc1')}", tag="clr")
        if d1:
            g.vmem(f"buffer_store_dwordx4 v[32:35], v41, s[{sW2}:{sW2+3}], s{sTd} offen {opt.get('tfl', 'sc0 sc1')}", tag="clr")
    if tk == 2 and opt.get("tpre", 1):
        task_load()
    g.barrier("r0")
    if tk == 2 and not opt.get("tpre", 1):
        task_load()
    x_issue(win)
    g(f"s_and_b32 s{sGrp}, s{sTile}, 0xfc")
    g(f"s_lshl_b32 s{sT1}, s{sW}, 9")
    g(f"v_lshlrev_b32 v21, 3, v0")
    g(f"v_mov_b32 v22, -1")
    g(f"v_mov_b32 v23, -1")
    g(f"s_add_u32 s{sTs}, s{sTd}, 262144")
    g.vmem(f"buffer_store_dwordx2 v[22:23], v21, s[{sWS}:{sWS+3}], s{sT1} offen {opt.get('tfl', 'sc0 sc1')}", tag="clr")
    g.stamp(1)
    def ready():
        g(f"s_mov_b32 s{sT2}, {opt.get('spin', 400000)}")
        g.wait(regs=[22])
        g.point("rdy_")
        g("L_rdy:")
        g(f"v_cmp_ne_u32 vcc, 15, v22")
        g(f"s_sub_u32 s{sT2}, s{sT2}, 1")
        g("s_cbranch_scc1 L_rdy_ok")
        g("s_cbranch_vccz L_rdy_ok")
        g(f"buffer_load_dword v22, v21, s[{sDBG}:{sDBG+3}], 0 offen sc0 sc1")
        g("s_waitcnt vmcnt(0)")
        g("s_branch L_rdy")
        g("L_rdy_ok:")
        g.point("rdy")
    pk = opt.get("pk", 6) if d1 else 7
    ak = opt.get("ak", 2)
    for kp in range(1, 8):
        g.wait(vm=("x", kp))
        if kp == ak:
            g.wait(vm="clr")
        g.barrier(f"x{kp}")
        if kp in (3, 7) and not opt.get("hd"):
            g.stamp({0: 1, 3: 8, 7: 9}[kp])
        if kp == tk:
            task_read()
            task_store()
        if kp == ak:
            assert not any(t == "clr" for _, t in g.vm)
            g(f"s_cmp_lg_u32 s{sW}, 0")
            g("s_cbranch_scc1 L_noann")
            g(f"s_and_b32 s{sT1}, s{sTile}, 3")
            g(f"s_lshl_b32 s{sT1}, 1, s{sT1}")
            if "a" not in str(opt.get("abl", "")):
                g(f"s_atomic_or s{sT1}, s[{sDBG}:{sDBG+1}], s{sGrp}")
            g("L_noann:")
        if kp + win < 8:
            g.barrier(f"r{kp}")
        if kp == pk - 1:
            g(f"v_lshlrev_b32 v21, 2, v0")
            g.vmem(f"buffer_load_dword v22, v21, s[{sDBG}:{sDBG+3}], 0 offen sc0 sc1", [22])
        if kp + win < 8:
            x_issue(kp + win)
        if kp == pk:
            ready()
        if "1" in str(opt.get("wk", "5")) or not d1:
            if d1:
                nb = -(-32 // (8 - pk))
                if kp >= pk: swarm(later[(kp - pk) * nb:(kp - pk + 1) * nb])
            elif 2 <= kp < 6:
                swarm(later[(kp - 2) * nb:(kp - 1) * nb])
    g.drain(vm=True)
    def idle_start(name, own):
        run(start_x(g, own))
        g.barrier(name + "a")
        run(start_a(g, own))
        g.barrier(name + "b")
        g("s_setprio 1")
        run(start_b(g, own))
    if d1:
        run(P1.start_w(g))
        g("s_waitcnt lgkmcnt(0)")
        run(P1.start_x(g))
        g.barrier("h0")
        g.stamp(2)
        direct_phase(g, P1, reset=True)
    else:
        g("s_waitcnt lgkmcnt(0)")
        idle_start("h0", P[1])
        g.stamp(2)
        def h1():
            g.wait(lg=("rb", 7))
            g.barrier("h1")
        mfma_phase(g, P[1], None, None, extra={(7, opt.get("h1g", 20)): h1})
    g.stamp(3)
    e_phase(g, 1, 0, pre=P3.start_w(g) + P3.start_x(g), warm=e_warm(3), after_tile=lambda e, j: e.q2.append(sw(4 * j, j * 2048)))
    g.wait(lg="sw")
    g.stamp(4)
    def h3():
        g.drain(lg=True)
        g.barrier("h3")
    direct_phase(g, P3, extra={(7, opt.get("h3g", 48)): h3})
    g.stamp(5)
    def vB(e, j):
        if j == opt.get("vtile", 4):
            g.barrier("V")
            g_addr(g)
            g(f"v_add_u32 v255, {-98304 & 0xffffffff}, v{vS}")
    def yB(e, j):
        e.q2.append(sw(4 * j, j * 2048, 255))
        if j in yl:
            def f():
                g.wait(lg="sw")
                g.barrier(f"Y{j}")
            e.q2 += [lambda: None] * opt.get("ydel", 2) + [f]
    e_phase(g, 3, 0, pre=GB.start_w(g) + GB.start_x(g), glu_tile=vB,
            warm=e_warm(5) if opt.get('w5', 2) == 3 else [], after_tile=yB, tw=0)
    outv_addr(g)
    GB.merge = bool(opt.get("merge", 1))
    if GB.merge and opt.get("early7", 1):
        GB.early7 = True
        GB.soff(g, 7, 0); GB.soff(g, 7, 1)
        for f in range(8): GB.load(g, 7, f)
        GB.soff(g, 1, 0); GB.soff(g, 1, 1)
    g.stamp(6)
    ex = {}
    for n in range(len(zg)):
        ex[(n, opt.get("zat", 30))] = (lambda n=n: g.barrier(f"Z{n}"))
    pend = out_interleave(g, ex, GB.merge, [int(c) for c in str(opt.get("oper", 2 if GB.merge else 4))], 7, opt.get("stB", "nt"), opt.get("outB", 2))
    direct_phase(g, GB, extra=ex)
    g.stamp(7)
    if len(pend) < 8:
        g("s_nop 7")
    run(pend)
    run(outv_items(g, 7, 7, opt.get("stB", "nt"), opt.get("outB", 2)))
    assert g.bars == barsA, (g.bars, barsA)
    g("L_fin:")
    if stamps:
        g("s_waitcnt vmcnt(0)")
        g("s_memrealtime s[98:99]")
        g(f"s_mem{'real' if stamps == 3 else ''}time s[100:101]")
        g(f"s_add_u32 s4, s40, {STAMP_OFF}\ns_addc_u32 s5, s41, 0\ns_mov_b32 s6, 0x100000\ns_mov_b32 s7, 0x20000")
        g(f"s_lshl_b32 s8, s{sWg}, 3\ns_add_u32 s8, s8, s{sWv}\ns_lshl_b32 s8, s8, 7")
        g("s_waitcnt lgkmcnt(0)")
        g("s_mov_b64 exec, 1")
        g("v_mov_b32 v4, 0")
        order = [74, 98, 76, 100] + [76 + 2 * n for n in range(1, 10)]
        for n, s in enumerate(order):
            g(f"v_mov_b32 v0, s{s}\nv_mov_b32 v1, s{s+1}")
            g(f"buffer_store_dwordx2 v[0:1], v4, s[4:7], s8 offen offset:{8*n}")
            g("s_nop 1")
    g("L_end:")
    g("s_endpgm")
    g("L_code_end:")
    g('.section .rodata,"a"')
    g(".p2align 6")
    g(f".amdhsa_kernel {KN}_kernel")
    g.l += ["  .amdhsa_next_free_vgpr 256", "  .amdhsa_next_free_sgpr 102", "  .amdhsa_accum_offset 256",
            "  .amdhsa_group_segment_fixed_size 0", "  .amdhsa_kernarg_size 56", "  .amdhsa_user_sgpr_count 2",
            "  .amdhsa_user_sgpr_kernarg_segment_ptr 1", "  .amdhsa_system_sgpr_workgroup_id_x 1",
            "  .amdhsa_float_denorm_mode_32 3"]
    g(".end_amdhsa_kernel")
    t = g.text()
    if stamps and opt.get("probe", 1):
        t = t.replace("; @launch grid=(256,1,1) block=(512,1,1) lds=163840",
                      f"; @launch kernel={KN}_kernel grid=(256,1,1) block=(512,1,1) lds=163840\n; @launch kernel=probe_kernel grid=(1,1,1) block=(64,1,1) lds=0")
        a = [".p2align 8", ".globl probe_kernel", ".type probe_kernel,@function", "probe_kernel:",
             "s_memrealtime s[8:9]", "s_load_dwordx2 s[4:5], s[0:1], 48", "s_waitcnt lgkmcnt(0)",
             f"s_add_u32 s4, s4, {STAMP_OFF}", "s_addc_u32 s5, s5, 0", "s_mov_b32 s6, 0x100000", "s_mov_b32 s7, 0x20000",
             "v_mov_b32 v2, s8", "v_mov_b32 v3, s9", "v_mov_b32 v1, 120", "buffer_store_dwordx2 v[2:3], v1, s[4:7], 0 offen", "s_endpgm"]
        t = t.replace('.section .rodata,"a"', "\n".join(a) + '\n.section .rodata,"a"')
        t += ".p2align 6\n.amdhsa_kernel probe_kernel\n  .amdhsa_next_free_vgpr 16\n  .amdhsa_next_free_sgpr 32\n  .amdhsa_accum_offset 16\n" \
             "  .amdhsa_group_segment_fixed_size 0\n  .amdhsa_kernarg_size 56\n  .amdhsa_user_sgpr_count 2\n" \
             "  .amdhsa_user_sgpr_kernarg_segment_ptr 1\n  .amdhsa_system_sgpr_workgroup_id_x 1\n.end_amdhsa_kernel\n"
    return t


def parse(args):
    opt = {}
    for a in args:
        k, v = a.split("=", 1)
        try:
            v = int(v)
        except ValueError:
            v = v.replace("+", " ")
        opt[k] = v
    return opt


if __name__ == "__main__":
    open(sys.argv[1], "w").write(build(parse(sys.argv[2:])))
```

```python
import sys

KN = "standalone__conformer_conv_module__speech"
STAMP_OFF = 255 * 1024 * 1024

HEAD = """; Kernarg layout for this problem (56 bytes, ptrs only, base s[0:1]):
;   offset   0: d_in[0] x  shape=(2, 16000, 512) dtype=bfloat16 strides=(16384000, 1024, 2) contiguous=True
;   offset   8: d_in[1] w_pw1  shape=(512, 1024) dtype=bfloat16 strides=(2048, 2) contiguous=True
;   offset  16: d_in[2] dw  shape=(5, 512) dtype=bfloat16 strides=(1024, 2) contiguous=True
;   offset  24: d_in[3] w_pw2  shape=(512, 512) dtype=bfloat16 strides=(1024, 2) contiguous=True
; Override launch geometry by editing the next line (default: block=256,
"""

def ACC(i, j): return 4 * (i * 8 + j)
VH = 128
VWX, VWY, VWZ = 160, 176, 192
VXR = 208
vDc, vW0, vW1, vD1 = 240, 242, 243, 244
def DW(i, h, p): return 160 + 32 * (p % 2) + 8 * i + 4 * h
def DX(n, h): return 224 + 8 * (n % 3) + 4 * h
vX0, vX1, vS = 248, 249, 250
vG8, vM0, vM1, vEX = 251, 252, 253, 254
def AF(ct, r): return 192 + 16 * ct + 4 * r
def TP(ct, r, q):
    n = 4 * ct + r
    return (160 + 6 * n if n < 5 else 224 + 6 * (n - 5)) + q + 1
def YY(ct, r, j): return 64 + 32 * ct + 8 * r + j
VEXP = 160
VTMP, VIMP = 32, 40
CTOFF = 0x140000
sX, sW1, sW2, sO, sDW, sWS, sDBG, sWE = 4, 8, 12, 16, 20, 24, 28, 32
sW64, sHo, sW128, sSb = 36, 37, 38, 39
sRing = 44
sT0, sT1, sT2, sT3 = 46, 47, 48, 49
sC, sCi = 50, 51
sWv, sW, sTile, sTau, sWg, sGrp = 52, 53, 54, 55, 56, 57
sWP = 60
sWq = 58
sK = 66
sSl = 96
sCode = 16
KA = 76
QORD = (1, 2, 0, 3)
WPOFF = 1 << 20

OOB = 0x7f000000
SCR = 7 * 16384


class Gen:
    def __init__(self, opt):
        self.l = []
        self.opt = opt
        self.lg = []
        self.vm = []
        self.bars = []

    def __call__(self, s=""):
        for line in s.split("\n"):
            self.l.append(line if line.endswith(":") or line.startswith(".") or line.startswith(";") else "    " + line)

    def text(self):
        return "\n".join(self.l) + "\n"

    def ds(self, text, regs=(), tag=None):
        if self.opt.get("nosw") and tag == "sw":
            return
        if len(self.lg) >= 15:
            self("s_waitcnt lgkmcnt(11)"); self.lg = self.lg[-11:]
        self(text); self.lg.append((set(regs), tag))

    def vmem(self, text, regs=(), tag=None):
        abl = str(self.opt.get("abl", ""))
        if ("s" in abl and tag == "clr" and "dwordx4" in text) or ("c" in abl and tag == "clr" and "dwordx2" in text) or \
           ("p" in abl and regs == [22]) or ("d" in abl and regs == [10]) or ("t" in abl and tag == "task"):
            return
        self(text); self.vm.append((set(regs), tag))

    def _idx(self, q, regs, tag):
        idx = -1
        for n, (r, t) in enumerate(q):
            if (regs and (r & set(regs))) or (tag is not None and t == tag):
                idx = n
        return idx

    def wait(self, regs=(), lg=None, vm=None):
        parts = []
        i = self._idx(self.vm, regs, vm)
        if i >= 0:
            n = min(len(self.vm) - 1 - i, 63)
            parts.append(f"vmcnt({n})"); self.vm = self.vm[len(self.vm) - n:] if n else []
        i = self._idx(self.lg, regs, lg)
        if i >= 0:
            n = min(len(self.lg) - 1 - i, 15)
            parts.append(f"lgkmcnt({n})"); self.lg = self.lg[len(self.lg) - n:] if n else []
        if parts:
            self("s_waitcnt " + " ".join(parts))

    def drain(self, vm=False, lg=False):
        parts = []
        if vm and self.vm:
            parts.append("vmcnt(0)"); self.vm = []
        if lg and self.lg:
            parts.append("lgkmcnt(0)"); self.lg = []
        if parts:
            self("s_waitcnt " + " ".join(parts))

    def barrier(self, name):
        self.point(name + "_")
        self(f"s_barrier"); self.bars.append(name)
        self.point(name)

    def point(self, name):
        pts = self.opt.get("pts")
        if pts and name in pts.split():
            n = pts.split().index(name) + 1
            self(f"s_mem{'real' if self.opt['stamps'] == 3 else ''}time s[{76+2*n}:{77+2*n}]")

    def stamp(self, n):
        if self.opt.get("pts"):
            return self.point(f"s{n}")
        if self.opt.get("stamps") in (1, 3):
            self(f"s_mem{'real' if self.opt['stamps'] == 3 else ''}time s[{76+2*n}:{77+2*n}]")
            self("s_waitcnt lgkmcnt(0)")
            self.lg = []


def R(a, n=4): return f"v[{a}:{a+n-1}]"
def rs(a, n=4): return list(range(a, a + n))


def wreg(i, h, p, kind="P"):
    if i < 2:
        return (VWX if p % 2 == 0 else VWY) + 8 * i + 4 * h
    return VWZ + 8 * (i - 2) + 4 * h


def xreg(j, h): return VXR + 8 * (j % 4) + 4 * h


def kconst(kind, ab, m):
    return 16 * m * 2048 + ab * 1024 - m * 1024


def set_kconst(g, kind):
    return [lambda ab=ab, m=m: g(f"s_mov_b32 s{sK + 4*ab + m}, {kconst(kind, ab, m)}") for ab in range(2) for m in range(4)]


class Stream:
    def __init__(self, kind, arg):
        self.kind, self.arg = kind, arg

    def advance(self, g, kp, fresh=False):
        g(f"v_add_u32 v{vDc}, {kp * 131072 + self.arg * 256}, v{vD1}")

    def dma(self, g, ab, m, tag, fl=""):
        if g.opt.get("nodma"):
            return
        srd = sW1
        g.vmem(f"buffer_load_dwordx4 v{vDc}, s[{srd}:{srd+3}], s{sK + 4*ab + m} offen offset:{m*1024} {fl} lds", tag=tag)


def set_m0(g, ab):
    g(f"s_mov_b32 m0, s{sRing + ab}")


def tr_read(g, i, h, q, p, tag, kind="P"):
    d = wreg(i, h, p, kind) + 2 * q
    off, base = (i >> 1) * 4096 + h * 2048 + q * 256, vW0 + (i & 1)
    g.ds(f"ds_read_b64_tr_b16 {R(d, 2)}, v{base} offset:{off}", rs(d, 2), tag)


def part_reads(kind, ab):
    return [(i, h, q) for i in ((0, 1) if ab == 0 else (3, 2)) for h in range(2) for q in range(2)]


def x_read(g, kind, kp, j, h, d=None):
    if d is None:
        d = xreg(j, h)
    if kind == "P":
        off, base = (kp * 8 + j) * 2048 % 65536, vX0 + h
    else:
        off = (1 - (kp >> 2)) * 32768 + (kp & 1) * 16384 + j * 2048 + h * 1024
        base = vX0 + (0, 1, 1, 0)[kp >> 1]
    g.ds(f"ds_read_b128 {R(d)}, v{base} offset:{off}", rs(d))


def chain_order(jp):
    j0, j1 = 2 * jp, 2 * jp + 1
    if jp % 2 == 0:
        return [(j0, 0), (j0, 1), (j1, 1), (j1, 0), (j1, 2), (j1, 3), (j0, 3), (j0, 2)]
    return [(j0, 2), (j0, 3), (j1, 3), (j1, 2), (j1, 0), (j1, 1), (j0, 1), (j0, 0)]


def mfma(g, acc, A, B, first):
    g.wait(regs=rs(A) + rs(B))
    c = "0" if first else R(acc)
    if g.opt.get("al", 0) & 1:
        g(".p2align 3")
    if g.opt.get("al", 0) & 4 and not g.l[-1].lstrip().startswith(("v_mfma", "ds_", "buffer_")):
        g(".p2align 3"); g("s_nop 0")
    g(f"v_mfma_f32_16x16x32_bf16 {R(acc)}, {R(A)}, {R(B)}, {c}")


def start_a(g, own):
    it = [lambda i=i, h=h, q=q: tr_read(g, i, h, q, 0, ("ra", 0), own.kind) for i, h, q in part_reads(own.kind, 0)]
    it.append(lambda: own.advance(g, 1, fresh=True))
    it.append(lambda: set_m0(g, 0))
    it += [None] * g.opt.get("sgap", 3)
    it.append(lambda: g.wait(lg=("ra", 0)))
    for m in range(4):
        it.append(lambda m=m: own.dma(g, 0, m, ("a", 1)))
        it += [None] * (g.opt.get("sgap", 3) - 1)
    return it


def start_x(g, own):
    return [lambda j=j, h=h: x_read(g, own.kind, 0, j, h) for j in range(2) for h in range(2)]


def start_b(g, own):
    return [lambda i=i, h=h, q=q: tr_read(g, i, h, q, 0, ("rb", 0), own.kind) for i, h, q in part_reads(own.kind, 1)] + \
           [lambda: set_m0(g, 1)]


def run(items):
    for f in items:
        if f: f()


def mfma_phase(g, own, nxt, hname, xbar=None, first=False, extra=None):
    o = g.opt
    kind = own.kind
    extra = extra or {}

    def st(p):
        return (own, p) if p < 8 else ((nxt, 0) if (nxt and p == 8) else (None, 0))

    for kp in range(8):
        gaps = {m: [] for m in range(64)}
        late = (first and o.get("late0", 1))
        for jp in range(4):
            nkp, njp = (kp, jp + 1) if jp < 3 else (kp + 1, 0)
            if nkp > 7:
                continue
            slots = [16 * jp + n for n in ((0, 1, 2, 3) if (jp % 2 or (late and jp)) else (0, 1, 4, 5))]
            for n in range(4):
                j, h = 2 * njp + n // 2, n % 2
                def f(nkp=nkp, j=j, h=h, n=n, jp=jp):
                    if n == 0 and jp == 3 and xbar:
                        xbar(nkp)
                    x_read(g, kind, nkp, j, h)
                gaps[slots[n]].append(f)
            gaps[16 * jp + 15].append(lambda njp=njp: g.wait(regs=rs(xreg(2 * njp, 0), 16)))
        if kind == "P" and kp in (3, 7):
            k = "0x10000" if kp == 3 else "0xffff0000"
            gaps[40].append(lambda k=k: g(f"v_add_u32 v{vX0}, {k}, v{vX0}"))
            gaps[41].append(lambda k=k: g(f"v_add_u32 v{vX1}, {k}, v{vX1}"))
        s_, p_ = st(kp + 1)
        if s_:
            gaps[2].append(lambda kp=kp: g.wait(lg=("rb", kp)))
            for m, at in enumerate((3, 7, 11, 14)):
                gaps[at].append(lambda m=m, s_=s_, kp=kp: s_.dma(g, 1, m, ("b", kp + 1)))
        if kp < 7:
            a0 = 37 if late else 21
            adv, am0, aw, ad = (45, 46, 49, (50, 54, 58, 61)) if late else (29, 30, 34, (35, 39, 43, 46))
            if not o.get("novm"):
                gaps[a0 - 1].append(lambda kp=kp: g.wait(vm=("a", kp + 1)))
            for n, (i, h, q) in enumerate(part_reads(kind, 0)):
                gaps[a0 + n].append(lambda i=i, h=h, q=q, kp=kp: tr_read(g, i, h, q, kp + 1, ("ra", kp + 1), kind))
            s_, p_ = st(kp + 2)
            if s_:
                gaps[adv].append(lambda s_=s_, p_=p_: s_.advance(g, p_))
                gaps[am0].append(lambda: set_m0(g, 0))
                gaps[aw].append(lambda kp=kp: g.wait(lg=("ra", kp + 1)))
                for m in range(4):
                    gaps[ad[m]].append(lambda m=m, s_=s_, kp=kp: s_.dma(g, 0, m, ("a", kp + 2)))
                gaps[62].append(lambda: set_m0(g, 1))
            if not o.get("novm"):
                gaps[52].insert(0, lambda kp=kp: g.wait(vm=("b", kp + 1)))
            for n, (i, h, q) in enumerate(part_reads(kind, 1)):
                gaps[53 + n].insert(0, lambda i=i, h=h, q=q, kp=kp: tr_read(g, i, h, q, kp + 1, ("rb", kp + 1), kind))
        if kp == 7 and nxt:
            def fa():
                g.wait(vm=("a", 8), lg="sw")
                g.barrier(hname + "a")
            gaps[o.get("handa", 20) if not late else 36].append(fa)
            def fb():
                g.drain(vm=True, lg=True)
                g.barrier(hname + "b")
            gaps[o.get("handb", 50)].append(fb)
        if kp == 0 and o.get("prio", 1):
            gaps[o.get("prioat", 13)].append(lambda: g("s_setprio 2"))
        m = 0
        for jp in range(4):
            for (j, i) in chain_order(jp):
                for h in range(2):
                    mfma(g, ACC(i, j), wreg(i, h, kp, kind), xreg(j, h), kp == 0 and h == 0)
                    g.point(f"k{kp}g{m}")
                    for f in gaps[m]:
                        f()
                    if (kp, m) in extra:
                        extra[(kp, m)]()
                    m += 1


class Direct:
    def __init__(self, idx):
        self.idx, self.kind = idx, "PPPGG"[idx]

    def soff(self, g, kp, half):
        src = kp if self.kind == "P" else QORD[kp >> 1] * 2 + (kp & 1)
        g(f"s_mov_b32 s{sT0 + half}, {self.idx * 262144 + src * 8192 + half * 4096}")

    early7 = False
    merge = False

    def wr(self, i, h, kp):
        return VH + 8 * i + 4 * h if (self.merge and kp == 7) else DW(i, h, kp)

    def load(self, g, kp, f):
        if g.opt.get("nodma"):
            return
        d = self.wr(f >> 1, f & 1, kp)
        if g.opt.get("wskip") and 2 <= kp < 7 and (f % 2 or g.opt["wskip"] == 2):
            return
        g.vmem(f"buffer_load_dwordx4 {R(d)}, v{vS}, s[{sWP}:{sWP+3}], s{sT0 + (f >> 2)} offen offset:{(f & 3) * 1024} {g.opt.get('wpfl', 'sc1')}".rstrip(), rs(d))

    def start_w(self, g):
        it = [lambda: self.soff(g, 0, 0), lambda: self.soff(g, 0, 1)]
        for f in range(8):
            it += [lambda f=f: self.load(g, 0, f), None, None]
        return it + [lambda: self.soff(g, 1, 0), lambda: self.soff(g, 1, 1)]

    def start_x(self, g):
        return [lambda j=j, h=h: x_read(g, self.kind, 0, j, h, DX(j, h)) for j in range(2) for h in range(2)]


def direct_phase(g, own, xbar=None, extra=None, reset=False):
    o = g.opt
    kind = own.kind
    extra = extra or {}
    wat = [int(v) for v in str(o.get("wat", "2 5 10 13 18 21 26 29")).split()]
    g("s_setprio 1")
    seq = [(n // 8, n % 8) for n in range(64)]
    if own.merge:
        seq = seq[:48] + [(6 + n % 2, n // 2) for n in range(16)]
    for blk in range(8):
        gaps = {m: [] for m in range(64)}
        for t in range(8):
            n = blk * 8 + t + 2
            if n < 64:
                for h in range(2):
                    def f(n=n, h=h):
                        if h == 0 and xbar:
                            xbar(*seq[n])
                        if o.get("xskip") and n >= 6 and (n % 2 == 1 or o["xskip"] == 2):
                            return
                        x_read(g, kind, seq[n][0], seq[n][1], h, DX(n, h))
                    gaps[8 * t + h].append(f)
            if n - 1 < 64:
                r = rs(DX(n - 1, 0), 8)
                if seq[n - 1][1] == 0 and not o.get("novm"):
                    r = r + rs(own.wr(0, 0, seq[n - 1][0]), 16 if t == 7 else 32)
                gaps[8 * t + 7].append(lambda r=r: g.wait(regs=r))
        if not o.get("novm"):
            gaps[3].append(lambda blk=blk: g.wait(regs=rs(own.wr(2, 0, seq[8 * blk][0]), 16)))
        if kind == "P" and blk == 3:
            gaps[43].append(lambda: g(f"v_add_u32 v{vX0}, 0x10000, v{vX0}"))
            gaps[44].append(lambda: g(f"v_add_u32 v{vX1}, 0x10000, v{vX1}"))
        if reset and blk == 7:
            gaps[43].append(lambda: g(f"v_add_u32 v{vX0}, 0xffff0000, v{vX0}"))
            gaps[44].append(lambda: g(f"v_add_u32 v{vX1}, 0xffff0000, v{vX1}"))
        if blk < (6 if own.merge else 7):
            for f in range(8):
                gaps[wat[f]].append(lambda f=f, blk=blk: own.load(g, blk + 1, f))
        if own.merge and blk == 4 and not own.early7:
            gaps[30].append(lambda: own.soff(g, 7, 0))
            gaps[31].append(lambda: own.soff(g, 7, 1))
            for f in range(8):
                gaps[min(wat[f] + 32, 58)].append(lambda f=f: own.load(g, 7, f))
        if blk < (5 if own.merge else 6):
            gaps[59].append(lambda blk=blk: own.soff(g, blk + 2, 0))
            gaps[60].append(lambda blk=blk: own.soff(g, blk + 2, 1))
        if blk == 3:
            gaps[36].append(lambda: g("s_setprio 2"))
        m = 0
        g.point(f"b{own.idx}{blk}")
        for t in range(8):
            kp, j = seq[blk * 8 + t]
            for i in (range(4) if t % 2 == 0 else range(3, -1, -1)):
                for h in range(2):
                    if o.get("novm"):
                        g.vm = [(set(), tg) for _, tg in g.vm]
                    mfma(g, ACC(i, j), own.wr(i, h, kp), DX(blk * 8 + t, h), kp == 0 and h == 0)
                    for f in gaps[m]:
                        f()
                    if (blk, m) in extra:
                        extra[(blk, m)]()
                    m += 1


class Half:
    def __init__(self, half):
        self.half = half

    def wr(self, kp, i, h):
        base = 128 + 16 * kp if kp < 6 else ((96, 112), (0, 32))[self.half][kp - 6]
        return base + 8 * i + 4 * h

    def aq(self, j, i):
        return ((0, 16, 32, 48), (16, 48, 64, 80))[self.half][j >> 1] + 8 * (j & 1) + 4 * i

    def xr(self, n, h):
        n %= 6
        return (224 + 8 * n if n < 3 else (64, 96)[self.half] + 8 * (n - 3)) + 4 * h

    def loads(self, g, kp):
        src = QORD[kp >> 1] * 2 + (kp & 1)
        it = [lambda: g(f"s_add_u32 s{sT0}, s{sHo}, {4 * 262144 + self.half * 131072 + src * 8192}")]
        for f in range(4):
            d = self.wr(kp, f >> 1, f & 1)
            if not g.opt.get("nodma"):
                it.append(lambda d=d, f=f: g.vmem(f"buffer_load_dwordx4 {R(d)}, v{vS}, s[{sWP}:{sWP+3}], s{sT0} offen offset:{f * 1024} sc1", rs(d)))
        return it

    def seq(self):
        return [(kp, j) for kp in range(8) for j in range(8)] if self.half == 0 else [(kp, j) for j in range(8) for kp in range(8)]

    def xread(self, g, n, h):
        kp, j = self.seq()[n]
        x_read(g, "G", kp, j, h, self.xr(n, h))

    def start_x(self, g, lo, hi):
        return [lambda n=n, h=h: self.xread(g, n, h) for n in range(lo, hi) for h in range(2)]

    def phase(self, g, extra):
        seq = self.seq()
        g("s_setprio 1")
        m = 0
        for n, (kp, j) in enumerate(seq):
            if n % 16 == 0:
                g.point(f"H{self.half}{n // 16}")
            for t, i in enumerate((0, 1) if n % 2 == 0 else (1, 0)):
                for h in range(2):
                    mfma(g, self.aq(j, i), self.wr(kp, i, h), self.xr(n, h), kp == 0 and h == 0)
                    gp = 2 * t + h
                    if gp < 2 and n + 5 < 64:
                        self.xread(g, n + 5, gp)
                    if gp == 3 and n % 2 == 1 and n + 1 < 64:
                        r = rs(self.xr(n + 1, 0), 8) + rs(self.xr(n + 2, 0), 8)
                        for nn in (n + 1, n + 2):
                            r += rs(self.wr(seq[nn][0], 0, 0), 16)
                        g.wait(regs=r)
                    if m in extra:
                        extra[m]()
                    m += 1


def lane(g, v):
    g(f"v_mbcnt_lo_u32_b32 v{v}, -1, 0")
    g(f"v_mbcnt_hi_u32_b32 v{v}, -1, v{v}")


class Mixer:
    def __init__(self, g):
        self.g, self.q, self.every, self.n = g, [], 2, 0
        self.q2, self.n2 = [], 0
        self.q3, self.n3 = [], 0

    def __call__(self, s):
        if self.g.opt.get("al", 0) & 2 and s.startswith(("v_fma", "v_cvt_pk", "v_mov_b32_dpp", "v_cndmask_b32_dpp")):
            self.g(".p2align 3")
        self.g(s)
        self.n += 1
        self.n3 += 1
        if self.q3 and self.n3 % self.ev3 == 4:
            self.q3.pop(0)()
        if self.q2:
            self.n2 += 1
            if self.n2 >= self.g.opt.get("wdelay", 8):
                self.q2.pop(0)(); self.n2 = 0
        if self.q and self.n % self.every == 0:
            f = self.q.pop(0)
            if f: f()

    def flush(self):
        while self.q2:
            self.q2.pop(0)()
        self.n2 = 0
        while self.q:
            f = self.q.pop(0)
            if f: f()


def glu(e, pairs, scaled=False):
    if e.g.opt.get("noE"): return
    if not scaled:
        for a, b in pairs: e(f"v_mul_f32 v{b}, s{sC}, v{b}")
    for a, b in pairs: e(f"v_exp_f32 v{b}, v{b}")
    for a, b in pairs: e(f"v_fma_f32 v{b}, v{b}, s{sCi}, s{sCi}")
    for a, b in pairs: e(f"v_rcp_f32 v{b}, v{b}")
    for a, b in pairs: e(f"v_mul_f32 v{a}, v{a}, v{b}")


HFL = ["sc0 sc1"]
def halo_loads(ph):
    return [f"buffer_load_dwordx4 {R(VIMP)}, v{vG8}, s[{sWS}:{sWS+3}], s{sW128} offen offset:{ph*512} {HFL[0]}"]


def halo_check(g, ph):
    lab = f"L_poll{ph}"
    g(f"s_mov_b32 s{sT2}, {g.opt.get('spin', 400000)}")
    g.wait(regs=rs(VIMP, 4))
    g(f"{lab}:")
    g(f"v_max3_u32 v{VTMP}, v{VIMP}, v{VIMP+1}, v{VIMP+2}")
    g(f"v_max_u32 v{VTMP}, v{VTMP}, v{VIMP+3}")
    g(f"v_cmp_eq_u32 vcc, -1, v{VTMP}")
    g(f"s_sub_u32 s{sT2}, s{sT2}, 1")
    g(f"s_cbranch_scc1 {lab}_ok")
    g(f"s_cbranch_vccz {lab}_ok")
    for t in halo_loads(ph):
        g(t)
    g("s_waitcnt vmcnt(0)")
    g(f"s_branch {lab}")
    g(f"{lab}_ok:")


def conv_mfma(ct, r, half):
    return f"v_mfma_f32_16x16x32_bf16 {R(YY(ct, r, 4*half))}, {R(AF(ct, r))}, {R(TP(ct, r, 2*half - 1))}, 0"


def e_phase(g, ph, dst, pre=(), after_tile=None, glu_tile=None, silu_tile=None, warm=(), tw=3, pre4=()):
    o = g.opt
    halo = o.get("halo", 1)
    noE = o.get("noE")
    e = Mixer(g)
    prio = 0
    g("s_setprio 0")
    g(f"s_movk_i32 s{sT3}, {ph * 8192}")
    g("s_nop 5")
    el = [(ct, r) for ct in range(2) for r in range(4)]
    for ct, r in el:
        e.q.append(lambda ct=ct, r=r: g.vmem(
            f"buffer_load_dwordx4 {R(AF(ct, r))}, v{vM0}, s[{sDW}:{sDW+3}], s{sT3} offen offset:{ct*1024 + r*64} sc1", rs(AF(ct, r))))
    q0 = e.q; e.q = []
    e.q3 = list(warm); e.ev3 = 12 if len(e.q3) < 40 else 6
    e.every = 8
    for n_, j in enumerate((3, 0, 1, 2, 4, 5, 6, 7)):
        glu(e, [(ACC(ct, j) + r, ACC(2 + ct, j) + r) for ct in range(2) for r in range(4)], ph > 0 and o.get('psc', 0))
        if n_ == 0:
            if halo:
                for r in range(4):
                    e(f"v_cvt_pk_bf16_f32 v{VEXP+r}, v{ACC(0, 3)+r}, v{ACC(1, 3)+r}")
                for r in range(4):
                    e(f"v_min_u32 v{VEXP+r}, -2, v{VEXP+r}")
                g.vmem(f"buffer_store_dwordx4 {R(VEXP)}, v{vEX}, s[{sWE}:{sWE+3}], s{sW128} offen offset:{ph*512} {HFL[0]}")
            e.q = q0
        if glu_tile:
            glu_tile(e, n_)
    e.flush()
    if not noE:
        def pack(q): return [f"v_cvt_pk_bf16_f32 v{TP(ct, r, q)}, v{ACC(ct, 2*q)+r}, v{ACC(ct, 2*q+1)+r}" for ct, r in el]
        for t in pack(3) + pack(0): e(t)
        for ct, r in el:
            e(f"v_mov_b32_dpp v{TP(ct, r, -1)}, v{TP(ct, r, 3)} row_shr:1 row_mask:0xf bank_mask:0xf bound_ctrl:1")
        p1, p2 = pack(1), pack(2)
        fill = [t for n in range(8) for t in (p1[n], p2[n])]
        for t in fill[:4]: e(t)
        g.wait(regs=rs(192, 32))
        g(f"s_setprio {o.get('cprio', 3)}")
        for n, (ct, r) in enumerate(el):
            g(conv_mfma(ct, r, 0))
            for t in fill[2*n + 4:2*n + 6]: e(t)
            if n == 5: g("s_nop 0")
        g("s_setprio 0")
    if halo and o.get("ti", -1) < 0:
        for ct, t in enumerate(halo_loads(ph)):
            g.vmem(t, rs(VIMP + 4 * ct))
    while e.q3:
        e.q3.pop(0)()
    ta = o.get("ta", 6)
    ti, tc = o.get("ti", -1), o.get("tc", 3)
    for j in range(8):
        if silu_tile:
            silu_tile(e, j)
        if j == tw and warm:
            g("s_waitcnt lgkmcnt(0)"); g.lg = []
        if j == ti:
            if halo:
                for ct, t in enumerate(halo_loads(ph)):
                    g.vmem(t, rs(VIMP + 4 * ct))
        if j == 4 and pre4:
            assert tc < 4
            e.q += list(pre4); e.every = o.get("p4ev", 8); e.n = 0
        if j == ta and pre4:
            g("s_setprio 1"); prio = 1
        elif j == ta:
            g("s_setprio 1"); prio = 1
            e.q += list(pre); e.every = 2; e.n = 0
        ys = [YY(ct, r, j) for ct, r in el]
        mm = []
        if j == tc and not noE:
            if halo:
                halo_check(g, ph)
            for r in range(4):
                e(f"v_lshrrev_b32 v{VIMP+4+r}, 16, v{VIMP+r}")
            g(f"s_mov_b32 vcc_lo, {0x80008000 if halo else 0}")
            g(f"s_mov_b32 vcc_hi, {0x80008000 if halo else 0}")
            for n, (ct, r) in enumerate(el):
                e(f"v_cndmask_b32_dpp v{TP(ct, r, 4)}, v{TP(ct, r, 0)}, v{VIMP+n}, vcc row_shl:1 row_mask:0xf bank_mask:0xf bound_ctrl:1")
            mm = [conv_mfma(ct, r, 1) for ct, r in el]
            g(f"s_setprio {o.get('cprio', 3)}")
        if not noE:
            for n, y in enumerate(ys):
                if mm: g(mm[n])
                e(f"v_exp_f32 v{VTMP+n}, v{y}")
            if mm: g(f"s_setprio {prio}")
            for n, y in enumerate(ys): e(f"v_fma_f32 v{VTMP+n}, v{VTMP+n}, s{sC}, s{sC}")
            for n, y in enumerate(ys): e(f"v_rcp_f32 v{VTMP+n}, v{VTMP+n}")
            for n, y in enumerate(ys): e(f"v_mul_f32 v{y}, v{y}, v{VTMP+n}")
        for n in range(4): e(f"v_cvt_pk_bf16_f32 v{dst+4*j+n}, v{ys[2*n]}, v{ys[2*n+1]}")
        if after_tile:
            after_tile(e, j)
    e.flush()


vG0, vG1, vG2 = vM0, vM1, vEX


def outv_addr(g, t=144, half=None):
    lane(g, t)
    if half is None:
        g(f"s_lshl_b32 s{sT2}, s{sWv}, 7")
    else:
        g(f"s_add_u32 s{sT2}, s{sW64}, {512 + 256 * half}")
    g(f"v_bfe_u32 v{t+1}, v{t}, 1, 3")
    g(f"v_lshl_add_u32 v{vG0}, v{t+1}, 14, s{sT2}")
    g(f"v_bfe_u32 v{t+2}, v{t}, 4, 1")
    g(f"v_lshl_add_u32 v{vG0}, v{t+2}, 5, v{vG0}")
    g(f"v_lshrrev_b32 v{t+2}, 5, v{t}")
    g(f"v_lshl_add_u32 v{vG0}, v{t+2}, {6 if half is None else 10}, v{vG0}")
    g(f"v_and_b32 v{t+2}, 1, v{t}")
    g(f"v_lshl_add_u32 v{vG0}, v{t+2}, 4, v{vG0}")
    g(f"v_cmp_eq_u32 vcc, 0, v{t+1}")
    g(f"v_mov_b32 v{vG2}, {OOB}")
    g(f"v_add_u32 v{vG1}, 8192, v{vG0}")
    g(f"v_cndmask_b32 v{vG2}, v{vG0}, v{vG2}, vcc")
    g(f"s_movk_i32 s{sT3}, 4096")
    g(f"s_mov_b32 vcc_lo, 0x55555555")
    g(f"s_mov_b32 vcc_hi, 0x55555555")


def outv_items(g, j, n, fl, mode=2, inflight=None, Q=None):
    Q = Q or [ACC(i, j) for i in range(4)]
    def T(i, d): return Q[i >> 1] + 2 * (i & 1) + d
    it = []
    for i in range(4):
        for d in range(2):
            a = Q[i] + 2 * d
            it.append(f"v_cvt_pk_bf16_f32 v{T(i, d)}, v{a}, v{a+1}")
    if not g.opt.get("nsw", 1):
        for d in range(2):
            for i in (0, 2):
                it.append(f"v_permlane16_swap_b32 v{T(i, d)}, v{T(i+1, d)}")
        for d in range(2):
            for i in (0, 1):
                it.append(f"v_permlane32_swap_b32 v{T(i, d)}, v{T(i+2, d)}")
    dpp = "quad_perm:[1,0,3,2] row_mask:0xf bank_mask:0xf"
    so = "0" if j < 4 else f"s{sT3}"
    for hb in ((0, 1) if n % 2 == 0 else (1, 0)):
        S = Q[2 + hb]
        for k in ((0, 1, 2, 3) if g.opt.get('nsw', 1) else (0, 2, 1, 3)):
            it.append(f"v_cndmask_b32_dpp v{S+k}, v{Q[1-hb]+k}, v{Q[hb]+k}, vcc {dpp}")
        if hb == n % 2:
            it.append("s_not_b64 vcc, vcc")
        va = vG1 if hb else (vG2 if j < 2 else vG0)
        if inflight is not None:
            it.append(f"s_waitcnt vmcnt({inflight})")
        it.append(f"buffer_store_dwordx4 {R(S)}, v{va}, s[{sO}:{sO+3}], {so} offen offset:{(j % 4)*1024} {fl}".rstrip())
    if mode == 1: it = [t for t in it if not t.startswith("buffer")]
    if mode == 3: it = [t for t in it if t.startswith("buffer")]
    return [(lambda t=t: g.vmem(t) if t.startswith("buffer") else g(t)) for t in it]


def out_interleave(g, ex, merge, per, ntiles, fl, mode=2):
    pend = []
    step = 16 if merge else 8
    def f(m):
        if m % step == 7 and m >= step and m // step - 1 < ntiles:
            j = m // step - 1
            pend.extend(outv_items(g, j, j, fl, mode))
        for _ in range(per[m % len(per)]):
            if pend: pend.pop(0)()
    for m in range(8 * step):
        mm = 512 - 8 * step + m
        assert (mm // 64, mm % 64) not in ex
        ex[(mm // 64, mm % 64)] = (lambda m=m: f(m))
    return pend


def srd(g, d, lo, size):
    g(f"s_mov_b32 s{d}, s{lo}")
    g(f"s_mov_b32 s{d+1}, s{lo+1}")
    g(f"s_mov_b32 s{d+2}, {size}")
    g(f"s_mov_b32 s{d+3}, 0x20000")


def g_addr(g):
    g(f"v_subrev_u32 v{vX1}, s{sSb}, v{vS}")
    g(f"v_add_u32 v{vX0}, 98304, v{vX1}")
    g(f"v_add_u32 v{vX1}, 32768, v{vX1}")


def build(opt):
    g = Gen(opt)
    HFL[0] = opt.get("hfl", "sc0 sc1")
    halo = opt.get("halo", 1)
    xfl = opt.get("xflag", "nt")
    win = opt.get("win", 2)
    rbar = opt.get("rbar", 15)
    stamps = opt.get("stamps")
    kx, kw1, kdw, kw2, kout, kdbg, kws = KA, KA + 2, KA + 4, KA + 6, KA + 8, KA + 10, KA + 12
    g.l.append(HEAD.rstrip("\n"))
    g("; @launch grid=(256,1,1) block=(512,1,1) lds=163840")
    g('.amdgcn_target "amdgcn-amd-amdhsa--gfx950"')
    g(".text")
    g(f".globl {KN}_kernel")
    g(".p2align 8")
    g(f".type {KN}_kernel,@function")
    g(f"{KN}_kernel:")
    g("s_cmp_ge_u32 s2, 256")
    g("s_cbranch_scc1 L_end")
    g(f"s_load_dwordx8 s[{KA}:{KA+7}], s[0:1], 0")
    g(f"s_load_dwordx4 s[{KA+8}:{KA+11}], s[0:1], 32")
    g(f"s_load_dwordx2 s[{KA+12}:{KA+13}], s[0:1], 48")
    if stamps:
        g("s_memrealtime s[74:75]")
        g(f"s_mem{'real' if stamps == 3 else ''}time s[100:101]")
    g(f"v_readfirstlane_b32 s{sWv}, v0")
    g(f"s_mov_b32 s{sWg}, s2")
    if opt.get("remap", 1):
        g(f"s_and_b32 s3, s2, 7")
        g(f"s_lshr_b32 s2, s2, 3")
        g(f"s_lshl_b32 s3, s3, 5")
        g(f"s_add_u32 s2, s2, s3")
    g(f"s_mov_b32 s{sTile}, s2")
    g(f"s_and_b32 s{sTau}, s2, 127")
    g(f"s_mul_i32 s2, s2, 128000")
    g(f"s_lshr_b32 s{sWv}, s{sWv}, 6")
    if opt.get("swap", 0):
        g(f"s_xor_b32 s{sWv}, s{sWv}, 4")
    g(f"s_and_b32 s{sW}, s{sWv}, 3")
    g("v_and_b32 v0, 63, v0")
    if opt.get("stag"):
        g(f"s_bfe_u32 s{sT0}, s{sWg}, {0x10000 * opt.get('stagb', 1) + 3}")
        g("L_stag:")
        g(f"s_sub_u32 s{sT0}, s{sT0}, 1")
        g("s_cbranch_scc1 L_stag_e")
        g(f"s_sleep {opt['stag']}")
        g("s_branch L_stag")
        g("L_stag_e:")
    g(f"s_cmp_lt_u32 s{sWv}, 4")
    g("s_cbranch_scc1 L_startA")

    P = [Stream("P", ph) for ph in range(2)]
    P1, P2, P3, GA, GB = (Direct(n) for n in range(5))
    d1 = opt.get('d1', 1)

    g(f"v_lshrrev_b32 v12, 3, v0")
    g(f"v_and_b32 v13, 7, v0")
    g(f"v_lshrrev_b32 v14, 4, v0")
    g(f"v_xor_b32 v14, v14, v13")
    g(f"s_lshl_b32 s{sT3}, s{sW}, 11")
    g(f"v_lshl_add_u32 v14, v14, 4, s{sT3}")
    g(f"v_lshl_add_u32 v16, v12, 13, v14")
    g(f"v_xor_b32 v17, 0x10040, v16")
    g(f"v_add_u32 v19, 1024, v17")
    g(f"s_cmp_eq_u32 s{sTau}, 0")
    g(f"s_cselect_b32 s{sT3}, 1024, 0")
    g(f"v_cmp_gt_u32 vcc, s{sT3}, v16")
    g(f"v_mov_b32 v15, {OOB}")
    g(f"s_cmp_eq_u32 s{sTau}, 127")
    g(f"v_cndmask_b32 v16, v16, v15, vcc")
    g(f"s_mov_b32 s{sX+3}, 0x20000")
    g(f"s_cselect_b32 s{sX+2}, {127*1024}, s{sX+3}")
    g(f"v_add_u32 v18, 1024, v16")
    g(f"s_lshl_b32 s{sT3}, s{sW}, 12")
    g("s_waitcnt lgkmcnt(0)")
    g(f"s_add_u32 s{sX}, s{kx}, s2")
    g(f"s_addc_u32 s{sX+1}, s{kx+1}, 0")
    g(f"s_sub_u32 s{sX}, s{sX}, 2048")
    g(f"s_subb_u32 s{sX+1}, s{sX+1}, 0")
    if opt.get("hd") == 1: g.stamp(8)

    def d1_addr():
        g(f"v_lshrrev_b32 v1, 5, v0")
        g(f"v_lshlrev_b32 v1, 1, v1")
        g(f"v_and_b32 v2, 3, v0")
        g(f"v_xor_b32 v1, v1, v2")
        g(f"s_lshl_b32 s{sW64}, s{sW}, 6")
        g(f"v_lshl_add_u32 v1, v1, 4, s{sW64}")
        g(f"v_lshrrev_b32 v3, 2, v0")
        g(f"v_lshl_add_u32 v{vD1}, v3, 11, v1")
        g(f"s_lshl_b32 s{sRing}, s{sW}, 13")
        g(f"s_add_u32 s{sRing}, s{sRing}, 131072")
        g(f"s_add_u32 s{sRing+1}, s{sRing}, 4096")
        for f in set_kconst(g, "P"): f()

    def ct_srd():
        g(f"s_lshl_b32 s{sT0}, s{sW}, 11")
        g(f"s_add_u32 s{sT0}, s{sT0}, {CTOFF}")
        g(f"s_add_u32 s{sDW}, s{sWq}, s{sT0}")
        g(f"s_addc_u32 s{sDW+1}, s{sWq+1}, 0")
        g(f"s_mov_b32 s{sDW+2}, 32768")
        g(f"s_mov_b32 s{sDW+3}, 0x20000")

    def common(role):
        srd(g, sW2, kw2, 524288)
        g(f"s_add_u32 s{sO}, s{kout}, s2")
        g(f"s_addc_u32 s{sO+1}, s{kout+1}, 0")
        g(f"s_sub_u32 s{sO}, s{sO}, 2048")
        g(f"s_subb_u32 s{sO+1}, s{sO+1}, 0")
        g(f"s_mov_b32 s{sO+2}, {127*1024}")
        g(f"s_mov_b32 s{sO+3}, 0x20000")
        srd(g, sDBG, kdbg, 256)
        g(f"s_lshl_b32 s{sT0}, s{sTile}, 11")
        g(f"s_add_u32 s{sWS}, s{kws}, s{sT0}")
        g(f"s_addc_u32 s{sWS+1}, s{kws+1}, 0")
        g(f"s_sub_u32 s{sWE}, s{sWS}, 2048")
        g(f"s_subb_u32 s{sWE+1}, s{sWS+1}, 0")
        g(f"s_cmp_eq_u32 s{sTau}, 127")
        g(f"s_cselect_b32 s{sWS+2}, 0, 2048")
        g(f"s_cmp_eq_u32 s{sTau}, 0")
        g(f"s_cselect_b32 s{sWE+2}, 0, 2048")
        g(f"s_mov_b32 s{sWS+3}, 0x20000")
        g(f"s_mov_b32 s{sWE+3}, 0x20000")
        if stamps:
            g(f"s_mov_b64 s[40:41], s[{kws}:{kws+1}]")
        g(f"s_mov_b32 s{sC}, 0xbfb8aa3b")
        g(f"s_mov_b32 s{sCi}, 0xbf317218")
        g(f"s_lshl_b32 s{sW128}, s{sW}, 7")
        g(f"v_lshrrev_b32 v3, 4, v0")
        g(f"v_lshlrev_b32 v4, 1, v3")
        g(f"v_lshlrev_b32 v{vG8}, 4, v3")
        g(f"v_bfe_u32 v5, v0, 2, 2")
        g(f"v_xor_b32 v24, v5, v3")
        g(f"v_lshlrev_b32 v24, 24, v24")
        g(f"v_lshl_add_u32 v24, v5, 8, v24")
        g(f"v_lshl_add_u32 v{vM0}, v2, 4, v24")
        g(f"v_and_b32 v25, 15, v0")
        g(f"v_lshl_add_u32 v{vEX}, v25, 24, v{vG8}")
        g(f"s_lshr_b32 s{sT0}, s{sW}, 1")
        g(f"s_lshl_b32 s{sT0}, s{sT0}, 14")
        g(f"s_and_b32 s{sT1}, s{sW}, 1")
        g(f"s_lshl_b32 s{sT1}, s{sT1}, 10")
        g(f"s_add_u32 s{sSb}, s{sT0}, s{sT1}")
        g(f"s_add_u32 s{sSb}, s{sSb}, {32768 if role == 0 else 98304}")
        g(f"v_lshl_add_u32 v{vS}, v0, 4, s{sSb}")
        g(f"s_add_u32 s{sWq}, s{kws}, {WPOFF}")
        g(f"s_addc_u32 s{sWq+1}, s{kws+1}, 0")
        g(f"s_lshl_b32 s{sT0}, s{sW}, 16")
        g(f"s_add_u32 s{sWP}, s{sWq}, s{sT0}")
        g(f"s_addc_u32 s{sWP+1}, s{sWq+1}, 0")
        g(f"s_sub_u32 s{sWP}, s{sWP}, s{sSb}")
        g(f"s_subb_u32 s{sWP+1}, s{sWP+1}, 0")
        g(f"s_lshr_b32 s{sT1}, s{sW}, 1")
        g(f"s_lshl_b32 s{sT1}, s{sT1}, 16")
        g(f"s_sub_u32 s{sHo}, s{sT1}, s{sT0}")
        g(f"s_and_b32 s{sT1}, s{sW}, 1")
        g(f"s_lshl_b32 s{sT1}, s{sT1}, 12")
        g(f"s_add_u32 s{sHo}, s{sHo}, s{sT1}")
        g(f"s_mov_b32 s{sWP+2}, 0x200000")
        g(f"s_mov_b32 s{sWP+3}, 0x20000")
        g(f"v_bfe_u32 v4, v0, 4, 1")
        g(f"v_bfe_u32 v5, v0, 2, 2")
        g(f"v_lshl_add_u32 v{vW0}, v3, 9, s{sRing}")
        g(f"v_lshl_add_u32 v{vW0}, v5, 6, v{vW0}")
        g(f"v_lshl_add_u32 v{vW0}, v4, 5, v{vW0}")
        g(f"v_lshl_add_u32 v{vW0}, v2, 3, v{vW0}")
        g(f"v_xor_b32 v{vW1}, 32, v{vW0}")
        g(f"v_and_b32 v4, 15, v0")
        g(f"v_lshrrev_b32 v5, 1, v4")
        g(f"v_xor_b32 v5, v5, v3")
        g(f"v_lshlrev_b32 v5, 4, v5")
        g(f"v_lshl_add_u32 v{vX0}, v4, 7, v5")
        g(f"v_xor_b32 v{vX1}, 64, v{vX0}")
        if stamps:
            g("s_mov_b64 s[76:77], s[100:101]")


    sWB = 0
    sub = (0, 64)
    def wbase(key):
        if key < 2 - d1:
            g(f"s_lshl_b32 s{sT2}, s{sSl}, 13")
            g(f"s_add_u32 s{sT2}, s{sT2}, {key * 256}")
            ptr = sW1
        else:
            g(f"s_lshl_b32 s{sT2}, s{sSl}, 11")
            g(f"s_add_u32 s{sT2}, s{sT2}, {(key - 1) * 262144}")
            ptr = sWq
        g(f"s_add_u32 s{sWB}, s{ptr}, s{sT2}")
        g(f"s_addc_u32 s{sWB+1}, s{ptr+1}, 0")
    def wlines(key):
        if key < 2 - d1:
            return [(key, n * 1024 + e * 64) for n in range(8) for e in range(4)]
        return [(key, n * 64) for n in range(32)]
    def swarm(lines):
        cur = None
        for n, (key, of) in enumerate(lines):
            if key != cur:
                wbase(key); cur = key
            if n % 14 == 0:
                g(f"s_waitcnt lgkmcnt({15 - min(14, len(lines) - n)})")
            g(f"s_load_dword s3, s[{sWB}:{sWB+1}], {of}")
    later = wlines(1)
    nb = 8
    def e_warm(key, n0=0):
        if str(key) not in str(opt.get("wk", "5")):
            return []
        def ld(n, of):
            if n + n0 >= 14:
                g("s_waitcnt lgkmcnt(13)")
            g(f"s_load_dword s3, s[{sWB}:{sWB+1}], {of}")
        return [lambda: wbase(key)] + [(lambda n=n, of=of: ld(n, of)) for n, (_, of) in enumerate(wlines(key))]

    def x_issue(kp):
        g(f"s_movk_i32 s{sT0}, {kp*128}")
        for jj in range(2):
            for hh in range(2):
                g(f"s_add_u32 m0, s{sT3}, {kp*16384 + jj*2048 + hh*1024}")
                g("s_nop 0")
                g.vmem(f"buffer_load_dwordx4 v{16+2*jj+hh}, s[{sX}:{sX+3}], s{sT0} offen {xfl} lds".replace("  ", " "), tag=("x", kp))
    x_issue(0)
    if opt.get("hd") == 2:
        g("s_waitcnt vmcnt(0)"); g.stamp(8)
    srd(g, sW1, kw1, 1048576)
    g(f"s_getpc_b64 s[{sCode}:{sCode+1}]")
    g("L_pc:")
    g(f"s_mov_b32 s{sCode+2}, L_code_end-L_pc")
    g(f"s_mov_b32 s{sCode+3}, 0x20000")
    g(f"s_lshr_b32 s{sT1}, s{sWg}, 3")
    g(f"s_lshl2_add_u32 s{sSl}, s{sT1}, s{sW}")
    g(f"v_lshrrev_b32 v6, 1, v0")
    g(f"v_lshlrev_b32 v6, 10, v6")
    g(f"v_and_b32 v7, 1, v0")
    g(f"v_lshl_add_u32 v6, v7, 7, v6")
    g(f"v_lshrrev_b32 v7, 4, v0")
    g(f"v_lshl_add_u32 v6, v7, 28, v6")
    def warm_w1(ph, dst):
        g(f"s_lshl_b32 s{sT2}, s{sSl}, 13")
        if ph:
            g(f"s_add_u32 s{sT2}, s{sT2}, {ph * 256}")
        g.vmem(f"buffer_load_dword v{dst}, v6, s[{sW1}:{sW1+3}], s{sT2} offen {opt.get('wfl', '')}", [dst])
    if opt.get("warm0", 1) == 1:
        warm_w1(0, 8)
    g(f"s_lshl_b32 s{sT2}, s{sSl}, 7")
    g(f"v_lshlrev_b32 v7, 14, v0")
    g.vmem(f"buffer_load_dword v9, v7, s[{sCode}:{sCode+3}], s{sT2} offen", [9])
    if opt.get("warm0", 1) == 2:
        swarm(wlines(0)[12 * len(sub):])
    if opt.get("hd") in (2, 3):
        g("s_waitcnt vmcnt(0)"); g.stamp(9)
    d1_addr()
    common(1)
    sTs, sTd = 64, 65
    g(f"v_lshrrev_b32 v26, 3, v0")
    g(f"v_lshlrev_b32 v27, 4, v13")
    g(f"s_and_b32 s{sT0}, s{sWg}, 15")
    g(f"s_lshr_b32 s{sT1}, s{sT0}, 1")
    g(f"s_lshl_b32 s{sTd}, s{sT1}, 13")
    g(f"s_and_b32 s{sT1}, s{sT0}, 1")
    g(f"s_lshl_b32 s{sT1}, s{sT1}, 10")
    g(f"s_add_u32 s{sTd}, s{sTd}, s{sT1}")
    g(f"s_cmp_ge_u32 s{sWg}, 128")
    g("s_cbranch_scc1 L_task2")
    g(f"v_and_b32 v28, 3, v26")
    g(f"v_lshrrev_b32 v26, 2, v26")
    g(f"v_lshl_add_u32 v26, v26, 3, v28")
    g(f"v_lshl_add_u32 v26, v26, 11, v27")
    g(f"s_lshl_b32 s{sTs}, s{sT0}, 16")
    g(f"s_and_b32 s{sT1}, s{sW}, 1")
    g(f"s_lshl_b32 s{sT2}, s{sT1}, 15")
    g(f"s_add_u32 s{sTs}, s{sTs}, s{sT2}")
    g(f"s_lshl_b32 s{sT2}, s{sT1}, 11")
    g(f"s_add_u32 s{sTd}, s{sTd}, s{sT2}")
    g(f"s_lshr_b32 s{sT1}, s{sW}, 1")
    g(f"s_lshl_b32 s{sT2}, s{sT1}, 13")
    g(f"s_add_u32 s{sTs}, s{sTs}, s{sT2}")
    g(f"s_lshl_b32 s{sT2}, s{sT1}, 16")
    g(f"s_add_u32 s{sTd}, s{sTd}, s{sT2}")
    g(f"s_bfe_u32 s{sT1}, s{sWg}, 0x10004")
    g(f"s_lshl_b32 s{sT2}, s{sT1}, 10")
    g(f"s_add_u32 s{sTs}, s{sTs}, s{sT2}")
    g(f"s_lshl_b32 s{sT2}, s{sT1}, 12")
    g(f"s_add_u32 s{sTd}, s{sTd}, s{sT2}")
    g(f"s_lshr_b32 s{sT1}, s{sWg}, 5")
    g(f"s_lshl_b32 s{sT2}, s{sT1}, 7")
    g(f"s_add_u32 s{sTs}, s{sTs}, s{sT2}")
    g(f"s_add_u32 s{sTs}, s{sTs}, 512")
    g(f"s_lshl_b32 s{sT2}, s{sT1}, 17")
    g(f"s_add_u32 s{sTd}, s{sTd}, s{sT2}")
    srd(g, sW2, sW1, 1048576)
    g("s_branch L_task3")
    g("L_task2:")
    g(f"v_lshl_add_u32 v26, v26, 10, v27")
    g(f"s_lshl_b32 s{sTs}, s{sT0}, 15")
    g(f"s_lshl_b32 s{sT2}, s{sW}, 13")
    g(f"s_add_u32 s{sTs}, s{sTs}, s{sT2}")
    g(f"s_lshl_b32 s{sT2}, s{sW}, 11")
    g(f"s_add_u32 s{sTd}, s{sTd}, s{sT2}")
    g(f"s_lshr_b32 s{sT1}, s{sWg}, 4")
    g(f"s_lshl_b32 s{sT2}, s{sT1}, 16")
    g(f"s_add_u32 s{sTd}, s{sTd}, s{sT2}")
    g(f"s_and_b32 s{sT1}, s{sT1}, 7")
    g(f"s_lshl_b32 s{sT2}, s{sT1}, 7")
    g(f"s_add_u32 s{sTs}, s{sTs}, s{sT2}")
    g("L_task3:")
    g(f"v_mov_b32 v42, v26")
    if d1:
        g(f"s_cmp_lt_u32 s{sWg}, 64")
        g(f"s_cselect_b32 s{sT1}, 0, 0x40000000")
        g(f"s_sub_u32 s{sSl+1}, s{sTs}, 256")
        g(f"s_max_i32 s{sSl+1}, s{sSl+1}, 0")
        g(f"v_add_u32 v43, s{sT1}, v26")
        g(f"v_lshl_add_u32 v41, v0, 4, s{sT1}")
    g(f"s_cmp_ge_u32 s{sWg}, {128 if opt.get('nsw', 1) else 256}")
    g(f"s_cselect_b32 s{sT2}, 3, 5")
    g(f"s_lshl_b32 s{sT1}, s{sW}, s{sT2}")
    g(f"s_add_u32 s{sT1}, s{sT1}, {SCR}")
    g(f"s_sub_u32 s{sT2}, 8, s{sT2}")
    g(f"v_lshrrev_b32 v26, 2, v0")
    g(f"v_lshl_add_u32 v26, v26, 7, s{sT1}")
    g(f"v_lshlrev_b32 v27, s{sT2}, v2")
    g(f"v_add_u32 v26, v26, v27")
    g(f"v_lshlrev_b32 v27, 4, v0")
    srd(g, sDW, kdw, 5120)
    g(f"s_lshl_b32 s{sT1}, s{sW}, 28")
    g(f"v_lshrrev_b32 v36, 5, v0")
    g(f"v_lshl_add_u32 v36, v36, 27, s{sT1}")
    g(f"v_bfe_u32 v37, v0, 2, 2")
    g(f"v_lshlrev_b32 v38, 1, v2")
    g(f"v_sub_u32 v37, v38, v37")
    g(f"s_lshl_b32 s{sT1}, s{sWg}, 2")
    g(f"v_lshl_add_u32 v37, v37, 10, s{sT1}")
    g(f"v_bfe_u32 v38, v0, 4, 1")
    g(f"v_lshl_add_u32 v37, v38, 1, v37")
    g(f"v_add_u32 v37, v37, v36")
    g(f"v_add_u32 v38, 1024, v37")
    g(f"s_lshl_b32 s{sT1}, s{sWg}, 7")
    g(f"s_add_u32 s{sT1}, s{sT1}, {CTOFF}")
    g(f"v_lshl_add_u32 v39, v0, 2, s{sT1}")
    g(f"v_add_u32 v36, v36, v39")
    def task_load():
        g(f"s_lshl_b32 s{sT1}, s{sW}, 10")
        g(f"s_add_u32 m0, s{sT1}, {SCR}")
        g.vmem(f"buffer_load_ushort v39, v37, s[{sDW}:{sDW+3}], 0 offen", [39], tag="task")
        g.vmem(f"buffer_load_dwordx4 v42, s[{sW2}:{sW2+3}], s{sTs} offen {opt.get('tnt', 'nt')} lds", tag="task")
        g(f"s_add_u32 m0, m0, 4096")
        g.vmem(f"buffer_load_ushort v40, v38, s[{sDW}:{sDW+3}], 0 offen", [40], tag="task")
        if d1:
            g.vmem(f"buffer_load_dwordx4 v43, s[{sW1}:{sW1+3}], s{sSl+1} offen {opt.get('tnt', 'nt')} lds", tag="task")
        ct_srd()
        srd(g, sW2, sWq, 0x148000)
    tk = opt.get("tk", 1)
    if tk == 1:
        task_load()
    assert rbar and win == 2
    def w_first():
        P[0].advance(g, 0)
        for ab in range(2):
            set_m0(g, ab)
            g("s_nop 0")
            for m in range(4):
                P[0].dma(g, ab, m, ("x", 0))
    wA = opt.get("wA", 2)
    if wA:
        g.barrier("w0")
    else:
        w_first()
    for kp in range(1, win):
        x_issue(kp)
    g.wait(vm=("x", 0))
    g.barrier("x0")
    g("s_branch L_roleB")
    vmB = list(g.vm); g.vm = []; g.bars = []

    g("L_startA:")
    d1_addr()
    g("s_waitcnt lgkmcnt(0)")
    if opt.get("tlb", 0):
        g(f"s_add_u32 s{sO}, s{kout}, s2")
        g(f"s_addc_u32 s{sO+1}, s{kout+1}, 0")
        for n, (k, off) in enumerate(((kw1, 0), (kdw, 0), (kw2, 0), (kws, 0x80000), (sO, 0))):
            g(f"s_load_dword s3, s[{k}:{k+1}], {off}")
    srd(g, sW1, kw1, 1048576)
    g(f"s_lshr_b32 s{sT1}, s{sWg}, 3")
    g(f"s_lshl2_add_u32 s{sSl}, s{sT1}, s{sW}")
    if opt.get("warm0", 1) == 2:
        swarm(wlines(0)[:12 * len(sub)])
    if wA == 2:
        w_first()
    common(0)
    ct_srd()
    if wA == 1:
        w_first()
    if stamps == 4:
        g(f"s_add_u32 s4, s40, {STAMP_OFF}\ns_addc_u32 s5, s41, 0\ns_mov_b32 s6, 0x100000\ns_mov_b32 s7, 0x20000")
        g(f"s_lshl_b32 s42, s{sWg}, 3\ns_add_u32 s42, s42, s{sWv}\ns_lshl_b32 s42, s42, 7")
        g("v_mov_b32 v8, s74\nv_mov_b32 v9, s75\nv_mov_b32 v10, s74\nv_mov_b32 v11, s75\nv_and_b32 v12, 1, v0\nv_lshrrev_b32 v13, 1, v0\nv_lshlrev_b32 v12, 9, v12\nv_lshl_add_u32 v12, v13, 24, v12")
        g.vmem("buffer_store_dwordx4 v[8:11], v12, s[4:7], s42 offen sc0 sc1")
    if wA:
        g.barrier("w0")
        g.drain(vm=True)
        g("s_waitcnt lgkmcnt(0)")
    g.stamp(8)
    g.barrier("x0")
    g.stamp(9)
    it = start_a(g, P[0])
    run(it[:8] + start_x(g, P[0]) + start_b(g, P[0])[:8])
    run(it[8:10]); g("s_nop 0"); run(it[10:] + start_b(g, P[0])[8:])
    ex = {(kp, rbar): (lambda kp=kp: g.barrier(f"r{kp}")) for kp in range(8 - win)} if rbar else {}
    g.stamp(1)
    if d1:
        def h0():
            g.wait(lg=("rb", 7))
            g.barrier("h0")
        ex[(7, opt.get("h0g", 45))] = h0
    mfma_phase(g, P[0], None if d1 else P[1], "h0", xbar=lambda kp: g.barrier(f"x{kp}"), first=True, extra=ex)
    g.stamp(2)
    def sw(reg, off, va=vS):
        return lambda: g.ds(f"ds_write_b128 v{va}, {R(reg)} offset:{off}", tag="sw")
    e_phase(g, 0, VH, pre=P2.start_w(g) + P2.start_x(g), warm=e_warm(2))
    if not d1:
        g.barrier("h1")
    g.stamp(3)
    direct_phase(g, P2)
    g.stamp(4)
    e_phase(g, 2, 0, pre=GA.start_w(g), warm=e_warm(4) + (e_warm(5, 14 if e_warm(4) else 0) if opt.get('w5', 2) == 2 else []))
    g_addr(g)
    outv_addr(g, 64)
    g.barrier("h3")
    nb_ = opt.get("burst", 0)
    if nb_ >= 8:
        run([sw(4 * j, 32768 + j * 2048) for j in range(8)] + GA.start_x(g) + [sw(VH + 4 * j, j * 2048) for j in range(nb_ - 8)])
    else:
        run([sw(0, 32768), sw(4, 32768 + 2048)] + GA.start_x(g) + [sw(8, 32768 + 4096)])
    g.stamp(5)
    yl = [int(v) for v in str(opt.get("yl", "4 6 7")).split()]
    GA.merge = len(yl) > 1
    def xbarA(kp, j):
        if kp == 2 and j == 0:
            g.wait(lg="sw")
            g.barrier("V")
        if kp == 6 and (j == 0 or j - 1 in yl):
            g.barrier(f"Y{min(v for v in yl if v >= j)}")
    ex = {(0, 8 * (j - 3) + 4): sw(4 * j, 32768 + j * 2048) for j in range(3, 8)} if nb_ < 8 else {}
    fr = ((0, 44), (0, 52), (1, 4), (1, 12), (1, 20), (1, 28), (1, 34), (1, 38))
    ex.update({fr[j]: sw(VH + 4 * j, j * 2048) for j in range(max(nb_ - 8, 0), 8)})
    na = opt.get("na", 0) if GA.merge else 0
    pend = out_interleave(g, ex, True, [int(c) for c in str(opt.get("opera", 2))], na, opt.get("stA", "nt")) if na else []
    split = opt.get("split", 0)
    HB, HA = Half(0), Half(1)
    if split:
        assert GA.merge and not na
        for n, f in enumerate(HA.loads(g, 4) + HA.loads(g, 5)):
            ex[(6, 8 * (n // 2) + 3 + 2 * (n % 2))] = f
    direct_phase(g, GA, xbar=xbarA, extra=ex)
    g.stamp(6)
    g("s_setprio 0")
    g("s_nop 6")
    run(pend)
    zg = [int(v) for v in str(opt.get("zg", "1 2 2 2 1")).split() if int(v)]
    j = na
    assert na + sum(zg) <= 8
    for n, cnt in enumerate(zg):
        for jj in range(j, j + cnt):
            run(outv_items(g, jj, jj, opt.get("stA", "nt"), 1))
        g.barrier(f"Z{n}")
        for jj in range(j, j + cnt):
            run(outv_items(g, jj, jj, opt.get("stA", "nt"), 3))
        j += cnt
    for jj in range(j, 8):
        if opt.get("outA", 2): run(outv_items(g, jj, jj, opt.get("stA", "nt"), opt.get("outA", 2), None if split else opt.get("infl", 1)))
        if split and jj < 6:
            run(HA.loads(g, (0, 1, 2, 3, 6, 7)[jj]))
    if split:
        g("s_nop 0")
        outv_addr(g, 16, 1)
        run(HA.start_x(g, 0, 5))
        g.stamp(8)
        ex, pend = {}, []
        def f(m):
            if m % 64 == 7 and m > 63:
                j = 2 * (m // 64 - 1)
                pend.extend(outv_items(g, j, j // 2, opt.get("stH", "sc1"), Q=[HA.aq(j + q // 2, q % 2) for q in range(4)]))
            if m % 4 >= 2:
                for _ in range(opt.get("hper", 2)):
                    if pend: pend.pop(0)()
        HA.phase(g, {m: (lambda m=m: f(m)) for m in range(256)})
        assert not pend
        g.stamp(9)
        g("s_nop 7")
        run(outv_items(g, 6, 3, opt.get("stH", "sc1"), Q=[HA.aq(6 + q // 2, q % 2) for q in range(4)]))
    g.stamp(7)
    barsA = g.bars
    g("s_branch L_fin")

    g.lg, g.vm, g.bars = [], vmB, ["w0", "x0"] if wA else ["x0"]
    g("L_roleB:")
    def task_read():
        assert not any(t == "task" for _, t in g.vm)
        for n in range(1 + d1):
            g(f"ds_read_b64_tr_b16 v[{28+4*n}:{29+4*n}], v26 offset:{4096*n}")
            g(f"ds_read_b64_tr_b16 v[{30+4*n}:{31+4*n}], v26 offset:{4096*n + 2048}")
        g("s_waitcnt lgkmcnt(0)")
    def task_store():
        if opt.get("psc", 0):
            g(f"s_and_b32 s{sT1}, s{sWg}, 0x90")
            g(f"s_cmp_eq_u32 s{sT1}, 0x10")
            g(f"s_cselect_b32 s{sT1}, s{sC}, 1.0")
            for r in range(28, 36):
                g(f"v_lshlrev_b32 v44, 16, v{r}")
                g(f"v_and_b32 v45, 0xffff0000, v{r}")
                g(f"v_mul_f32 v44, s{sT1}, v44")
                g(f"v_mul_f32 v45, s{sT1}, v45")
                g(f"v_cvt_pk_bf16_f32 v{r}, v44, v45")
        g(f"v_lshl_or_b32 v39, v40, 16, v39")
        g.vmem(f"buffer_store_dword v39, v36, s[{sW2}:{sW2+3}], 0 offen {opt.get('tfl', 'sc0 sc1')}", tag="clr")
        g.vmem(f"buffer_store_dwordx4 v[28:31], v27, s[{sW2}:{sW2+3}], s{sTs} offen {opt.get('tfl', 'sc0 sc1')}", tag="clr")
        if d1:
            g.vmem(f"buffer_store_dwordx4 v[32:35], v41, s[{sW2}:{sW2+3}], s{sTd} offen {opt.get('tfl', 'sc0 sc1')}", tag="clr")
    if tk == 2 and opt.get("tpre", 1):
        task_load()
    g.barrier("r0")
    if tk == 2 and not opt.get("tpre", 1):
        task_load()
    x_issue(win)
    g(f"s_and_b32 s{sGrp}, s{sTile}, 0xfc")
    g(f"s_lshl_b32 s{sT1}, s{sW}, 9")
    g(f"v_lshlrev_b32 v21, 3, v0")
    g(f"v_mov_b32 v22, -1")
    g(f"v_mov_b32 v23, -1")
    g(f"s_add_u32 s{sTs}, s{sTd}, 262144")
    g.vmem(f"buffer_store_dwordx2 v[22:23], v21, s[{sWS}:{sWS+3}], s{sT1} offen {opt.get('tfl', 'sc0 sc1')}", tag="clr")
    g.stamp(1)
    def ready():
        g(f"s_mov_b32 s{sT2}, {opt.get('spin', 400000)}")
        g.wait(regs=[22])
        g.point("rdy_")
        if opt.get("p1", 1):
            assert pk < 7 and "1" not in str(opt.get("wk", "5"))
            g(f"s_cmp_lg_u32 s{sW}, 0")
            g("s_cbranch_scc1 L_rdy_ok")
        g("L_rdy:")
        g(f"v_cmp_ne_u32 vcc, 15, v22")
        g(f"s_sub_u32 s{sT2}, s{sT2}, 1")
        g("s_cbranch_scc1 L_rdy_ok")
        g("s_cbranch_vccz L_rdy_ok")
        g(f"buffer_load_dword v22, v21, s[{sDBG}:{sDBG+3}], 0 offen sc0 sc1")
        g("s_waitcnt vmcnt(0)")
        g("s_branch L_rdy")
        g("L_rdy_ok:")
        g.point("rdy")
    pk = opt.get("pk", 6) if d1 else 7
    ak = opt.get("ak", 2)
    for kp in range(1, 8):
        g.wait(vm=("x", kp))
        if kp == ak:
            g.wait(vm="clr")
        g.barrier(f"x{kp}")
        if kp in (3, 7) and not opt.get("hd"):
            g.stamp({0: 1, 3: 8, 7: 9}[kp])
        if kp == tk:
            task_read()
            task_store()
        if kp == ak:
            assert not any(t == "clr" for _, t in g.vm)
            g(f"s_cmp_lg_u32 s{sW}, 0")
            g("s_cbranch_scc1 L_noann")
            g(f"s_and_b32 s{sT1}, s{sTile}, 3")
            g(f"s_lshl_b32 s{sT1}, 1, s{sT1}")
            if "a" not in str(opt.get("abl", "")):
                g(f"s_atomic_or s{sT1}, s[{sDBG}:{sDBG+1}], s{sGrp}")
            g("L_noann:")
        if kp + win < 8:
            g.barrier(f"r{kp}")
        if kp == pk - 1:
            g(f"s_lshl_b32 s{sT2}, s{sW}, {20 if opt.get('p1', 1) else 32}")
            g(f"v_lshlrev_b32 v21, 2, v0") if not opt.get("p1", 1) else g(f"v_lshl_add_u32 v21, v0, 2, s{sT2}")
            g.vmem(f"buffer_load_dword v22, v21, s[{sDBG}:{sDBG+3}], 0 offen sc0 sc1", [22])
        if kp + win < 8:
            x_issue(kp + win)
        if kp == pk:
            ready()
        if "1" in str(opt.get("wk", "5")) or not d1:
            if d1:
                nb = -(-32 // (8 - pk))
                if kp >= pk: swarm(later[(kp - pk) * nb:(kp - pk + 1) * nb])
            elif 2 <= kp < 6:
                swarm(later[(kp - 2) * nb:(kp - 1) * nb])
    g.drain(vm=True)
    def idle_start(name, own):
        run(start_x(g, own))
        g.barrier(name + "a")
        run(start_a(g, own))
        g.barrier(name + "b")
        g("s_setprio 1")
        run(start_b(g, own))
    if d1:
        run(P1.start_w(g))
        g("s_waitcnt lgkmcnt(0)")
        run(P1.start_x(g))
        g.barrier("h0")
        g.stamp(2)
        direct_phase(g, P1, reset=True)
    else:
        g("s_waitcnt lgkmcnt(0)")
        idle_start("h0", P[1])
        g.stamp(2)
        def h1():
            g.wait(lg=("rb", 7))
            g.barrier("h1")
        mfma_phase(g, P[1], None, None, extra={(7, opt.get("h1g", 20)): h1})
    g.stamp(3)
    e_phase(g, 1, 0, pre=P3.start_w(g) + P3.start_x(g), warm=e_warm(3), after_tile=lambda e, j: e.q2.append(sw(4 * j, 32768 + j * 2048)))
    g.wait(lg="sw")
    g.stamp(4)
    def h3():
        assert not any(t == "sw" for _, t in g.lg)
        g.barrier("h3")
    ex = {(7, opt.get("h3g", 30)): h3}
    if split:
        for n, f in enumerate(HB.loads(g, 0) + HB.loads(g, 1)):
            ex[(7, 8 * (n // 2) + 3 + 2 * (n % 2))] = f
    direct_phase(g, P3, extra=ex)
    g.stamp(5)
    def vB(e, j):
        if j == opt.get("vtile", 4):
            g.barrier("V")
            g_addr(g)
    def yB(e, j):
        e.q2.append(sw(4 * j, j * 2048))
        if j in yl:
            def f():
                g.wait(lg="sw")
                g.barrier(f"Y{j}")
            e.q2 += [lambda: None] * opt.get("ydel", 2) + [f]
    if split:
        np4 = opt.get("np4", 2)
        pre4 = [f for kp in range(2, 2 + np4) for f in HB.loads(g, kp)] + HB.start_x(g, 0, 3)
        e_phase(g, 3, 0, pre4=pre4, glu_tile=vB, after_tile=yB, tw=0)
        run(HB.start_x(g, 3, 5) + [f for kp in range(2 + np4, 8) for f in HB.loads(g, kp)])
        outv_addr(g, 88, 0)
        g.stamp(6)
        HB.phase(g, {opt.get("hbp", 66): lambda: g("s_setprio 2")})
        g.stamp(7)
        g("s_setprio 0")
        g("s_nop 6")
        for jp in range(4):
            run(outv_items(g, 2 * jp, jp, opt.get("stH", "sc1"), inflight=opt.get("inflB"), Q=[HB.aq(2 * jp + q // 2, q % 2) for q in range(4)]))
    else:
        e_phase(g, 3, 0, pre=GB.start_w(g) + GB.start_x(g), glu_tile=vB,
                warm=e_warm(5) if opt.get('w5', 2) == 3 else [], after_tile=yB, tw=0)
        outv_addr(g)
        GB.merge = bool(opt.get("merge", 1))
        if GB.merge and opt.get("early7", 1):
            GB.early7 = True
            GB.soff(g, 7, 0); GB.soff(g, 7, 1)
            for f in range(8): GB.load(g, 7, f)
            GB.soff(g, 1, 0); GB.soff(g, 1, 1)
        g.stamp(6)
        ex = {}
        for n in range(len(zg)):
            ex[(n, opt.get("zat", 30))] = (lambda n=n: g.barrier(f"Z{n}"))
        pend = out_interleave(g, ex, GB.merge, [int(c) for c in str(opt.get("oper", 2 if GB.merge else 4))], 7, opt.get("stB", "nt"), opt.get("outB", 2))
        direct_phase(g, GB, extra=ex)
        g.stamp(7)
        if len(pend) < 8:
            g("s_nop 7")
        run(pend)
        run(outv_items(g, 7, 7, opt.get("stB", "nt"), opt.get("outB", 2)))
    assert g.bars == barsA, (g.bars, barsA)
    g("L_fin:")
    if stamps and stamps != 4:
        g("s_waitcnt vmcnt(0)")
        g("s_memrealtime s[98:99]")
        g(f"s_mem{'real' if stamps == 3 else ''}time s[100:101]")
        g(f"s_add_u32 s4, s40, {STAMP_OFF}\ns_addc_u32 s5, s41, 0\ns_mov_b32 s6, 0x100000\ns_mov_b32 s7, 0x20000")
        g(f"s_lshl_b32 s8, s{sWg}, 3\ns_add_u32 s8, s8, s{sWv}\ns_lshl_b32 s8, s8, 7")
        g("s_waitcnt lgkmcnt(0)")
        g("s_mov_b64 exec, 1")
        g("v_mov_b32 v4, 0")
        order = [74, 98, 76, 100] + [76 + 2 * n for n in range(1, 10)]
        for n, s in enumerate(order):
            g(f"v_mov_b32 v0, s{s}\nv_mov_b32 v1, s{s+1}")
            g(f"buffer_store_dwordx2 v[0:1], v4, s[4:7], s8 offen offset:{8*n}")
            g("s_nop 1")
    g("L_end:")
    g("s_endpgm")
    g("L_code_end:")
    g('.section .rodata,"a"')
    g(".p2align 6")
    g(f".amdhsa_kernel {KN}_kernel")
    g.l += ["  .amdhsa_next_free_vgpr 256", "  .amdhsa_next_free_sgpr 102", "  .amdhsa_accum_offset 256",
            "  .amdhsa_group_segment_fixed_size 0", "  .amdhsa_kernarg_size 56", "  .amdhsa_user_sgpr_count 2",
            "  .amdhsa_user_sgpr_kernarg_segment_ptr 1", "  .amdhsa_system_sgpr_workgroup_id_x 1",
            "  .amdhsa_float_denorm_mode_32 3"]
    g(".end_amdhsa_kernel")
    t = g.text()
    if stamps and opt.get("probe", 1):
        t = t.replace("; @launch grid=(256,1,1) block=(512,1,1) lds=163840",
                      f"; @launch kernel={KN}_kernel grid=(256,1,1) block=(512,1,1) lds=163840\n; @launch kernel=probe_kernel grid=(1,1,1) block=(64,1,1) lds=0")
        a = [".p2align 8", ".globl probe_kernel", ".type probe_kernel,@function", "probe_kernel:",
             "s_memrealtime s[8:9]", "s_load_dwordx2 s[4:5], s[0:1], 48", "s_waitcnt lgkmcnt(0)",
             f"s_add_u32 s4, s4, {STAMP_OFF}", "s_addc_u32 s5, s5, 0", "s_mov_b32 s6, 0x100000", "s_mov_b32 s7, 0x20000",
             "v_mov_b32 v2, s8", "v_mov_b32 v3, s9", "v_mov_b32 v1, 120", "buffer_store_dwordx2 v[2:3], v1, s[4:7], 0 offen", "s_endpgm"]
        t = t.replace('.section .rodata,"a"', "\n".join(a) + '\n.section .rodata,"a"')
        t += ".p2align 6\n.amdhsa_kernel probe_kernel\n  .amdhsa_next_free_vgpr 16\n  .amdhsa_next_free_sgpr 32\n  .amdhsa_accum_offset 16\n" \
             "  .amdhsa_group_segment_fixed_size 0\n  .amdhsa_kernarg_size 56\n  .amdhsa_user_sgpr_count 2\n" \
             "  .amdhsa_user_sgpr_kernarg_segment_ptr 1\n  .amdhsa_system_sgpr_workgroup_id_x 1\n.end_amdhsa_kernel\n"
    return t


def parse(args):
    opt = {}
    for a in args:
        k, v = a.split("=", 1)
        try:
            v = int(v)
        except ValueError:
            v = v.replace("+", " ")
        opt[k] = v
    return opt


if __name__ == "__main__":
    open(sys.argv[1], "w").write(build(parse(sys.argv[2:])))
```

```python
import sys

KN = "standalone__conformer_conv_module__speech"
STAMP_OFF = 255 * 1024 * 1024

HEAD = """; Kernarg layout for this problem (56 bytes, ptrs only, base s[0:1]):
;   offset   0: d_in[0] x  shape=(2, 16000, 512) dtype=bfloat16 strides=(16384000, 1024, 2) contiguous=True
;   offset   8: d_in[1] w_pw1  shape=(512, 1024) dtype=bfloat16 strides=(2048, 2) contiguous=True
;   offset  16: d_in[2] dw  shape=(5, 512) dtype=bfloat16 strides=(1024, 2) contiguous=True
;   offset  24: d_in[3] w_pw2  shape=(512, 512) dtype=bfloat16 strides=(1024, 2) contiguous=True
; Override launch geometry by editing the next line (default: block=256,
"""

DOC = """
;
; Fused  out = silu(dwconv5(glu(x @ W1))) @ W2.   One workgroup per CU, 125 output rows each (128-row tile, row u = 8*lane15 + tile).
;   phase   0          1          2          3          4           5
; x lives in LDS (128 KB, LDS-DMA, swizzled); silu output fragments replace it for GEMM2.
; Phase 0 transposes W1 through a small LDS ring (ds_read_b64_tr_b16).  Meanwhile every workgroup re-lays one slice of the
; The depthwise conv is one MFMA per 4 outputs (banded weights x time-packed GLU output).  The one GLU row a tile lacks (u = 128)
; comes from the next tile's workgroup through a mailbox in d_ws that is emptied at the start of each launch.
"""

def ACC(i, j): return 4 * (i * 8 + j)
VH = 128
VWX, VWY, VWZ = 160, 176, 192
VXR = 208
vDc, vW0, vW1, vD1 = 240, 242, 243, 244
def DW(i, h, p): return 160 + 32 * (p % 2) + 8 * i + 4 * h
def DX(n, h): return 224 + 8 * (n % 3) + 4 * h
vX0, vX1, vS = 248, 249, 250
vG8, vM0, vM1, vEX = 251, 252, 253, 254
def AF(ct, r): return 192 + 16 * ct + 4 * r
def TP(ct, r, q):
    n = 4 * ct + r
    return (160 + 6 * n if n < 5 else 224 + 6 * (n - 5)) + q + 1
def YY(ct, r, j): return 64 + 32 * ct + 8 * r + j
VEXP = 160
VTMP, VIMP = 32, 40
CTOFF = 0x140000
sX, sW1, sW2, sO, sDW, sWS, sDBG, sWE = 4, 8, 12, 16, 20, 24, 28, 32
sW64, sHo, sW128, sSb = 36, 37, 38, 39
sRing = 44
sT0, sT1, sT2, sT3 = 46, 47, 48, 49
sC, sCi = 50, 51
sWv, sW, sTile, sTau, sWg, sGrp = 52, 53, 54, 55, 56, 57
sWP = 60
sWq = 58
sK = 66
sSl = 96
sCode = 16
KA = 76
QORD = (1, 2, 0, 3)
WPOFF = 1 << 20

OOB = 0x7f000000
SCR = 7 * 16384


class Gen:
    def __init__(self, opt):
        self.l = []
        self.opt = opt
        self.lg = []
        self.vm = []
        self.bars = []

    def __call__(self, s=""):
        for line in s.split("\n"):
            self.l.append(line if line.endswith(":") or line.startswith(".") or line.startswith(";") else "    " + line)

    def text(self):
        return "\n".join(self.l) + "\n"

    def ds(self, text, regs=(), tag=None):
        if self.opt.get("nosw") and tag == "sw":
            return
        if len(self.lg) >= 15:
            self("s_waitcnt lgkmcnt(11)"); self.lg = self.lg[-11:]
        self(text); self.lg.append((set(regs), tag))

    def vmem(self, text, regs=(), tag=None):
        abl = str(self.opt.get("abl", ""))
        if ("s" in abl and tag == "clr" and "dwordx4" in text) or ("c" in abl and tag == "clr" and "dwordx2" in text) or \
           ("p" in abl and regs == [22]) or ("d" in abl and regs == [10]) or ("t" in abl and tag == "task"):
            return
        self(text); self.vm.append((set(regs), tag))

    def _idx(self, q, regs, tag):
        idx = -1
        for n, (r, t) in enumerate(q):
            if (regs and (r & set(regs))) or (tag is not None and t == tag):
                idx = n
        return idx

    def wait(self, regs=(), lg=None, vm=None):
        parts = []
        i = self._idx(self.vm, regs, vm)
        if i >= 0:
            n = min(len(self.vm) - 1 - i, 63)
            parts.append(f"vmcnt({n})"); self.vm = self.vm[len(self.vm) - n:] if n else []
        i = self._idx(self.lg, regs, lg)
        if i >= 0:
            n = min(len(self.lg) - 1 - i, 15)
            parts.append(f"lgkmcnt({n})"); self.lg = self.lg[len(self.lg) - n:] if n else []
        if parts:
            self("s_waitcnt " + " ".join(parts))

    def drain(self, vm=False, lg=False):
        parts = []
        if vm and self.vm:
            parts.append("vmcnt(0)"); self.vm = []
        if lg and self.lg:
            parts.append("lgkmcnt(0)"); self.lg = []
        if parts:
            self("s_waitcnt " + " ".join(parts))

    def barrier(self, name):
        self.point(name + "_")
        self(f"s_barrier"); self.bars.append(name)
        self.point(name)

    def point(self, name):
        pts = self.opt.get("pts")
        if pts and name in pts.split():
            n = pts.split().index(name) + 1
            self(f"s_mem{'real' if self.opt['stamps'] == 3 else ''}time s[{76+2*n}:{77+2*n}]")

    def stamp(self, n):
        if self.opt.get("pts"):
            return self.point(f"s{n}")
        if self.opt.get("stamps") in (1, 3):
            self(f"s_mem{'real' if self.opt['stamps'] == 3 else ''}time s[{76+2*n}:{77+2*n}]")
            self("s_waitcnt lgkmcnt(0)")
            self.lg = []


def R(a, n=4): return f"v[{a}:{a+n-1}]"
def rs(a, n=4): return list(range(a, a + n))


def wreg(i, h, p, kind="P"):
    if i < 2:
        return (VWX if p % 2 == 0 else VWY) + 8 * i + 4 * h
    return VWZ + 8 * (i - 2) + 4 * h


def xreg(j, h): return VXR + 8 * (j % 4) + 4 * h


def kconst(kind, ab, m):
    return 16 * m * 2048 + ab * 1024 - m * 1024


def set_kconst(g, kind):
    return [lambda ab=ab, m=m: g(f"s_mov_b32 s{sK + 4*ab + m}, {kconst(kind, ab, m)}") for ab in range(2) for m in range(4)]


class Stream:
    def __init__(self, kind, arg):
        self.kind, self.arg = kind, arg

    def advance(self, g, kp, fresh=False):
        g(f"v_add_u32 v{vDc}, {kp * 131072 + self.arg * 256}, v{vD1}")

    def dma(self, g, ab, m, tag, fl=""):
        if g.opt.get("nodma"):
            return
        srd = sW1
        g.vmem(f"buffer_load_dwordx4 v{vDc}, s[{srd}:{srd+3}], s{sK + 4*ab + m} offen offset:{m*1024} {fl} lds", tag=tag)


def set_m0(g, ab):
    g(f"s_mov_b32 m0, s{sRing + ab}")


def tr_read(g, i, h, q, p, tag, kind="P"):
    d = wreg(i, h, p, kind) + 2 * q
    off, base = (i >> 1) * 4096 + h * 2048 + q * 256, vW0 + (i & 1)
    g.ds(f"ds_read_b64_tr_b16 {R(d, 2)}, v{base} offset:{off}", rs(d, 2), tag)


def part_reads(kind, ab):
    return [(i, h, q) for i in ((0, 1) if ab == 0 else (3, 2)) for h in range(2) for q in range(2)]


def x_read(g, kind, kp, j, h, d=None):
    if d is None:
        d = xreg(j, h)
    if kind == "P":
        off, base = (kp * 8 + j) * 2048 % 65536, vX0 + h
    else:
        off = (1 - (kp >> 2)) * 32768 + (kp & 1) * 16384 + j * 2048 + h * 1024
        base = vX0 + (0, 1, 1, 0)[kp >> 1]
    g.ds(f"ds_read_b128 {R(d)}, v{base} offset:{off}", rs(d))


def chain_order(jp):
    j0, j1 = 2 * jp, 2 * jp + 1
    if jp % 2 == 0:
        return [(j0, 0), (j0, 1), (j1, 1), (j1, 0), (j1, 2), (j1, 3), (j0, 3), (j0, 2)]
    return [(j0, 2), (j0, 3), (j1, 3), (j1, 2), (j1, 0), (j1, 1), (j0, 1), (j0, 0)]


def mfma(g, acc, A, B, first):
    g.wait(regs=rs(A) + rs(B))
    c = "0" if first else R(acc)
    if g.opt.get("al", 0) & 1:
        g(".p2align 3")
    if g.opt.get("al", 0) & 4 and not g.l[-1].lstrip().startswith(("v_mfma", "ds_", "buffer_")):
        g(".p2align 3"); g("s_nop 0")
    g(f"v_mfma_f32_16x16x32_bf16 {R(acc)}, {R(A)}, {R(B)}, {c}")


def start_a(g, own):
    it = [lambda i=i, h=h, q=q: tr_read(g, i, h, q, 0, ("ra", 0), own.kind) for i, h, q in part_reads(own.kind, 0)]
    it.append(lambda: own.advance(g, 1, fresh=True))
    it.append(lambda: set_m0(g, 0))
    it += [None] * g.opt.get("sgap", 3)
    it.append(lambda: g.wait(lg=("ra", 0)))
    for m in range(4):
        it.append(lambda m=m: own.dma(g, 0, m, ("a", 1)))
        it += [None] * (g.opt.get("sgap", 3) - 1)
    return it


def start_x(g, own):
    return [lambda j=j, h=h: x_read(g, own.kind, 0, j, h) for j in range(2) for h in range(2)]


def start_b(g, own):
    return [lambda i=i, h=h, q=q: tr_read(g, i, h, q, 0, ("rb", 0), own.kind) for i, h, q in part_reads(own.kind, 1)] + \
           [lambda: set_m0(g, 1)]


def run(items):
    for f in items:
        if f: f()


def mfma_phase(g, own, nxt, hname, xbar=None, first=False, extra=None):
    o = g.opt
    kind = own.kind
    extra = extra or {}

    def st(p):
        return (own, p) if p < 8 else ((nxt, 0) if (nxt and p == 8) else (None, 0))

    for kp in range(8):
        gaps = {m: [] for m in range(64)}
        late = (first and o.get("late0", 1))
        for jp in range(4):
            nkp, njp = (kp, jp + 1) if jp < 3 else (kp + 1, 0)
            if nkp > 7:
                continue
            slots = [16 * jp + n for n in ((0, 1, 2, 3) if (jp % 2 or (late and jp)) else (0, 1, 4, 5))]
            for n in range(4):
                j, h = 2 * njp + n // 2, n % 2
                def f(nkp=nkp, j=j, h=h, n=n, jp=jp):
                    if n == 0 and jp == 3 and xbar:
                        xbar(nkp)
                    x_read(g, kind, nkp, j, h)
                gaps[slots[n]].append(f)
            gaps[16 * jp + 15].append(lambda njp=njp: g.wait(regs=rs(xreg(2 * njp, 0), 16)))
        if kind == "P" and kp in (3, 7):
            k = "0x10000" if kp == 3 else "0xffff0000"
            gaps[40].append(lambda k=k: g(f"v_add_u32 v{vX0}, {k}, v{vX0}"))
            gaps[41].append(lambda k=k: g(f"v_add_u32 v{vX1}, {k}, v{vX1}"))
        s_, p_ = st(kp + 1)
        if s_:
            gaps[2].append(lambda kp=kp: g.wait(lg=("rb", kp)))
            for m, at in enumerate((3, 7, 11, 14)):
                gaps[at].append(lambda m=m, s_=s_, kp=kp: s_.dma(g, 1, m, ("b", kp + 1)))
        if kp < 7:
            a0 = 37 if late else 21
            adv, am0, aw, ad = (45, 46, 49, (50, 54, 58, 61)) if late else (29, 30, 34, (35, 39, 43, 46))
            if not o.get("novm"):
                gaps[a0 - 1].append(lambda kp=kp: g.wait(vm=("a", kp + 1)))
            for n, (i, h, q) in enumerate(part_reads(kind, 0)):
                gaps[a0 + n].append(lambda i=i, h=h, q=q, kp=kp: tr_read(g, i, h, q, kp + 1, ("ra", kp + 1), kind))
            s_, p_ = st(kp + 2)
            if s_:
                gaps[adv].append(lambda s_=s_, p_=p_: s_.advance(g, p_))
                gaps[am0].append(lambda: set_m0(g, 0))
                gaps[aw].append(lambda kp=kp: g.wait(lg=("ra", kp + 1)))
                for m in range(4):
                    gaps[ad[m]].append(lambda m=m, s_=s_, kp=kp: s_.dma(g, 0, m, ("a", kp + 2)))
                gaps[62].append(lambda: set_m0(g, 1))
            if not o.get("novm"):
                gaps[52].insert(0, lambda kp=kp: g.wait(vm=("b", kp + 1)))
            for n, (i, h, q) in enumerate(part_reads(kind, 1)):
                gaps[53 + n].insert(0, lambda i=i, h=h, q=q, kp=kp: tr_read(g, i, h, q, kp + 1, ("rb", kp + 1), kind))
        if kp == 7 and nxt:
            def fa():
                g.wait(vm=("a", 8), lg="sw")
                g.barrier(hname + "a")
            gaps[o.get("handa", 20) if not late else 36].append(fa)
            def fb():
                g.drain(vm=True, lg=True)
                g.barrier(hname + "b")
            gaps[o.get("handb", 50)].append(fb)
        if kp == 0 and o.get("prio", 1):
            gaps[o.get("prioat", 13)].append(lambda: g("s_setprio 2"))
        m = 0
        for jp in range(4):
            for (j, i) in chain_order(jp):
                for h in range(2):
                    mfma(g, ACC(i, j), wreg(i, h, kp, kind), xreg(j, h), kp == 0 and h == 0)
                    g.point(f"k{kp}g{m}")
                    for f in gaps[m]:
                        f()
                    if (kp, m) in extra:
                        extra[(kp, m)]()
                    m += 1


class Direct:
    def __init__(self, idx):
        self.idx, self.kind = idx, "PPPGG"[idx]

    def soff(self, g, kp, half):
        src = kp if self.kind == "P" else QORD[kp >> 1] * 2 + (kp & 1)
        g(f"s_mov_b32 s{sT0 + half}, {self.idx * 262144 + src * 8192 + half * 4096}")

    early7 = False
    merge = False

    def wr(self, i, h, kp):
        return VH + 8 * i + 4 * h if (self.merge and kp == 7) else DW(i, h, kp)

    def load(self, g, kp, f):
        if g.opt.get("nodma"):
            return
        d = self.wr(f >> 1, f & 1, kp)
        if g.opt.get("wskip") and 2 <= kp < 7 and (f % 2 or g.opt["wskip"] == 2):
            return
        g.vmem(f"buffer_load_dwordx4 {R(d)}, v{vS}, s[{sWP}:{sWP+3}], s{sT0 + (f >> 2)} offen offset:{(f & 3) * 1024} {g.opt.get('wpfl', 'sc1')}".rstrip(), rs(d))

    def start_w(self, g):
        it = [lambda: self.soff(g, 0, 0), lambda: self.soff(g, 0, 1)]
        for f in range(8):
            it += [lambda f=f: self.load(g, 0, f), None, None]
        return it + [lambda: self.soff(g, 1, 0), lambda: self.soff(g, 1, 1)]

    def start_x(self, g):
        return [lambda j=j, h=h: x_read(g, self.kind, 0, j, h, DX(j, h)) for j in range(2) for h in range(2)]


def direct_phase(g, own, xbar=None, extra=None, reset=False):
    g(f"; ---- phase {own.idx + 1}: matrix phase, weights straight into registers")
    o = g.opt
    kind = own.kind
    extra = extra or {}
    wat = [int(v) for v in str(o.get("wat", "2 5 10 13 18 21 26 29")).split()]
    g("s_setprio 1")
    seq = [(n // 8, n % 8) for n in range(64)]
    if own.merge:
        seq = seq[:48] + [(6 + n % 2, n // 2) for n in range(16)]
    for blk in range(8):
        gaps = {m: [] for m in range(64)}
        for t in range(8):
            n = blk * 8 + t + 2
            if n < 64:
                for h in range(2):
                    def f(n=n, h=h):
                        if h == 0 and xbar:
                            xbar(*seq[n])
                        if o.get("xskip") and n >= 6 and (n % 2 == 1 or o["xskip"] == 2):
                            return
                        x_read(g, kind, seq[n][0], seq[n][1], h, DX(n, h))
                    gaps[8 * t + int(str(o.get('xg', 'x01'))[1 + h])].append(f)
            if n - 1 < 64:
                r = rs(DX(n - 1, 0), 8)
                if seq[n - 1][1] == 0 and not o.get("novm"):
                    r = r + rs(own.wr(0, 0, seq[n - 1][0]), 16 if t == 7 else 32)
                gaps[8 * t + 7].append(lambda r=r: g.wait(regs=r))
        if not o.get("novm"):
            gaps[3].append(lambda blk=blk: g.wait(regs=rs(own.wr(2, 0, seq[8 * blk][0]), 16)))
        if kind == "P" and blk == 3:
            gaps[43].append(lambda: g(f"v_add_u32 v{vX0}, 0x10000, v{vX0}"))
            gaps[44].append(lambda: g(f"v_add_u32 v{vX1}, 0x10000, v{vX1}"))
        if reset and blk == 7:
            gaps[43].append(lambda: g(f"v_add_u32 v{vX0}, 0xffff0000, v{vX0}"))
            gaps[44].append(lambda: g(f"v_add_u32 v{vX1}, 0xffff0000, v{vX1}"))
        if blk < (6 if own.merge else 7):
            for f in range(8):
                gaps[wat[f]].append(lambda f=f, blk=blk: own.load(g, blk + 1, f))
        if own.merge and blk == 4 and not own.early7:
            gaps[30].append(lambda: own.soff(g, 7, 0))
            gaps[31].append(lambda: own.soff(g, 7, 1))
            for f in range(8):
                gaps[min(wat[f] + 32, 58)].append(lambda f=f: own.load(g, 7, f))
        if blk < (5 if own.merge else 6):
            gaps[59].append(lambda blk=blk: own.soff(g, blk + 2, 0))
            gaps[60].append(lambda blk=blk: own.soff(g, blk + 2, 1))
        if blk == 3:
            gaps[36].append(lambda: g("s_setprio 2"))
        m = 0
        g.point(f"b{own.idx}{blk}")
        for t in range(8):
            kp, j = seq[blk * 8 + t]
            for i in (range(4) if t % 2 == 0 else range(3, -1, -1)):
                for h in range(2):
                    if o.get("novm"):
                        g.vm = [(set(), tg) for _, tg in g.vm]
                    mfma(g, ACC(i, j), own.wr(i, h, kp), DX(blk * 8 + t, h), kp == 0 and h == 0)
                    for f in gaps[m]:
                        f()
                    if (blk, m) in extra:
                        extra[(blk, m)]()
                    m += 1


class Half:
    def __init__(self, half):
        self.half = half

    def wr(self, kp, i, h):
        base = 128 + 16 * kp if kp < 6 else ((96, 112), (0, 32))[self.half][kp - 6]
        return base + 8 * i + 4 * h

    def aq(self, j, i):
        return ((0, 16, 32, 48), (16, 48, 64, 80))[self.half][j >> 1] + 8 * (j & 1) + 4 * i

    def xr(self, n, h):
        n %= 6
        return (224 + 8 * n if n < 3 else (64, 96)[self.half] + 8 * (n - 3)) + 4 * h

    def loads(self, g, kp):
        src = QORD[kp >> 1] * 2 + (kp & 1)
        it = [lambda: g(f"s_add_u32 s{sT0}, s{sHo}, {4 * 262144 + self.half * 131072 + src * 8192}")]
        for f in range(4):
            d = self.wr(kp, f >> 1, f & 1)
            if not g.opt.get("nodma"):
                it.append(lambda d=d, f=f: g.vmem(f"buffer_load_dwordx4 {R(d)}, v{vS}, s[{sWP}:{sWP+3}], s{sT0} offen offset:{f * 1024} sc1", rs(d)))
        return it

    def seq(self):
        return [(kp, j) for kp in range(8) for j in range(8)] if self.half == 0 else [(kp, j) for j in range(8) for kp in range(8)]

    def xread(self, g, n, h):
        kp, j = self.seq()[n]
        x_read(g, "G", kp, j, h, self.xr(n, h))

    def start_x(self, g, lo, hi):
        return [lambda n=n, h=h: self.xread(g, n, h) for n in range(lo, hi) for h in range(2)]

    def phase(self, g, extra):
        seq = self.seq()
        g("s_setprio 1")
        m = 0
        for n, (kp, j) in enumerate(seq):
            if n % 16 == 0:
                g.point(f"H{self.half}{n // 16}")
            for t, i in enumerate((0, 1) if n % 2 == 0 else (1, 0)):
                for h in range(2):
                    mfma(g, self.aq(j, i), self.wr(kp, i, h), self.xr(n, h), kp == 0 and h == 0)
                    gp = 2 * t + h
                    if gp < 2 and n + 5 < 64:
                        self.xread(g, n + 5, gp)
                    if gp == 3 and n % 2 == 1 and n + 1 < 64:
                        r = rs(self.xr(n + 1, 0), 8) + rs(self.xr(n + 2, 0), 8)
                        for nn in (n + 1, n + 2):
                            r += rs(self.wr(seq[nn][0], 0, 0), 16)
                        g.wait(regs=r)
                    if m in extra:
                        extra[m]()
                    m += 1


def lane(g, v):
    g(f"v_mbcnt_lo_u32_b32 v{v}, -1, 0")
    g(f"v_mbcnt_hi_u32_b32 v{v}, -1, v{v}")


class Mixer:
    def __init__(self, g):
        self.g, self.q, self.every, self.n = g, [], 2, 0
        self.q2, self.n2 = [], 0
        self.q3, self.n3 = [], 0

    def __call__(self, s):
        if self.g.opt.get("al", 0) & 2 and s.startswith(("v_fma", "v_cvt_pk", "v_mov_b32_dpp", "v_cndmask_b32_dpp")):
            self.g(".p2align 3")
        self.g(s)
        self.n += 1
        self.n3 += 1
        if self.q3 and self.n3 % self.ev3 == 4:
            self.q3.pop(0)()
        if self.q2:
            self.n2 += 1
            if self.n2 >= self.g.opt.get("wdelay", 8):
                self.q2.pop(0)(); self.n2 = 0
        if self.q and self.n % self.every == 0:
            f = self.q.pop(0)
            if f: f()

    def flush(self):
        while self.q2:
            self.q2.pop(0)()
        self.n2 = 0
        while self.q:
            f = self.q.pop(0)
            if f: f()


def glu(e, pairs, scaled=False):
    if e.g.opt.get("noE"): return
    if not scaled:
        for a, b in pairs: e(f"v_mul_f32 v{b}, s{sC}, v{b}")
    for a, b in pairs: e(f"v_exp_f32 v{b}, v{b}")
    for a, b in pairs: e(f"v_fma_f32 v{b}, v{b}, s{sCi}, s{sCi}")
    for a, b in pairs: e(f"v_rcp_f32 v{b}, v{b}")
    for a, b in pairs: e(f"v_mul_f32 v{a}, v{a}, v{b}")


HFL = ["sc0 sc1"]
def halo_loads(ph):
    return [f"buffer_load_dwordx4 {R(VIMP)}, v{vG8}, s[{sWS}:{sWS+3}], s{sW128} offen offset:{ph*512} {HFL[0]}"]


def halo_check(g, ph):
    lab = f"L_poll{ph}"
    g(f"s_mov_b32 s{sT2}, {g.opt.get('spin', 400000)}")
    g.wait(regs=rs(VIMP, 4))
    g(f"{lab}:")
    g(f"v_max3_u32 v{VTMP}, v{VIMP}, v{VIMP+1}, v{VIMP+2}")
    g(f"v_max_u32 v{VTMP}, v{VTMP}, v{VIMP+3}")
    g(f"v_cmp_eq_u32 vcc, -1, v{VTMP}")
    g(f"s_sub_u32 s{sT2}, s{sT2}, 1")
    g(f"s_cbranch_scc1 {lab}_ok")
    g(f"s_cbranch_vccz {lab}_ok")
    for t in halo_loads(ph):
        g(t)
    g("s_waitcnt vmcnt(0)")
    g(f"s_branch {lab}")
    g(f"{lab}_ok:")


def conv_mfma(ct, r, half):
    return f"v_mfma_f32_16x16x32_bf16 {R(YY(ct, r, 4*half))}, {R(AF(ct, r))}, {R(TP(ct, r, 2*half - 1))}, 0"


def e_phase(g, ph, dst, pre=(), after_tile=None, glu_tile=None, silu_tile=None, warm=(), tw=3, pre4=()):
    o = g.opt
    halo = o.get("halo", 1)
    noE = o.get("noE")
    e = Mixer(g)
    prio = 0
    g("s_setprio 0")
    g(f"s_movk_i32 s{sT3}, {ph * 8192}")
    g("s_nop 5")
    el = [(ct, r) for ct in range(2) for r in range(4)]
    for ct, r in el:
        e.q.append(lambda ct=ct, r=r: g.vmem(
            f"buffer_load_dwordx4 {R(AF(ct, r))}, v{vM0}, s[{sDW}:{sDW+3}], s{sT3} offen offset:{ct*1024 + r*64} sc1", rs(AF(ct, r))))
    q0 = e.q; e.q = []
    e.q3 = list(warm); e.ev3 = 12 if len(e.q3) < 40 else 6
    e.every = 8
    for n_, j in enumerate((3, 0, 1, 2, 4, 5, 6, 7)):
        glu(e, [(ACC(ct, j) + r, ACC(2 + ct, j) + r) for ct in range(2) for r in range(4)], ph > 0 and o.get('psc', 0))
        if n_ == 0:
            if halo:
                for r in range(4):
                    e(f"v_cvt_pk_bf16_f32 v{VEXP+r}, v{ACC(0, 3)+r}, v{ACC(1, 3)+r}")
                for r in range(4):
                    e(f"v_min_u32 v{VEXP+r}, -2, v{VEXP+r}")
                g.vmem(f"buffer_store_dwordx4 {R(VEXP)}, v{vEX}, s[{sWE}:{sWE+3}], s{sW128} offen offset:{ph*512} {HFL[0]}")
            e.q = q0
        if glu_tile:
            glu_tile(e, n_)
    e.flush()
    if not noE:
        def pack(q): return [f"v_cvt_pk_bf16_f32 v{TP(ct, r, q)}, v{ACC(ct, 2*q)+r}, v{ACC(ct, 2*q+1)+r}" for ct, r in el]
        for t in pack(3) + pack(0): e(t)
        for ct, r in el:
            e(f"v_mov_b32_dpp v{TP(ct, r, -1)}, v{TP(ct, r, 3)} row_shr:1 row_mask:0xf bank_mask:0xf bound_ctrl:1")
        p1, p2 = pack(1), pack(2)
        fill = [t for n in range(8) for t in (p1[n], p2[n])]
        for t in fill[:4]: e(t)
        g.wait(regs=rs(192, 32))
        g(f"s_setprio {o.get('cprio', 3)}")
        for n, (ct, r) in enumerate(el):
            g(conv_mfma(ct, r, 0))
            for t in fill[2*n + 4:2*n + 6]: e(t)
            if n == 5: g("s_nop 0")
        g("s_setprio 0")
    if halo and o.get("ti", -1) < 0:
        for ct, t in enumerate(halo_loads(ph)):
            g.vmem(t, rs(VIMP + 4 * ct))
    while e.q3:
        e.q3.pop(0)()
    ta = o.get("ta", 6)
    ti, tc = o.get("ti", -1), o.get("tc", 3)
    for j in range(8):
        if silu_tile:
            silu_tile(e, j)
        if j == tw and warm:
            g("s_waitcnt lgkmcnt(0)"); g.lg = []
        if j == ti:
            if halo:
                for ct, t in enumerate(halo_loads(ph)):
                    g.vmem(t, rs(VIMP + 4 * ct))
        if j == 4 and pre4:
            assert tc < 4
            e.q += list(pre4); e.every = o.get("p4ev", 8); e.n = 0
        if j == ta and pre4:
            g("s_setprio 1"); prio = 1
        elif j == ta:
            g("s_setprio 1"); prio = 1
            e.q += list(pre); e.every = 2; e.n = 0
        ys = [YY(ct, r, j) for ct, r in el]
        mm = []
        if j == tc and not noE:
            if halo:
                halo_check(g, ph)
            for r in range(4):
                e(f"v_lshrrev_b32 v{VIMP+4+r}, 16, v{VIMP+r}")
            g(f"s_mov_b32 vcc_lo, {0x80008000 if halo else 0}")
            g(f"s_mov_b32 vcc_hi, {0x80008000 if halo else 0}")
            for n, (ct, r) in enumerate(el):
                e(f"v_cndmask_b32_dpp v{TP(ct, r, 4)}, v{TP(ct, r, 0)}, v{VIMP+n}, vcc row_shl:1 row_mask:0xf bank_mask:0xf bound_ctrl:1")
            mm = [conv_mfma(ct, r, 1) for ct, r in el]
            g(f"s_setprio {o.get('cprio', 3)}")
        if not noE:
            for n, y in enumerate(ys):
                if mm: g(mm[n])
                e(f"v_exp_f32 v{VTMP+n}, v{y}")
            if mm: g(f"s_setprio {prio}")
            for n, y in enumerate(ys): e(f"v_fma_f32 v{VTMP+n}, v{VTMP+n}, s{sC}, s{sC}")
            for n, y in enumerate(ys): e(f"v_rcp_f32 v{VTMP+n}, v{VTMP+n}")
            for n, y in enumerate(ys): e(f"v_mul_f32 v{y}, v{y}, v{VTMP+n}")
        for n in range(4): e(f"v_cvt_pk_bf16_f32 v{dst+4*j+n}, v{ys[2*n]}, v{ys[2*n+1]}")
        if after_tile:
            after_tile(e, j)
    e.flush()


vG0, vG1, vG2 = vM0, vM1, vEX


def outv_addr(g, t=144, half=None):
    lane(g, t)
    if half is None:
        g(f"s_lshl_b32 s{sT2}, s{sWv}, 7")
    else:
        g(f"s_add_u32 s{sT2}, s{sW64}, {512 + 256 * half}")
    g(f"v_bfe_u32 v{t+1}, v{t}, 1, 3")
    g(f"v_lshl_add_u32 v{vG0}, v{t+1}, 14, s{sT2}")
    g(f"v_bfe_u32 v{t+2}, v{t}, 4, 1")
    g(f"v_lshl_add_u32 v{vG0}, v{t+2}, 5, v{vG0}")
    g(f"v_lshrrev_b32 v{t+2}, 5, v{t}")
    g(f"v_lshl_add_u32 v{vG0}, v{t+2}, {6 if half is None else 10}, v{vG0}")
    g(f"v_and_b32 v{t+2}, 1, v{t}")
    g(f"v_lshl_add_u32 v{vG0}, v{t+2}, 4, v{vG0}")
    g(f"v_cmp_eq_u32 vcc, 0, v{t+1}")
    g(f"v_mov_b32 v{vG2}, {OOB}")
    g(f"v_add_u32 v{vG1}, 8192, v{vG0}")
    g(f"v_cndmask_b32 v{vG2}, v{vG0}, v{vG2}, vcc")
    g(f"s_movk_i32 s{sT3}, 4096")
    g(f"s_mov_b32 vcc_lo, 0x55555555")
    g(f"s_mov_b32 vcc_hi, 0x55555555")


def outv_items(g, j, n, fl, mode=2, inflight=None, Q=None):
    Q = Q or [ACC(i, j) for i in range(4)]
    def T(i, d): return Q[i >> 1] + 2 * (i & 1) + d
    it = []
    for i in range(4):
        for d in range(2):
            a = Q[i] + 2 * d
            it.append(f"v_cvt_pk_bf16_f32 v{T(i, d)}, v{a}, v{a+1}")
    if not g.opt.get("nsw", 1):
        for d in range(2):
            for i in (0, 2):
                it.append(f"v_permlane16_swap_b32 v{T(i, d)}, v{T(i+1, d)}")
        for d in range(2):
            for i in (0, 1):
                it.append(f"v_permlane32_swap_b32 v{T(i, d)}, v{T(i+2, d)}")
    dpp = "quad_perm:[1,0,3,2] row_mask:0xf bank_mask:0xf"
    so = "0" if j < 4 else f"s{sT3}"
    for hb in ((0, 1) if n % 2 == 0 else (1, 0)):
        S = Q[2 + hb]
        for k in ((0, 1, 2, 3) if g.opt.get('nsw', 1) else (0, 2, 1, 3)):
            it.append(f"v_cndmask_b32_dpp v{S+k}, v{Q[1-hb]+k}, v{Q[hb]+k}, vcc {dpp}")
        if hb == n % 2:
            it.append("s_not_b64 vcc, vcc")
        va = vG1 if hb else (vG2 if j < 2 else vG0)
        if inflight is not None:
            it.append(f"s_waitcnt vmcnt({inflight})")
        it.append(f"buffer_store_dwordx4 {R(S)}, v{va}, s[{sO}:{sO+3}], {so} offen offset:{(j % 4)*1024} {fl}".rstrip())
    if mode == 1: it = [t for t in it if not t.startswith("buffer")]
    if mode == 3: it = [t for t in it if t.startswith("buffer")]
    return [(lambda t=t: g.vmem(t) if t.startswith("buffer") else g(t)) for t in it]


def out_interleave(g, ex, merge, per, ntiles, fl, mode=2):
    pend = []
    step = 16 if merge else 8
    def f(m):
        if m % step == 7 and m >= step and m // step - 1 < ntiles:
            j = m // step - 1
            pend.extend(outv_items(g, j, j, fl, mode))
        for _ in range(per[m % len(per)]):
            if pend: pend.pop(0)()
    for m in range(8 * step):
        mm = 512 - 8 * step + m
        assert (mm // 64, mm % 64) not in ex
        ex[(mm // 64, mm % 64)] = (lambda m=m: f(m))
    return pend


def srd(g, d, lo, size):
    g(f"s_mov_b32 s{d}, s{lo}")
    g(f"s_mov_b32 s{d+1}, s{lo+1}")
    g(f"s_mov_b32 s{d+2}, {size}")
    g(f"s_mov_b32 s{d+3}, 0x20000")


def g_addr(g):
    g(f"v_subrev_u32 v{vX1}, s{sSb}, v{vS}")
    g(f"v_add_u32 v{vX0}, 98304, v{vX1}")
    g(f"v_add_u32 v{vX1}, 32768, v{vX1}")


def build(opt):
    g = Gen(opt)
    HFL[0] = opt.get("hfl", "sc0 sc1")
    halo = opt.get("halo", 1)
    xfl = opt.get("xflag", "nt")
    win = opt.get("win", 2)
    rbar = opt.get("rbar", 15)
    stamps = opt.get("stamps")
    kx, kw1, kdw, kw2, kout, kdbg, kws = KA, KA + 2, KA + 4, KA + 6, KA + 8, KA + 10, KA + 12
    g.l.append(HEAD.rstrip("\n"))
    g("; @launch grid=(256,1,1) block=(512,1,1) lds=163840")
    g.l.append(DOC.strip("\n"))
    g('.amdgcn_target "amdgcn-amd-amdhsa--gfx950"')
    g(".text")
    g(f".globl {KN}_kernel")
    g(".p2align 8")
    g(f".type {KN}_kernel,@function")
    g(f"{KN}_kernel:")
    g("s_cmp_ge_u32 s2, 256")
    g("s_cbranch_scc1 L_end")
    g(f"s_load_dwordx8 s[{KA}:{KA+7}], s[0:1], 0")
    g(f"s_load_dwordx4 s[{KA+8}:{KA+11}], s[0:1], 32")
    g(f"s_load_dwordx2 s[{KA+12}:{KA+13}], s[0:1], 48")
    if stamps:
        g("s_memrealtime s[74:75]")
        g(f"s_mem{'real' if stamps == 3 else ''}time s[100:101]")
    g(f"v_readfirstlane_b32 s{sWv}, v0")
    g(f"s_mov_b32 s{sWg}, s2")
    if opt.get("remap", 1):
        g(f"s_and_b32 s3, s2, 7")
        g(f"s_lshr_b32 s2, s2, 3")
        g(f"s_lshl_b32 s3, s3, 5")
        g(f"s_add_u32 s2, s2, s3")
    g(f"s_mov_b32 s{sTile}, s2")
    g(f"s_and_b32 s{sTau}, s2, 127")
    g(f"s_mul_i32 s2, s2, 128000")
    g(f"s_lshr_b32 s{sWv}, s{sWv}, 6")
    if opt.get("swap", 0):
        g(f"s_xor_b32 s{sWv}, s{sWv}, 4")
    g(f"s_and_b32 s{sW}, s{sWv}, 3")
    g("v_and_b32 v0, 63, v0")
    if opt.get("stag"):
        g(f"s_bfe_u32 s{sT0}, s{sWg}, {0x10000 * opt.get('stagb', 1) + 3}")
        g("L_stag:")
        g(f"s_sub_u32 s{sT0}, s{sT0}, 1")
        g("s_cbranch_scc1 L_stag_e")
        g(f"s_sleep {opt['stag']}")
        g("s_branch L_stag")
        g("L_stag_e:")
    g(f"s_cmp_lt_u32 s{sWv}, 4")
    g("s_cbranch_scc1 L_startA")

    P = [Stream("P", ph) for ph in range(2)]
    P1, P2, P3, GA, GB = (Direct(n) for n in range(5))
    d1 = opt.get('d1', 1)

    g(f"v_lshrrev_b32 v12, 3, v0")
    g(f"v_and_b32 v13, 7, v0")
    g(f"v_lshrrev_b32 v14, 4, v0")
    g(f"v_xor_b32 v14, v14, v13")
    g(f"s_lshl_b32 s{sT3}, s{sW}, 11")
    g(f"v_lshl_add_u32 v14, v14, 4, s{sT3}")
    g(f"v_lshl_add_u32 v16, v12, 13, v14")
    g(f"v_xor_b32 v17, 0x10040, v16")
    g(f"v_add_u32 v19, 1024, v17")
    g(f"s_cmp_eq_u32 s{sTau}, 0")
    g(f"s_cselect_b32 s{sT3}, 1024, 0")
    g(f"v_cmp_gt_u32 vcc, s{sT3}, v16")
    g(f"v_mov_b32 v15, {OOB}")
    g(f"s_cmp_eq_u32 s{sTau}, 127")
    g(f"v_cndmask_b32 v16, v16, v15, vcc")
    g(f"s_mov_b32 s{sX+3}, 0x20000")
    g(f"s_cselect_b32 s{sX+2}, {127*1024}, s{sX+3}")
    g(f"v_add_u32 v18, 1024, v16")
    g(f"s_lshl_b32 s{sT3}, s{sW}, 12")
    g("s_waitcnt lgkmcnt(0)")
    g(f"s_add_u32 s{sX}, s{kx}, s2")
    g(f"s_addc_u32 s{sX+1}, s{kx+1}, 0")
    g(f"s_sub_u32 s{sX}, s{sX}, 2048")
    g(f"s_subb_u32 s{sX+1}, s{sX+1}, 0")
    if opt.get("hd") == 1: g.stamp(8)

    def d1_addr():
        g(f"v_lshrrev_b32 v1, 5, v0")
        g(f"v_lshlrev_b32 v1, 1, v1")
        g(f"v_and_b32 v2, 3, v0")
        g(f"v_xor_b32 v1, v1, v2")
        g(f"s_lshl_b32 s{sW64}, s{sW}, 6")
        g(f"v_lshl_add_u32 v1, v1, 4, s{sW64}")
        g(f"v_lshrrev_b32 v3, 2, v0")
        g(f"v_lshl_add_u32 v{vD1}, v3, 11, v1")
        g(f"s_lshl_b32 s{sRing}, s{sW}, 13")
        g(f"s_add_u32 s{sRing}, s{sRing}, 131072")
        g(f"s_add_u32 s{sRing+1}, s{sRing}, 4096")
        for f in set_kconst(g, "P"): f()

    def ct_srd():
        g(f"s_lshl_b32 s{sT0}, s{sW}, 11")
        g(f"s_add_u32 s{sT0}, s{sT0}, {CTOFF}")
        g(f"s_add_u32 s{sDW}, s{sWq}, s{sT0}")
        g(f"s_addc_u32 s{sDW+1}, s{sWq+1}, 0")
        g(f"s_mov_b32 s{sDW+2}, 32768")
        g(f"s_mov_b32 s{sDW+3}, 0x20000")

    def common(role):
        srd(g, sW2, kw2, 524288)
        g(f"s_add_u32 s{sO}, s{kout}, s2")
        g(f"s_addc_u32 s{sO+1}, s{kout+1}, 0")
        g(f"s_sub_u32 s{sO}, s{sO}, 2048")
        g(f"s_subb_u32 s{sO+1}, s{sO+1}, 0")
        g(f"s_mov_b32 s{sO+2}, {127*1024}")
        g(f"s_mov_b32 s{sO+3}, 0x20000")
        srd(g, sDBG, kdbg, 256)
        g(f"s_lshl_b32 s{sT0}, s{sTile}, 11")
        g(f"s_add_u32 s{sWS}, s{kws}, s{sT0}")
        g(f"s_addc_u32 s{sWS+1}, s{kws+1}, 0")
        g(f"s_sub_u32 s{sWE}, s{sWS}, 2048")
        g(f"s_subb_u32 s{sWE+1}, s{sWS+1}, 0")
        g(f"s_cmp_eq_u32 s{sTau}, 127")
        g(f"s_cselect_b32 s{sWS+2}, 0, 2048")
        g(f"s_cmp_eq_u32 s{sTau}, 0")
        g(f"s_cselect_b32 s{sWE+2}, 0, 2048")
        g(f"s_mov_b32 s{sWS+3}, 0x20000")
        g(f"s_mov_b32 s{sWE+3}, 0x20000")
        if stamps:
            g(f"s_mov_b64 s[40:41], s[{kws}:{kws+1}]")
        g(f"s_mov_b32 s{sC}, 0xbfb8aa3b")
        g(f"s_mov_b32 s{sCi}, 0xbf317218")
        g(f"s_lshl_b32 s{sW128}, s{sW}, 7")
        g(f"v_lshrrev_b32 v3, 4, v0")
        g(f"v_lshlrev_b32 v4, 1, v3")
        g(f"v_lshlrev_b32 v{vG8}, 4, v3")
        g(f"v_bfe_u32 v5, v0, 2, 2")
        g(f"v_xor_b32 v24, v5, v3")
        g(f"v_lshlrev_b32 v24, 24, v24")
        g(f"v_lshl_add_u32 v24, v5, 8, v24")
        g(f"v_lshl_add_u32 v{vM0}, v2, 4, v24")
        g(f"v_and_b32 v25, 15, v0")
        g(f"v_lshl_add_u32 v{vEX}, v25, 24, v{vG8}")
        g(f"s_lshr_b32 s{sT0}, s{sW}, 1")
        g(f"s_lshl_b32 s{sT0}, s{sT0}, 14")
        g(f"s_and_b32 s{sT1}, s{sW}, 1")
        g(f"s_lshl_b32 s{sT1}, s{sT1}, 10")
        g(f"s_add_u32 s{sSb}, s{sT0}, s{sT1}")
        g(f"s_add_u32 s{sSb}, s{sSb}, {32768 if role == 0 else 98304}")
        g(f"v_lshl_add_u32 v{vS}, v0, 4, s{sSb}")
        g(f"s_add_u32 s{sWq}, s{kws}, {WPOFF}")
        g(f"s_addc_u32 s{sWq+1}, s{kws+1}, 0")
        g(f"s_lshl_b32 s{sT0}, s{sW}, 16")
        g(f"s_add_u32 s{sWP}, s{sWq}, s{sT0}")
        g(f"s_addc_u32 s{sWP+1}, s{sWq+1}, 0")
        g(f"s_sub_u32 s{sWP}, s{sWP}, s{sSb}")
        g(f"s_subb_u32 s{sWP+1}, s{sWP+1}, 0")
        g(f"s_lshr_b32 s{sT1}, s{sW}, 1")
        g(f"s_lshl_b32 s{sT1}, s{sT1}, 16")
        g(f"s_sub_u32 s{sHo}, s{sT1}, s{sT0}")
        g(f"s_and_b32 s{sT1}, s{sW}, 1")
        g(f"s_lshl_b32 s{sT1}, s{sT1}, 12")
        g(f"s_add_u32 s{sHo}, s{sHo}, s{sT1}")
        g(f"s_mov_b32 s{sWP+2}, 0x200000")
        g(f"s_mov_b32 s{sWP+3}, 0x20000")
        g(f"v_bfe_u32 v4, v0, 4, 1")
        g(f"v_bfe_u32 v5, v0, 2, 2")
        g(f"v_lshl_add_u32 v{vW0}, v3, 9, s{sRing}")
        g(f"v_lshl_add_u32 v{vW0}, v5, 6, v{vW0}")
        g(f"v_lshl_add_u32 v{vW0}, v4, 5, v{vW0}")
        g(f"v_lshl_add_u32 v{vW0}, v2, 3, v{vW0}")
        g(f"v_xor_b32 v{vW1}, 32, v{vW0}")
        g(f"v_and_b32 v4, 15, v0")
        g(f"v_lshrrev_b32 v5, 1, v4")
        g(f"v_xor_b32 v5, v5, v3")
        g(f"v_lshlrev_b32 v5, 4, v5")
        g(f"v_lshl_add_u32 v{vX0}, v4, 7, v5")
        g(f"v_xor_b32 v{vX1}, 64, v{vX0}")
        if stamps:
            g("s_mov_b64 s[76:77], s[100:101]")


    sWB = 0
    sub = (0, 64)
    def wbase(key):
        if key < 2 - d1:
            g(f"s_lshl_b32 s{sT2}, s{sSl}, 13")
            g(f"s_add_u32 s{sT2}, s{sT2}, {key * 256}")
            ptr = sW1
        else:
            g(f"s_lshl_b32 s{sT2}, s{sSl}, 11")
            g(f"s_add_u32 s{sT2}, s{sT2}, {(key - 1) * 262144}")
            ptr = sWq
        g(f"s_add_u32 s{sWB}, s{ptr}, s{sT2}")
        g(f"s_addc_u32 s{sWB+1}, s{ptr+1}, 0")
    def wlines(key):
        if key < 2 - d1:
            return [(key, n * 1024 + e * 64) for n in range(8) for e in range(4)]
        return [(key, n * 64) for n in range(32)]
    def swarm(lines):
        cur = None
        for n, (key, of) in enumerate(lines):
            if key != cur:
                wbase(key); cur = key
            if n % 14 == 0:
                g(f"s_waitcnt lgkmcnt({15 - min(14, len(lines) - n)})")
            g(f"s_load_dword s3, s[{sWB}:{sWB+1}], {of}")
    later = wlines(1)
    nb = 8
    def e_warm(key, n0=0):
        if str(key) not in str(opt.get("wk", "5")):
            return []
        def ld(n, of):
            if n + n0 >= 14:
                g("s_waitcnt lgkmcnt(13)")
            g(f"s_load_dword s3, s[{sWB}:{sWB+1}], {of}")
        return [lambda: wbase(key)] + [(lambda n=n, of=of: ld(n, of)) for n, (_, of) in enumerate(wlines(key))]

    def x_issue(kp):
        g(f"s_movk_i32 s{sT0}, {kp*128}")
        for jj in range(2):
            for hh in range(2):
                g(f"s_add_u32 m0, s{sT3}, {kp*16384 + jj*2048 + hh*1024}")
                g("s_nop 0")
                g.vmem(f"buffer_load_dwordx4 v{16+2*jj+hh}, s[{sX}:{sX+3}], s{sT0} offen {xfl} lds".replace("  ", " "), tag=("x", kp))
    x_issue(0)
    if opt.get("hd") == 2:
        g("s_waitcnt vmcnt(0)"); g.stamp(8)
    srd(g, sW1, kw1, 1048576)
    g(f"s_getpc_b64 s[{sCode}:{sCode+1}]")
    g("L_pc:")
    g(f"s_mov_b32 s{sCode+2}, L_code_end-L_pc")
    g(f"s_mov_b32 s{sCode+3}, 0x20000")
    g(f"s_lshr_b32 s{sT1}, s{sWg}, 3")
    g(f"s_lshl2_add_u32 s{sSl}, s{sT1}, s{sW}")
    g(f"v_lshrrev_b32 v6, 1, v0")
    g(f"v_lshlrev_b32 v6, 10, v6")
    g(f"v_and_b32 v7, 1, v0")
    g(f"v_lshl_add_u32 v6, v7, 7, v6")
    g(f"v_lshrrev_b32 v7, 4, v0")
    g(f"v_lshl_add_u32 v6, v7, 28, v6")
    def warm_w1(ph, dst):
        g(f"s_lshl_b32 s{sT2}, s{sSl}, 13")
        if ph:
            g(f"s_add_u32 s{sT2}, s{sT2}, {ph * 256}")
        g.vmem(f"buffer_load_dword v{dst}, v6, s[{sW1}:{sW1+3}], s{sT2} offen {opt.get('wfl', '')}", [dst])
    if opt.get("warm0", 1) == 1:
        warm_w1(0, 8)
    g(f"s_lshl_b32 s{sT2}, s{sSl}, 7")
    g(f"v_lshlrev_b32 v7, 14, v0")
    g.vmem(f"buffer_load_dword v9, v7, s[{sCode}:{sCode+3}], s{sT2} offen", [9])
    if opt.get("warm0", 1) == 2:
        swarm(wlines(0)[12 * len(sub):])
    if opt.get("hd") in (2, 3):
        g("s_waitcnt vmcnt(0)"); g.stamp(9)
    d1_addr()
    common(1)
    sTs, sTd = 64, 65
    g(f"v_lshrrev_b32 v26, 3, v0")
    g(f"v_lshlrev_b32 v27, 4, v13")
    g(f"s_and_b32 s{sT0}, s{sWg}, 15")
    g(f"s_lshr_b32 s{sT1}, s{sT0}, 1")
    g(f"s_lshl_b32 s{sTd}, s{sT1}, 13")
    g(f"s_and_b32 s{sT1}, s{sT0}, 1")
    g(f"s_lshl_b32 s{sT1}, s{sT1}, 10")
    g(f"s_add_u32 s{sTd}, s{sTd}, s{sT1}")
    g(f"s_cmp_ge_u32 s{sWg}, 128")
    g("s_cbranch_scc1 L_task2")
    g(f"v_and_b32 v28, 3, v26")
    g(f"v_lshrrev_b32 v26, 2, v26")
    g(f"v_lshl_add_u32 v26, v26, 3, v28")
    g(f"v_lshl_add_u32 v26, v26, 11, v27")
    g(f"s_lshl_b32 s{sTs}, s{sT0}, 16")
    g(f"s_and_b32 s{sT1}, s{sW}, 1")
    g(f"s_lshl_b32 s{sT2}, s{sT1}, 15")
    g(f"s_add_u32 s{sTs}, s{sTs}, s{sT2}")
    g(f"s_lshl_b32 s{sT2}, s{sT1}, 11")
    g(f"s_add_u32 s{sTd}, s{sTd}, s{sT2}")
    g(f"s_lshr_b32 s{sT1}, s{sW}, 1")
    g(f"s_lshl_b32 s{sT2}, s{sT1}, 13")
    g(f"s_add_u32 s{sTs}, s{sTs}, s{sT2}")
    g(f"s_lshl_b32 s{sT2}, s{sT1}, 16")
    g(f"s_add_u32 s{sTd}, s{sTd}, s{sT2}")
    g(f"s_bfe_u32 s{sT1}, s{sWg}, 0x10004")
    g(f"s_lshl_b32 s{sT2}, s{sT1}, 10")
    g(f"s_add_u32 s{sTs}, s{sTs}, s{sT2}")
    g(f"s_lshl_b32 s{sT2}, s{sT1}, 12")
    g(f"s_add_u32 s{sTd}, s{sTd}, s{sT2}")
    g(f"s_lshr_b32 s{sT1}, s{sWg}, 5")
    g(f"s_lshl_b32 s{sT2}, s{sT1}, 7")
    g(f"s_add_u32 s{sTs}, s{sTs}, s{sT2}")
    g(f"s_add_u32 s{sTs}, s{sTs}, 512")
    g(f"s_lshl_b32 s{sT2}, s{sT1}, 17")
    g(f"s_add_u32 s{sTd}, s{sTd}, s{sT2}")
    srd(g, sW2, sW1, 1048576)
    g("s_branch L_task3")
    g("L_task2:")
    g(f"v_lshl_add_u32 v26, v26, 10, v27")
    g(f"s_lshl_b32 s{sTs}, s{sT0}, 15")
    g(f"s_lshl_b32 s{sT2}, s{sW}, 13")
    g(f"s_add_u32 s{sTs}, s{sTs}, s{sT2}")
    g(f"s_lshl_b32 s{sT2}, s{sW}, 11")
    g(f"s_add_u32 s{sTd}, s{sTd}, s{sT2}")
    g(f"s_lshr_b32 s{sT1}, s{sWg}, 4")
    g(f"s_lshl_b32 s{sT2}, s{sT1}, 16")
    g(f"s_add_u32 s{sTd}, s{sTd}, s{sT2}")
    g(f"s_and_b32 s{sT1}, s{sT1}, 7")
    g(f"s_lshl_b32 s{sT2}, s{sT1}, 7")
    g(f"s_add_u32 s{sTs}, s{sTs}, s{sT2}")
    g("L_task3:")
    g(f"v_mov_b32 v42, v26")
    if d1:
        g(f"s_cmp_lt_u32 s{sWg}, 64")
        g(f"s_cselect_b32 s{sT1}, 0, 0x40000000")
        g(f"s_sub_u32 s{sSl+1}, s{sTs}, 256")
        g(f"s_max_i32 s{sSl+1}, s{sSl+1}, 0")
        g(f"v_add_u32 v43, s{sT1}, v26")
        g(f"v_lshl_add_u32 v41, v0, 4, s{sT1}")
    g(f"s_cmp_ge_u32 s{sWg}, {128 if opt.get('nsw', 1) else 256}")
    g(f"s_cselect_b32 s{sT2}, 3, 5")
    g(f"s_lshl_b32 s{sT1}, s{sW}, s{sT2}")
    g(f"s_add_u32 s{sT1}, s{sT1}, {SCR}")
    g(f"s_sub_u32 s{sT2}, 8, s{sT2}")
    g(f"v_lshrrev_b32 v26, 2, v0")
    g(f"v_lshl_add_u32 v26, v26, 7, s{sT1}")
    g(f"v_lshlrev_b32 v27, s{sT2}, v2")
    g(f"v_add_u32 v26, v26, v27")
    g(f"v_lshlrev_b32 v27, 4, v0")
    srd(g, sDW, kdw, 5120)
    g(f"s_lshl_b32 s{sT1}, s{sW}, 28")
    g(f"v_lshrrev_b32 v36, 5, v0")
    g(f"v_lshl_add_u32 v36, v36, 27, s{sT1}")
    g(f"v_bfe_u32 v37, v0, 2, 2")
    g(f"v_lshlrev_b32 v38, 1, v2")
    g(f"v_sub_u32 v37, v38, v37")
    g(f"s_lshl_b32 s{sT1}, s{sWg}, 2")
    g(f"v_lshl_add_u32 v37, v37, 10, s{sT1}")
    g(f"v_bfe_u32 v38, v0, 4, 1")
    g(f"v_lshl_add_u32 v37, v38, 1, v37")
    g(f"v_add_u32 v37, v37, v36")
    g(f"v_add_u32 v38, 1024, v37")
    g(f"s_lshl_b32 s{sT1}, s{sWg}, 7")
    g(f"s_add_u32 s{sT1}, s{sT1}, {CTOFF}")
    g(f"v_lshl_add_u32 v39, v0, 2, s{sT1}")
    g(f"v_add_u32 v36, v36, v39")
    def task_load():
        g(f"s_lshl_b32 s{sT1}, s{sW}, 10")
        g(f"s_add_u32 m0, s{sT1}, {SCR}")
        g.vmem(f"buffer_load_ushort v39, v37, s[{sDW}:{sDW+3}], 0 offen", [39], tag="task")
        g.vmem(f"buffer_load_dwordx4 v42, s[{sW2}:{sW2+3}], s{sTs} offen {opt.get('tnt', 'nt')} lds", tag="task")
        g(f"s_add_u32 m0, m0, 4096")
        g.vmem(f"buffer_load_ushort v40, v38, s[{sDW}:{sDW+3}], 0 offen", [40], tag="task")
        if d1:
            g.vmem(f"buffer_load_dwordx4 v43, s[{sW1}:{sW1+3}], s{sSl+1} offen {opt.get('tnt', 'nt')} lds", tag="task")
        ct_srd()
        srd(g, sW2, sWq, 0x148000)
    tk = opt.get("tk", 1)
    if tk == 1:
        task_load()
    assert rbar and win == 2
    def w_first():
        P[0].advance(g, 0)
        for ab in range(2):
            set_m0(g, ab)
            g("s_nop 0")
            for m in range(4):
                P[0].dma(g, ab, m, ("x", 0))
    wA = opt.get("wA", 2)
    if wA:
        g.barrier("w0")
    else:
        w_first()
    for kp in range(1, win):
        x_issue(kp)
    g.wait(vm=("x", 0))
    g.barrier("x0")
    g("s_branch L_roleB")
    vmB = list(g.vm); g.vm = []; g.bars = []

    g("L_startA:")
    d1_addr()
    g("s_waitcnt lgkmcnt(0)")
    if opt.get("tlb", 0):
        g(f"s_add_u32 s{sO}, s{kout}, s2")
        g(f"s_addc_u32 s{sO+1}, s{kout+1}, 0")
        for n, (k, off) in enumerate(((kw1, 0), (kdw, 0), (kw2, 0), (kws, 0x80000), (sO, 0))):
            g(f"s_load_dword s3, s[{k}:{k+1}], {off}")
    srd(g, sW1, kw1, 1048576)
    g(f"s_lshr_b32 s{sT1}, s{sWg}, 3")
    g(f"s_lshl2_add_u32 s{sSl}, s{sT1}, s{sW}")
    if opt.get("warm0", 1) == 2:
        swarm(wlines(0)[:12 * len(sub)])
    if wA == 2:
        w_first()
    common(0)
    ct_srd()
    if wA == 1:
        w_first()
    if stamps == 4:
        g(f"s_add_u32 s4, s40, {STAMP_OFF}\ns_addc_u32 s5, s41, 0\ns_mov_b32 s6, 0x100000\ns_mov_b32 s7, 0x20000")
        g(f"s_lshl_b32 s42, s{sWg}, 3\ns_add_u32 s42, s42, s{sWv}\ns_lshl_b32 s42, s42, 7")
        g("v_mov_b32 v8, s74\nv_mov_b32 v9, s75\nv_mov_b32 v10, s74\nv_mov_b32 v11, s75\nv_and_b32 v12, 1, v0\nv_lshrrev_b32 v13, 1, v0\nv_lshlrev_b32 v12, 9, v12\nv_lshl_add_u32 v12, v13, 24, v12")
        g.vmem("buffer_store_dwordx4 v[8:11], v12, s[4:7], s42 offen sc0 sc1")
    if wA:
        g.barrier("w0")
        g.drain(vm=True)
        g("s_waitcnt lgkmcnt(0)")
    g.stamp(8)
    g.barrier("x0")
    g.stamp(9)
    it = start_a(g, P[0])
    run(it[:8] + start_x(g, P[0]) + start_b(g, P[0])[:8])
    run(it[8:10]); g("s_nop 0"); run(it[10:] + start_b(g, P[0])[8:])
    ex = {(kp, rbar): (lambda kp=kp: g.barrier(f"r{kp}")) for kp in range(8 - win)} if rbar else {}
    g.stamp(1)
    if d1:
        def h0():
            g.wait(lg=("rb", 7))
            g.barrier("h0")
        ex[(7, opt.get("h0g", 45))] = h0
    mfma_phase(g, P[0], None if d1 else P[1], "h0", xbar=lambda kp: g.barrier(f"x{kp}"), first=True, extra=ex)
    g.stamp(2)
    def sw(reg, off, va=vS):
        return lambda: g.ds(f"ds_write_b128 v{va}, {R(reg)} offset:{off}", tag="sw")
    e_phase(g, 0, VH, pre=P2.start_w(g) + P2.start_x(g), warm=e_warm(2))
    if not d1:
        g.barrier("h1")
    g.stamp(3)
    direct_phase(g, P2)
    g.stamp(4)
    e_phase(g, 2, 0, pre=GA.start_w(g), warm=e_warm(4) + (e_warm(5, 14 if e_warm(4) else 0) if opt.get('w5', 2) == 2 else []))
    g_addr(g)
    outv_addr(g, 64)
    g.barrier("h3")
    nb_ = opt.get("burst", 0)
    if nb_ >= 8:
        run([sw(4 * j, 32768 + j * 2048) for j in range(8)] + GA.start_x(g) + [sw(VH + 4 * j, j * 2048) for j in range(nb_ - 8)])
    else:
        run([sw(0, 32768), sw(4, 32768 + 2048)] + GA.start_x(g) + [sw(8, 32768 + 4096)])
    g.stamp(5)
    yl = [int(v) for v in str(opt.get("yl", "4 6 7")).split()]
    GA.merge = len(yl) > 1
    def xbarA(kp, j):
        if kp == 2 and j == 0:
            g.wait(lg="sw")
            g.barrier("V")
        if kp == 6 and (j == 0 or j - 1 in yl):
            g.barrier(f"Y{min(v for v in yl if v >= j)}")
    ex = {(0, 8 * (j - 3) + 4): sw(4 * j, 32768 + j * 2048) for j in range(3, 8)} if nb_ < 8 else {}
    fr = ((0, 44), (0, 52), (1, 4), (1, 12), (1, 20), (1, 28), (1, 34), (1, 38))
    ex.update({fr[j]: sw(VH + 4 * j, j * 2048) for j in range(max(nb_ - 8, 0), 8)})
    na = opt.get("na", 0) if GA.merge else 0
    pend = out_interleave(g, ex, True, [int(c) for c in str(opt.get("opera", 2))], na, opt.get("stA", "nt")) if na else []
    split = opt.get("split", 0)
    HB, HA = Half(0), Half(1)
    if split:
        assert GA.merge and not na
        for n, f in enumerate(HA.loads(g, 4) + HA.loads(g, 5)):
            ex[(6, 8 * (n // 2) + 3 + 2 * (n % 2))] = f
    direct_phase(g, GA, xbar=xbarA, extra=ex)
    g.stamp(6)
    g("s_setprio 0")
    g("s_nop 6")
    run(pend)
    zg = [int(v) for v in str(opt.get("zg", "1 2 2 2 1")).split() if int(v)]
    j = na
    assert na + sum(zg) <= 8
    for n, cnt in enumerate(zg):
        for jj in range(j, j + cnt):
            run(outv_items(g, jj, jj, opt.get("stA", "nt"), 1))
        g.barrier(f"Z{n}")
        for jj in range(j, j + cnt):
            run(outv_items(g, jj, jj, opt.get("stA", "nt"), 3))
        j += cnt
    for jj in range(j, 8):
        if opt.get("outA", 2): run(outv_items(g, jj, jj, opt.get("stA", "nt"), opt.get("outA", 2), None if split else opt.get("infl", 1)))
        if split and jj < 6:
            run(HA.loads(g, (0, 1, 2, 3, 6, 7)[jj]))
    if split:
        g("s_nop 0")
        outv_addr(g, 16, 1)
        run(HA.start_x(g, 0, 5))
        g.stamp(8)
        ex, pend = {}, []
        def f(m):
            if m % 64 == 7 and m > 63:
                j = 2 * (m // 64 - 1)
                pend.extend(outv_items(g, j, j // 2, opt.get("stH", "sc1"), Q=[HA.aq(j + q // 2, q % 2) for q in range(4)]))
            if m % 4 >= 2:
                for _ in range(opt.get("hper", 2)):
                    if pend: pend.pop(0)()
        HA.phase(g, {m: (lambda m=m: f(m)) for m in range(256)})
        assert not pend
        g.stamp(9)
        g("s_nop 7")
        run(outv_items(g, 6, 3, opt.get("stH", "sc1"), Q=[HA.aq(6 + q // 2, q % 2) for q in range(4)]))
    g.stamp(7)
    barsA = g.bars
    g("s_branch L_fin")

    g.lg, g.vm, g.bars = [], vmB, ["w0", "x0"] if wA else ["x0"]
    g("L_roleB:")
    def task_read():
        assert not any(t == "task" for _, t in g.vm)
        for n in range(1 + d1):
            g(f"ds_read_b64_tr_b16 v[{28+4*n}:{29+4*n}], v26 offset:{4096*n}")
            g(f"ds_read_b64_tr_b16 v[{30+4*n}:{31+4*n}], v26 offset:{4096*n + 2048}")
        g("s_waitcnt lgkmcnt(0)")
    def task_store():
        if opt.get("psc", 0):
            g(f"s_and_b32 s{sT1}, s{sWg}, 0x90")
            g(f"s_cmp_eq_u32 s{sT1}, 0x10")
            g(f"s_cselect_b32 s{sT1}, s{sC}, 1.0")
            for r in range(28, 36):
                g(f"v_lshlrev_b32 v44, 16, v{r}")
                g(f"v_and_b32 v45, 0xffff0000, v{r}")
                g(f"v_mul_f32 v44, s{sT1}, v44")
                g(f"v_mul_f32 v45, s{sT1}, v45")
                g(f"v_cvt_pk_bf16_f32 v{r}, v44, v45")
        g(f"v_lshl_or_b32 v39, v40, 16, v39")
        g.vmem(f"buffer_store_dword v39, v36, s[{sW2}:{sW2+3}], 0 offen {opt.get('tfl', 'sc0 sc1')}", tag="clr")
        g.vmem(f"buffer_store_dwordx4 v[28:31], v27, s[{sW2}:{sW2+3}], s{sTs} offen {opt.get('tfl', 'sc0 sc1')}", tag="clr")
        if d1:
            g.vmem(f"buffer_store_dwordx4 v[32:35], v41, s[{sW2}:{sW2+3}], s{sTd} offen {opt.get('tfl', 'sc0 sc1')}", tag="clr")
    if tk == 2 and opt.get("tpre", 1):
        task_load()
    g.barrier("r0")
    if tk == 2 and not opt.get("tpre", 1):
        task_load()
    x_issue(win)
    g(f"s_and_b32 s{sGrp}, s{sTile}, 0xfc")
    g(f"s_lshl_b32 s{sT1}, s{sW}, 9")
    g(f"v_lshlrev_b32 v21, 3, v0")
    g(f"v_mov_b32 v22, -1")
    g(f"v_mov_b32 v23, -1")
    g(f"s_add_u32 s{sTs}, s{sTd}, 262144")
    g.vmem(f"buffer_store_dwordx2 v[22:23], v21, s[{sWS}:{sWS+3}], s{sT1} offen {opt.get('tfl', 'sc0 sc1')}", tag="clr")
    g.stamp(1)
    def ready():
        g(f"s_mov_b32 s{sT2}, {opt.get('spin', 400000)}")
        g.wait(regs=[22])
        g.point("rdy_")
        if opt.get("p1", 1):
            assert pk < 7 and "1" not in str(opt.get("wk", "5"))
            g(f"s_cmp_lg_u32 s{sW}, 0")
            g("s_cbranch_scc1 L_rdy_ok")
        g("L_rdy:")
        g(f"v_cmp_ne_u32 vcc, 15, v22")
        g(f"s_sub_u32 s{sT2}, s{sT2}, 1")
        g("s_cbranch_scc1 L_rdy_ok")
        g("s_cbranch_vccz L_rdy_ok")
        g(f"buffer_load_dword v22, v21, s[{sDBG}:{sDBG+3}], 0 offen sc0 sc1")
        g("s_waitcnt vmcnt(0)")
        g("s_branch L_rdy")
        g("L_rdy_ok:")
        g.point("rdy")
    pk = opt.get("pk", 6) if d1 else 7
    ak = opt.get("ak", 2)
    for kp in range(1, 8):
        g.wait(vm=("x", kp))
        if kp == ak:
            g.wait(vm="clr")
        g.barrier(f"x{kp}")
        if kp in (3, 7) and not opt.get("hd"):
            g.stamp({0: 1, 3: 8, 7: 9}[kp])
        if kp == tk:
            task_read()
            task_store()
        if kp == ak:
            assert not any(t == "clr" for _, t in g.vm)
            g(f"s_cmp_lg_u32 s{sW}, 0")
            g("s_cbranch_scc1 L_noann")
            g(f"s_and_b32 s{sT1}, s{sTile}, 3")
            g(f"s_lshl_b32 s{sT1}, 1, s{sT1}")
            if "a" not in str(opt.get("abl", "")):
                g(f"s_atomic_or s{sT1}, s[{sDBG}:{sDBG+1}], s{sGrp}")
            g("L_noann:")
        if kp + win < 8:
            g.barrier(f"r{kp}")
        if kp == pk - 1:
            g(f"s_lshl_b32 s{sT2}, s{sW}, {20 if opt.get('p1', 1) else 32}")
            g(f"v_lshlrev_b32 v21, 2, v0") if not opt.get("p1", 1) else g(f"v_lshl_add_u32 v21, v0, 2, s{sT2}")
            g.vmem(f"buffer_load_dword v22, v21, s[{sDBG}:{sDBG+3}], 0 offen sc0 sc1", [22])
        if kp + win < 8:
            x_issue(kp + win)
        if kp == pk:
            ready()
        if "1" in str(opt.get("wk", "5")) or not d1:
            if d1:
                nb = -(-32 // (8 - pk))
                if kp >= pk: swarm(later[(kp - pk) * nb:(kp - pk + 1) * nb])
            elif 2 <= kp < 6:
                swarm(later[(kp - 2) * nb:(kp - 1) * nb])
    g.drain(vm=True)
    def idle_start(name, own):
        run(start_x(g, own))
        g.barrier(name + "a")
        run(start_a(g, own))
        g.barrier(name + "b")
        g("s_setprio 1")
        run(start_b(g, own))
    if d1:
        run(P1.start_w(g))
        g("s_waitcnt lgkmcnt(0)")
        run(P1.start_x(g))
        g.barrier("h0")
        g.stamp(2)
        direct_phase(g, P1, reset=True)
    else:
        g("s_waitcnt lgkmcnt(0)")
        idle_start("h0", P[1])
        g.stamp(2)
        def h1():
            g.wait(lg=("rb", 7))
            g.barrier("h1")
        mfma_phase(g, P[1], None, None, extra={(7, opt.get("h1g", 20)): h1})
    g.stamp(3)
    e_phase(g, 1, 0, pre=P3.start_w(g) + P3.start_x(g), warm=e_warm(3), after_tile=lambda e, j: e.q2.append(sw(4 * j, 32768 + j * 2048)))
    g.wait(lg="sw")
    g.stamp(4)
    def h3():
        assert not any(t == "sw" for _, t in g.lg)
        g.barrier("h3")
    ex = {(7, opt.get("h3g", 30)): h3}
    if split:
        for n, f in enumerate(HB.loads(g, 0) + HB.loads(g, 1)):
            ex[(7, 8 * (n // 2) + 3 + 2 * (n % 2))] = f
    direct_phase(g, P3, extra=ex)
    g.stamp(5)
    def vB(e, j):
        if j == opt.get("vtile", 4):
            g.barrier("V")
            g_addr(g)
    def yB(e, j):
        e.q2.append(sw(4 * j, j * 2048))
        if j in yl:
            def f():
                g.wait(lg="sw")
                g.barrier(f"Y{j}")
            e.q2 += [lambda: None] * opt.get("ydel", 2) + [f]
    if split:
        np4 = opt.get("np4", 2)
        pre4 = [f for kp in range(2, 2 + np4) for f in HB.loads(g, kp)] + HB.start_x(g, 0, 3)
        e_phase(g, 3, 0, pre4=pre4, glu_tile=vB, after_tile=yB, tw=0)
        run(HB.start_x(g, 3, 5) + [f for kp in range(2 + np4, 8) for f in HB.loads(g, kp)])
        outv_addr(g, 88, 0)
        g.stamp(6)
        HB.phase(g, {opt.get("hbp", 66): lambda: g("s_setprio 2")})
        g.stamp(7)
        g("s_setprio 0")
        g("s_nop 6")
        for jp in range(4):
            run(outv_items(g, 2 * jp, jp, opt.get("stH", "sc1"), inflight=opt.get("inflB"), Q=[HB.aq(2 * jp + q // 2, q % 2) for q in range(4)]))
    else:
        e_phase(g, 3, 0, pre=GB.start_w(g) + GB.start_x(g), glu_tile=vB,
                warm=e_warm(5) if opt.get('w5', 2) == 3 else [], after_tile=yB, tw=0)
        outv_addr(g)
        GB.merge = bool(opt.get("merge", 1))
        if GB.merge and opt.get("early7", 1):
            GB.early7 = True
            GB.soff(g, 7, 0); GB.soff(g, 7, 1)
            for f in range(8): GB.load(g, 7, f)
            GB.soff(g, 1, 0); GB.soff(g, 1, 1)
        g.stamp(6)
        ex = {}
        for n in range(len(zg)):
            ex[(n, opt.get("zat", 30))] = (lambda n=n: g.barrier(f"Z{n}"))
        pend = out_interleave(g, ex, GB.merge, [int(c) for c in str(opt.get("oper", 2 if GB.merge else 4))], 7, opt.get("stB", "nt"), opt.get("outB", 2))
        direct_phase(g, GB, extra=ex)
        g.stamp(7)
        if len(pend) < 8:
            g("s_nop 7")
        run(pend)
        run(outv_items(g, 7, 7, opt.get("stB", "nt"), opt.get("outB", 2)))
    assert g.bars == barsA, (g.bars, barsA)
    g("L_fin:")
    if stamps and stamps != 4:
        g("s_waitcnt vmcnt(0)")
        g("s_memrealtime s[98:99]")
        g(f"s_mem{'real' if stamps == 3 else ''}time s[100:101]")
        g(f"s_add_u32 s4, s40, {STAMP_OFF}\ns_addc_u32 s5, s41, 0\ns_mov_b32 s6, 0x100000\ns_mov_b32 s7, 0x20000")
        g(f"s_lshl_b32 s8, s{sWg}, 3\ns_add_u32 s8, s8, s{sWv}\ns_lshl_b32 s8, s8, 7")
        g("s_waitcnt lgkmcnt(0)")
        g("s_mov_b64 exec, 1")
        g("v_mov_b32 v4, 0")
        order = [74, 98, 76, 100] + [76 + 2 * n for n in range(1, 10)]
        for n, s in enumerate(order):
            g(f"v_mov_b32 v0, s{s}\nv_mov_b32 v1, s{s+1}")
            g(f"buffer_store_dwordx2 v[0:1], v4, s[4:7], s8 offen offset:{8*n}")
            g("s_nop 1")
    g("L_end:")
    g("s_endpgm")
    g("L_code_end:")
    g('.section .rodata,"a"')
    g(".p2align 6")
    g(f".amdhsa_kernel {KN}_kernel")
    g.l += ["  .amdhsa_next_free_vgpr 256", "  .amdhsa_next_free_sgpr 102", "  .amdhsa_accum_offset 256",
            "  .amdhsa_group_segment_fixed_size 0", "  .amdhsa_kernarg_size 56", "  .amdhsa_user_sgpr_count 2",
            "  .amdhsa_user_sgpr_kernarg_segment_ptr 1", "  .amdhsa_system_sgpr_workgroup_id_x 1",
            "  .amdhsa_float_denorm_mode_32 3"]
    g(".end_amdhsa_kernel")
    t = g.text()
    if stamps and opt.get("probe", 1):
        t = t.replace("; @launch grid=(256,1,1) block=(512,1,1) lds=163840",
                      f"; @launch kernel={KN}_kernel grid=(256,1,1) block=(512,1,1) lds=163840\n; @launch kernel=probe_kernel grid=(1,1,1) block=(64,1,1) lds=0")
        a = [".p2align 8", ".globl probe_kernel", ".type probe_kernel,@function", "probe_kernel:",
             "s_memrealtime s[8:9]", "s_load_dwordx2 s[4:5], s[0:1], 48", "s_waitcnt lgkmcnt(0)",
             f"s_add_u32 s4, s4, {STAMP_OFF}", "s_addc_u32 s5, s5, 0", "s_mov_b32 s6, 0x100000", "s_mov_b32 s7, 0x20000",
             "v_mov_b32 v2, s8", "v_mov_b32 v3, s9", "v_mov_b32 v1, 120", "buffer_store_dwordx2 v[2:3], v1, s[4:7], 0 offen", "s_endpgm"]
        t = t.replace('.section .rodata,"a"', "\n".join(a) + '\n.section .rodata,"a"')
        t += ".p2align 6\n.amdhsa_kernel probe_kernel\n  .amdhsa_next_free_vgpr 16\n  .amdhsa_next_free_sgpr 32\n  .amdhsa_accum_offset 16\n" \
             "  .amdhsa_group_segment_fixed_size 0\n  .amdhsa_kernarg_size 56\n  .amdhsa_user_sgpr_count 2\n" \
             "  .amdhsa_user_sgpr_kernarg_segment_ptr 1\n  .amdhsa_system_sgpr_workgroup_id_x 1\n.end_amdhsa_kernel\n"
    return t


def parse(args):
    opt = {}
    for a in args:
        k, v = a.split("=", 1)
        try:
            v = int(v)
        except ValueError:
            v = v.replace("+", " ")
        opt[k] = v
    return opt


if __name__ == "__main__":
    open(sys.argv[1], "w").write(build(parse(sys.argv[2:])))
```

```python
import sys

KN = "standalone__conformer_conv_module__speech"
STAMP_OFF = 255 * 1024 * 1024

HEAD = """; Kernarg layout for this problem (56 bytes, ptrs only, base s[0:1]):
;   offset   0: d_in[0] x  shape=(2, 16000, 512) dtype=bfloat16 strides=(16384000, 1024, 2) contiguous=True
;   offset   8: d_in[1] w_pw1  shape=(512, 1024) dtype=bfloat16 strides=(2048, 2) contiguous=True
;   offset  16: d_in[2] dw  shape=(5, 512) dtype=bfloat16 strides=(1024, 2) contiguous=True
;   offset  24: d_in[3] w_pw2  shape=(512, 512) dtype=bfloat16 strides=(1024, 2) contiguous=True
; Override launch geometry by editing the next line (default: block=256,
"""

DOC = """
;
; Fused  out = silu(dwconv5(glu(x @ W1))) @ W2.   One workgroup per CU, 126 or 124 output rows (128-row tile, row u = 8*lane15 + tile).
;   phase   0          1          2          3          4           5
; x lives in LDS (128 KB, LDS-DMA, swizzled); silu output fragments replace it for GEMM2.
; Phase 0 transposes W1 through a small LDS ring (ds_read_b64_tr_b16).  Meanwhile every even workgroup re-lays a slice of the
; The depthwise conv is one MFMA per 4 outputs (banded weights x time-packed GLU output).  The two GLU rows a 126-row tile lacks
; come from the next tile's workgroup through a mailbox in d_ws that is emptied at the start of each launch.
"""

def ACC(i, j): return 4 * (i * 8 + j)
VH = 128
VWX, VWY, VWZ = 160, 176, 192
VXR = 208
vDc, vW0, vW1, vD1 = 240, 242, 243, 244
def DW(i, h, p): return 160 + 32 * (p % 2) + 8 * i + 4 * h
def DX(n, h): return 224 + 8 * (n % 3) + 4 * h
vX0, vX1, vS = 248, 249, 250
vG8, vM0, vM1, vEX = 251, 252, 253, 254
def AF(ct, r): return 192 + 16 * ct + 4 * r
def TP(ct, r, q):
    n = 4 * ct + r
    return (160 + 6 * n if n < 5 else 224 + 6 * (n - 5)) + q + 1
def YY(ct, r, j): return 64 + 32 * ct + 8 * r + j
VEXP = 192
VTMP, VIMP = 32, 40
CTOFF = 0x140000
sX, sW1, sW2, sO, sDW, sWS, sDBG, sWE = 4, 8, 12, 16, 20, 24, 28, 32
sW64, sHo, sW128, sSb = 36, 37, 38, 39
sRows = 50
sRing = 44
sT0, sT1, sT2, sT3 = 46, 47, 48, 49
sC, sCi = 50, 51
sWv, sW, sTile, sTau, sWg, sGrp = 52, 53, 54, 55, 56, 57
sWP = 60
sWq = 58
sK = 66
sSl = 96
sCode = 16
KA = 76
QORD = (1, 2, 0, 3)
WPOFF = 1 << 20

OOB = 0x7f000000
SCR = 7 * 16384


class Gen:
    def __init__(self, opt):
        self.l = []
        self.opt = opt
        self.lg = []
        self.vm = []
        self.bars = []

    def __call__(self, s=""):
        for line in s.split("\n"):
            self.l.append(line if line.endswith(":") or line.startswith(".") or line.startswith(";") else "    " + line)

    def text(self):
        return "\n".join(self.l) + "\n"

    def ds(self, text, regs=(), tag=None):
        if self.opt.get("nosw") and tag == "sw":
            return
        if len(self.lg) >= 15:
            self("s_waitcnt lgkmcnt(11)"); self.lg = self.lg[-11:]
        self(text); self.lg.append((set(regs), tag))

    def vmem(self, text, regs=(), tag=None):
        abl = str(self.opt.get("abl", ""))
        if ("s" in abl and tag == "clr" and "dwordx4" in text) or ("c" in abl and tag == "clr" and "dwordx2" in text) or \
           ("p" in abl and regs == [22]) or ("d" in abl and regs == [10]) or ("t" in abl and tag == "task"):
            return
        self(text); self.vm.append((set(regs), tag))

    def _idx(self, q, regs, tag):
        idx = -1
        for n, (r, t) in enumerate(q):
            if (regs and (r & set(regs))) or (tag is not None and t == tag):
                idx = n
        return idx

    def wait(self, regs=(), lg=None, vm=None):
        parts = []
        i = self._idx(self.vm, regs, vm)
        if i >= 0:
            n = min(len(self.vm) - 1 - i, 63)
            parts.append(f"vmcnt({n})"); self.vm = self.vm[len(self.vm) - n:] if n else []
        i = self._idx(self.lg, regs, lg)
        if i >= 0:
            n = min(len(self.lg) - 1 - i, 15)
            parts.append(f"lgkmcnt({n})"); self.lg = self.lg[len(self.lg) - n:] if n else []
        if parts:
            self("s_waitcnt " + " ".join(parts))

    def drain(self, vm=False, lg=False):
        parts = []
        if vm and self.vm:
            parts.append("vmcnt(0)"); self.vm = []
        if lg and self.lg:
            parts.append("lgkmcnt(0)"); self.lg = []
        if parts:
            self("s_waitcnt " + " ".join(parts))

    def barrier(self, name):
        self.point(name + "_")
        self(f"s_barrier"); self.bars.append(name)
        self.point(name)

    def point(self, name):
        pts = self.opt.get("pts")
        if pts and name in pts.split():
            n = pts.split().index(name) + 1
            self(f"s_mem{'real' if self.opt['stamps'] == 3 else ''}time s[{76+2*n}:{77+2*n}]")

    def stamp(self, n):
        if self.opt.get("pts"):
            return self.point(f"s{n}")
        if self.opt.get("stamps") in (1, 3):
            self(f"s_mem{'real' if self.opt['stamps'] == 3 else ''}time s[{76+2*n}:{77+2*n}]")
            self("s_waitcnt lgkmcnt(0)")
            self.lg = []


def R(a, n=4): return f"v[{a}:{a+n-1}]"
def rs(a, n=4): return list(range(a, a + n))


def wreg(i, h, p, kind="P"):
    if i < 2:
        return (VWX if p % 2 == 0 else VWY) + 8 * i + 4 * h
    return VWZ + 8 * (i - 2) + 4 * h


def xreg(j, h): return VXR + 8 * (j % 4) + 4 * h


def kconst(kind, ab, m):
    return 16 * m * 2048 + ab * 1024 - m * 1024


def set_kconst(g, kind):
    return [lambda ab=ab, m=m: g(f"s_mov_b32 s{sK + 4*ab + m}, {kconst(kind, ab, m)}") for ab in range(2) for m in range(4)]


class Stream:
    def __init__(self, kind, arg):
        self.kind, self.arg = kind, arg

    def advance(self, g, kp, fresh=False):
        g(f"v_add_u32 v{vDc}, {kp * 131072 + self.arg * 256}, v{vD1}")

    def dma(self, g, ab, m, tag, fl=""):
        if g.opt.get("nodma"):
            return
        srd = sW1
        g.vmem(f"buffer_load_dwordx4 v{vDc}, s[{srd}:{srd+3}], s{sK + 4*ab + m} offen offset:{m*1024} {fl} lds", tag=tag)


def set_m0(g, ab):
    g(f"s_mov_b32 m0, s{sRing + ab}")


def tr_read(g, i, h, q, p, tag, kind="P"):
    d = wreg(i, h, p, kind) + 2 * q
    off, base = (i >> 1) * 4096 + h * 2048 + q * 256, vW0 + (i & 1)
    g.ds(f"ds_read_b64_tr_b16 {R(d, 2)}, v{base} offset:{off}", rs(d, 2), tag)


def part_reads(kind, ab):
    return [(i, h, q) for i in ((0, 1) if ab == 0 else (3, 2)) for h in range(2) for q in range(2)]


def x_read(g, kind, kp, j, h, d=None):
    if d is None:
        d = xreg(j, h)
    if kind == "P":
        off, base = (kp * 8 + j) * 2048 % 65536, vX0 + h
    else:
        off = (1 - (kp >> 2)) * 32768 + (kp & 1) * 16384 + j * 2048 + h * 1024
        base = vX0 + (0, 1, 1, 0)[kp >> 1]
    g.ds(f"ds_read_b128 {R(d)}, v{base} offset:{off}", rs(d))


def chain_order(jp):
    j0, j1 = 2 * jp, 2 * jp + 1
    if jp % 2 == 0:
        return [(j0, 0), (j0, 1), (j1, 1), (j1, 0), (j1, 2), (j1, 3), (j0, 3), (j0, 2)]
    return [(j0, 2), (j0, 3), (j1, 3), (j1, 2), (j1, 0), (j1, 1), (j0, 1), (j0, 0)]


def mfma(g, acc, A, B, first):
    g.wait(regs=rs(A) + rs(B))
    c = "0" if first else R(acc)
    if g.opt.get("al", 0) & 1:
        g(".p2align 3")
    if g.opt.get("al", 0) & 4 and not g.l[-1].lstrip().startswith(("v_mfma", "ds_", "buffer_")):
        g(".p2align 3"); g("s_nop 0")
    g(f"v_mfma_f32_16x16x32_bf16 {R(acc)}, {R(A)}, {R(B)}, {c}")


def start_a(g, own):
    it = [lambda i=i, h=h, q=q: tr_read(g, i, h, q, 0, ("ra", 0), own.kind) for i, h, q in part_reads(own.kind, 0)]
    it.append(lambda: own.advance(g, 1, fresh=True))
    it.append(lambda: set_m0(g, 0))
    it += [None] * g.opt.get("sgap", 3)
    it.append(lambda: g.wait(lg=("ra", 0)))
    for m in range(4):
        it.append(lambda m=m: own.dma(g, 0, m, ("a", 1)))
        it += [None] * (g.opt.get("sgap", 3) - 1)
    return it


def start_x(g, own):
    return [lambda j=j, h=h: x_read(g, own.kind, 0, j, h) for j in range(2) for h in range(2)]


def start_b(g, own):
    return [lambda i=i, h=h, q=q: tr_read(g, i, h, q, 0, ("rb", 0), own.kind) for i, h, q in part_reads(own.kind, 1)] + \
           [lambda: set_m0(g, 1)]


def run(items):
    for f in items:
        if f: f()


def mfma_phase(g, own, nxt, hname, xbar=None, first=False, extra=None):
    o = g.opt
    kind = own.kind
    extra = extra or {}

    def st(p):
        return (own, p) if p < 8 else ((nxt, 0) if (nxt and p == 8) else (None, 0))

    for kp in range(8):
        gaps = {m: [] for m in range(64)}
        late = (first and o.get("late0", 1))
        for jp in range(4):
            nkp, njp = (kp, jp + 1) if jp < 3 else (kp + 1, 0)
            if nkp > 7:
                continue
            slots = [16 * jp + n for n in ((0, 1, 2, 3) if (jp % 2 or (late and jp)) else (0, 1, 4, 5))]
            for n in range(4):
                j, h = 2 * njp + n // 2, n % 2
                def f(nkp=nkp, j=j, h=h, n=n, jp=jp):
                    if n == 0 and jp == 3 and xbar:
                        xbar(nkp)
                    x_read(g, kind, nkp, j, h)
                gaps[slots[n]].append(f)
            gaps[16 * jp + 15].append(lambda njp=njp: g.wait(regs=rs(xreg(2 * njp, 0), 16)))
        if kind == "P" and kp in (3, 7):
            k = "0x10000" if kp == 3 else "0xffff0000"
            gaps[40].append(lambda k=k: g(f"v_add_u32 v{vX0}, {k}, v{vX0}"))
            gaps[41].append(lambda k=k: g(f"v_add_u32 v{vX1}, {k}, v{vX1}"))
        s_, p_ = st(kp + 1)
        if s_:
            gaps[2].append(lambda kp=kp: g.wait(lg=("rb", kp)))
            for m, at in enumerate((3, 7, 11, 14)):
                gaps[at].append(lambda m=m, s_=s_, kp=kp: s_.dma(g, 1, m, ("b", kp + 1)))
        if kp < 7:
            a0 = 37 if late else 21
            adv, am0, aw, ad = (45, 46, 49, (50, 54, 58, 61)) if late else (29, 30, 34, (35, 39, 43, 46))
            if not o.get("novm"):
                gaps[a0 - 1].append(lambda kp=kp: g.wait(vm=("a", kp + 1)))
            for n, (i, h, q) in enumerate(part_reads(kind, 0)):
                gaps[a0 + n].append(lambda i=i, h=h, q=q, kp=kp: tr_read(g, i, h, q, kp + 1, ("ra", kp + 1), kind))
            s_, p_ = st(kp + 2)
            if s_:
                gaps[adv].append(lambda s_=s_, p_=p_: s_.advance(g, p_))
                gaps[am0].append(lambda: set_m0(g, 0))
                gaps[aw].append(lambda kp=kp: g.wait(lg=("ra", kp + 1)))
                for m in range(4):
                    gaps[ad[m]].append(lambda m=m, s_=s_, kp=kp: s_.dma(g, 0, m, ("a", kp + 2)))
                gaps[62].append(lambda: set_m0(g, 1))
            if not o.get("novm"):
                gaps[52].insert(0, lambda kp=kp: g.wait(vm=("b", kp + 1)))
            for n, (i, h, q) in enumerate(part_reads(kind, 1)):
                gaps[53 + n].insert(0, lambda i=i, h=h, q=q, kp=kp: tr_read(g, i, h, q, kp + 1, ("rb", kp + 1), kind))
        if kp == 7 and nxt:
            def fa():
                g.wait(vm=("a", 8), lg="sw")
                g.barrier(hname + "a")
            gaps[o.get("handa", 20) if not late else 36].append(fa)
            def fb():
                g.drain(vm=True, lg=True)
                g.barrier(hname + "b")
            gaps[o.get("handb", 50)].append(fb)
        if kp == 0 and o.get("prio", 1):
            gaps[o.get("prioat", 13)].append(lambda: g("s_setprio 2"))
        m = 0
        for jp in range(4):
            for (j, i) in chain_order(jp):
                for h in range(2):
                    mfma(g, ACC(i, j), wreg(i, h, kp, kind), xreg(j, h), kp == 0 and h == 0)
                    g.point(f"k{kp}g{m}")
                    for f in gaps[m]:
                        f()
                    if (kp, m) in extra:
                        extra[(kp, m)]()
                    m += 1


class Direct:
    def __init__(self, idx):
        self.idx, self.kind = idx, "PPPGG"[idx]

    def soff(self, g, kp, half):
        src = kp if self.kind == "P" else QORD[kp >> 1] * 2 + (kp & 1)
        g(f"s_mov_b32 s{sT0 + half}, {self.idx * 262144 + src * 8192 + half * 4096}")

    early7 = False
    merge = False

    def wr(self, i, h, kp):
        return VH + 8 * i + 4 * h if (self.merge and kp == 7) else DW(i, h, kp)

    def load(self, g, kp, f):
        if g.opt.get("nodma"):
            return
        d = self.wr(f >> 1, f & 1, kp)
        if g.opt.get("wskip") and 2 <= kp < 7 and (f % 2 or g.opt["wskip"] == 2):
            return
        g.vmem(f"buffer_load_dwordx4 {R(d)}, v{vS}, s[{sWP}:{sWP+3}], s{sT0 + (f >> 2)} offen offset:{(f & 3) * 1024} {g.opt.get('wpfl', 'sc1')}".rstrip(), rs(d))

    def start_w(self, g):
        it = [lambda: self.soff(g, 0, 0), lambda: self.soff(g, 0, 1)]
        for f in range(8):
            it += [lambda f=f: self.load(g, 0, f), None, None]
        return it + [lambda: self.soff(g, 1, 0), lambda: self.soff(g, 1, 1)]

    def start_x(self, g):
        return [lambda j=j, h=h: x_read(g, self.kind, 0, j, h, DX(j, h)) for j in range(2) for h in range(2)]


def direct_phase(g, own, xbar=None, extra=None, reset=False):
    g(f"; ---- phase {own.idx + 1}: matrix phase, weights straight into registers")
    o = g.opt
    kind = own.kind
    extra = extra or {}
    wat = [int(v) for v in str(o.get("wat", "2 5 10 13 18 21 26 29")).split()]
    g("s_setprio 1")
    seq = [(n // 8, n % 8) for n in range(64)]
    if own.merge:
        seq = seq[:48] + [(6 + n % 2, n // 2) for n in range(16)]
    for blk in range(8):
        gaps = {m: [] for m in range(64)}
        for t in range(8):
            n = blk * 8 + t + 2
            if n < 64:
                for h in range(2):
                    def f(n=n, h=h):
                        if h == 0 and xbar:
                            xbar(*seq[n])
                        if o.get("xskip") and n >= 6 and (n % 2 == 1 or o["xskip"] == 2):
                            return
                        x_read(g, kind, seq[n][0], seq[n][1], h, DX(n, h))
                    gaps[8 * t + int(str(o.get('xg', 'x01'))[1 + h])].append(f)
            if n - 1 < 64:
                r = rs(DX(n - 1, 0), 8)
                if seq[n - 1][1] == 0 and not o.get("novm"):
                    r = r + rs(own.wr(0, 0, seq[n - 1][0]), 16 if t == 7 else 32)
                gaps[8 * t + 7].append(lambda r=r: g.wait(regs=r))
        if not o.get("novm"):
            gaps[3].append(lambda blk=blk: g.wait(regs=rs(own.wr(2, 0, seq[8 * blk][0]), 16)))
        if kind == "P" and blk == 3:
            gaps[43].append(lambda: g(f"v_add_u32 v{vX0}, 0x10000, v{vX0}"))
            gaps[44].append(lambda: g(f"v_add_u32 v{vX1}, 0x10000, v{vX1}"))
        if reset and blk == 7:
            gaps[43].append(lambda: g(f"v_add_u32 v{vX0}, 0xffff0000, v{vX0}"))
            gaps[44].append(lambda: g(f"v_add_u32 v{vX1}, 0xffff0000, v{vX1}"))
        if blk < (6 if own.merge else 7):
            for f in range(8):
                gaps[wat[f]].append(lambda f=f, blk=blk: own.load(g, blk + 1, f))
        if own.merge and blk == 4 and not own.early7:
            gaps[30].append(lambda: own.soff(g, 7, 0))
            gaps[31].append(lambda: own.soff(g, 7, 1))
            for f in range(8):
                gaps[min(wat[f] + 32, 58)].append(lambda f=f: own.load(g, 7, f))
        if blk < (5 if own.merge else 6):
            gaps[59].append(lambda blk=blk: own.soff(g, blk + 2, 0))
            gaps[60].append(lambda blk=blk: own.soff(g, blk + 2, 1))
        if blk == 3:
            gaps[36].append(lambda: g("s_setprio 2"))
        m = 0
        g.point(f"b{own.idx}{blk}")
        for t in range(8):
            kp, j = seq[blk * 8 + t]
            for i in (range(4) if t % 2 == 0 else range(3, -1, -1)):
                for h in range(2):
                    if o.get("novm"):
                        g.vm = [(set(), tg) for _, tg in g.vm]
                    mfma(g, ACC(i, j), own.wr(i, h, kp), DX(blk * 8 + t, h), kp == 0 and h == 0)
                    for f in gaps[m]:
                        f()
                    if (blk, m) in extra:
                        extra[(blk, m)]()
                    m += 1


class Half:
    def __init__(self, half):
        self.half = half

    def wr(self, kp, i, h):
        base = 128 + 16 * kp if kp < 6 else ((96, 112), (0, 32))[self.half][kp - 6]
        return base + 8 * i + 4 * h

    def aq(self, j, i):
        return ((0, 16, 32, 48), (16, 48, 64, 80))[self.half][j >> 1] + 8 * (j & 1) + 4 * i

    def xr(self, n, h):
        n %= 6
        return (224 + 8 * n if n < 3 else (64, 96)[self.half] + 8 * (n - 3)) + 4 * h

    def loads(self, g, kp):
        src = QORD[kp >> 1] * 2 + (kp & 1)
        it = [lambda: g(f"s_add_u32 s{sT0}, s{sHo}, {4 * 262144 + self.half * 131072 + src * 8192}")]
        for f in range(4):
            d = self.wr(kp, f >> 1, f & 1)
            if not g.opt.get("nodma"):
                it.append(lambda d=d, f=f: g.vmem(f"buffer_load_dwordx4 {R(d)}, v{vS}, s[{sWP}:{sWP+3}], s{sT0} offen offset:{f * 1024} sc1", rs(d)))
        return it

    def seq(self):
        return [(kp, j) for kp in range(8) for j in range(8)] if self.half == 0 else [(kp, j) for j in range(8) for kp in range(8)]

    def xread(self, g, n, h):
        kp, j = self.seq()[n]
        x_read(g, "G", kp, j, h, self.xr(n, h))

    def start_x(self, g, lo, hi):
        return [lambda n=n, h=h: self.xread(g, n, h) for n in range(lo, hi) for h in range(2)]

    def phase(self, g, extra):
        seq = self.seq()
        g("s_setprio 1")
        m = 0
        for n, (kp, j) in enumerate(seq):
            if n % 16 == 0:
                g.point(f"H{self.half}{n // 16}")
            for t, i in enumerate((0, 1) if n % 2 == 0 else (1, 0)):
                for h in range(2):
                    mfma(g, self.aq(j, i), self.wr(kp, i, h), self.xr(n, h), kp == 0 and h == 0)
                    gp = 2 * t + h
                    if gp < 2 and n + 5 < 64:
                        self.xread(g, n + 5, gp)
                    if gp == 3 and n % 2 == 1 and n + 1 < 64:
                        r = rs(self.xr(n + 1, 0), 8) + rs(self.xr(n + 2, 0), 8)
                        for nn in (n + 1, n + 2):
                            r += rs(self.wr(seq[nn][0], 0, 0), 16)
                        g.wait(regs=r)
                    if m in extra:
                        extra[m]()
                    m += 1


def lane(g, v):
    g(f"v_mbcnt_lo_u32_b32 v{v}, -1, 0")
    g(f"v_mbcnt_hi_u32_b32 v{v}, -1, v{v}")


class Mixer:
    def __init__(self, g):
        self.g, self.q, self.every, self.n = g, [], 2, 0
        self.q2, self.n2 = [], 0
        self.q3, self.n3 = [], 0

    def __call__(self, s):
        if self.g.opt.get("al", 0) & 2 and s.startswith(("v_fma", "v_cvt_pk", "v_mov_b32_dpp", "v_cndmask_b32_dpp")):
            self.g(".p2align 3")
        self.g(s)
        self.n += 1
        self.n3 += 1
        if self.q3 and self.n3 % self.ev3 == 4:
            self.q3.pop(0)()
        if self.q2:
            self.n2 += 1
            if self.n2 >= self.g.opt.get("wdelay", 8):
                self.q2.pop(0)(); self.n2 = 0
        if self.q and self.n % self.every == 0:
            f = self.q.pop(0)
            if f: f()

    def flush(self):
        while self.q2:
            self.q2.pop(0)()
        self.n2 = 0
        while self.q:
            f = self.q.pop(0)
            if f: f()


def glu(e, pairs, scaled=False):
    if e.g.opt.get("noE"): return
    if not scaled:
        for a, b in pairs: e(f"v_mul_f32 v{b}, s{sC}, v{b}")
    for a, b in pairs: e(f"v_exp_f32 v{b}, v{b}")
    for a, b in pairs: e(f"v_fma_f32 v{b}, v{b}, s{sCi}, s{sCi}")
    for a, b in pairs: e(f"v_rcp_f32 v{b}, v{b}")
    for a, b in pairs: e(f"v_mul_f32 v{a}, v{a}, v{b}")


HFL = ["sc0 sc1"]
def halo_loads(ph):
    return [f"buffer_load_dwordx4 {R(VIMP + 4*ct)}, v{vG8}, s[{sWS}:{sWS+3}], s{sW128} offen offset:{ph*512 + ct*64} {HFL[0]}" for ct in range(2)]


def halo_check(g, ph):
    lab = f"L_poll{ph}"
    g(f"s_mov_b32 s{sT2}, {g.opt.get('spin', 4000000)}")
    g.wait(regs=rs(VIMP, 8))
    g(f"{lab}:")
    g(f"v_max3_u32 v{VTMP}, v{VIMP}, v{VIMP+1}, v{VIMP+2}")
    g(f"v_max3_u32 v{VTMP+1}, v{VIMP+3}, v{VIMP+4}, v{VIMP+5}")
    g(f"v_max3_u32 v{VTMP}, v{VTMP}, v{VIMP+6}, v{VIMP+7}")
    g(f"v_max_u32 v{VTMP}, v{VTMP}, v{VTMP+1}")
    g(f"v_cmp_eq_u32 vcc, -1, v{VTMP}")
    g(f"s_sub_u32 s{sT2}, s{sT2}, 1")
    g(f"s_cbranch_scc1 {lab}_ok")
    g(f"s_cbranch_vccz {lab}_ok")
    for t in halo_loads(ph):
        g(t)
    g("s_waitcnt vmcnt(0)")
    g(f"s_branch {lab}")
    g(f"{lab}_ok:")


def conv_mfma(ct, r, half):
    return f"v_mfma_f32_16x16x32_bf16 {R(YY(ct, r, 4*half))}, {R(AF(ct, r))}, {R(TP(ct, r, 2*half - 1))}, 0"


def e_phase(g, ph, dst, pre=(), after_tile=None, glu_tile=None, silu_tile=None, warm=(), tw=3, pre4=()):
    o = g.opt
    halo = o.get("halo", 1)
    noE = o.get("noE")
    skip = o.get("skip", 1)
    e = Mixer(g)
    prio = 0
    g("s_setprio 0")
    g(f"s_movk_i32 s{sT3}, {ph * 8192}")
    g("s_nop 5")
    el = [(ct, r) for ct in range(2) for r in range(4)]
    for ct, r in el:
        e.q.append(lambda ct=ct, r=r: g.vmem(
            f"buffer_load_dwordx4 {R(AF(ct, r))}, v{vM0}, s[{sDW}:{sDW+3}], s{sT3} offen offset:{ct*1024 + r*64} sc1", rs(AF(ct, r))))
    q0 = e.q; e.q = []
    e.q3 = list(warm); e.ev3 = 12 if len(e.q3) < 40 else 6
    e.every = 8
    def pack(q): return [f"v_cvt_pk_bf16_f32 v{TP(ct, r, q)}, v{ACC(ct, 2*q)+r}, v{ACC(ct, 2*q+1)+r}" for ct, r in el]
    for n_, j in enumerate((2, 3, 0, 1, 4, 5, 6, 7)):
        glu(e, [(ACC(ct, j) + r, ACC(2 + ct, j) + r) for ct in range(2) for r in range(4)], ph > 0 and o.get('psc', 0))
        if n_ == 1:
            for t in pack(1): e(t)
            if halo:
                assert not any(r for r, _ in g.vm)
                if skip:
                    g(f"s_cmp_eq_u32 s{sWE+2}, 0")
                    g(f"s_cbranch_scc1 L_noexp{ph}")
                for n, (ct, r) in enumerate(el):
                    g(f"v_min_u32 v{VEXP+n}, -2, v{TP(ct, r, 1)}")
                for ct in range(2):
                    g.vmem(f"buffer_store_dwordx4 {R(VEXP+4*ct)}, v{vEX}, s[{sWE}:{sWE+3}], s{sW128} offen offset:{ph*512 + ct*64} {HFL[0]}")
                g(f"L_noexp{ph}:")
            e.n = 0
            e.q = q0
        if glu_tile:
            glu_tile(e, n_)
    e.flush()
    if not noE:
        for t in pack(3): e(t)
        for ct, r in el:
            e(f"v_mov_b32_dpp v{TP(ct, r, -1)}, v{TP(ct, r, 3)} row_shr:1 row_mask:0xf bank_mask:0xf bound_ctrl:1")
        p1, p2 = pack(0), pack(2)
        fill = [t for n in range(8) for t in (p1[n], p2[n])]
        for t in fill[:4]: e(t)
        g.wait(regs=rs(192, 32))
        g(f"s_setprio {o.get('cprio', 3)}")
        for n, (ct, r) in enumerate(el):
            g(conv_mfma(ct, r, 0))
            for t in fill[2*n + 4:2*n + 6]: e(t)
            if n == 5: g("s_nop 0")
        g("s_setprio 0")
    if halo and o.get("ti", -1) < 0:
        assert not any(r for r, _ in g.vm)
        if skip:
            g(f"s_cmp_eq_u32 s{sWS+2}, 0")
            g(f"s_cbranch_scc1 L_noimp{ph}")
        for ct, t in enumerate(halo_loads(ph)):
            g.vmem(t, rs(VIMP + 4 * ct))
        g(f"L_noimp{ph}:")
    while e.q3:
        e.q3.pop(0)()
    ta = o.get("ta", 6)
    ti, tc = o.get("ti", -1), o.get("tc", 3)
    for j in range(8):
        if silu_tile:
            silu_tile(e, j)
        if j == tw and warm:
            g("s_waitcnt lgkmcnt(0)"); g.lg = []
        if j == ti:
            if halo:
                for ct, t in enumerate(halo_loads(ph)):
                    g.vmem(t, rs(VIMP + 4 * ct))
        if j == 4 and pre4:
            assert tc < 4
            e.q += list(pre4); e.every = o.get("p4ev", 8); e.n = 0
        if j == ta and pre4:
            g("s_setprio 1"); prio = 1
        elif j == ta:
            g("s_setprio 1"); prio = 1
            e.q += list(pre); e.every = 2; e.n = 0
        ys = [YY(ct, r, j) for ct, r in el]
        mm = []
        if j == tc and not noE:
            if halo and skip:
                g(f"s_mov_b64 vcc, 0")
                g(f"s_cmp_eq_u32 s{sWS+2}, 0")
                g(f"s_cbranch_scc1 L_nochk{ph}")
            if halo:
                halo_check(g, ph)
            g(f"s_mov_b32 vcc_lo, {0x80008000 if halo else 0}")
            g(f"s_mov_b32 vcc_hi, {0x80008000 if halo else 0}")
            g(f"L_nochk{ph}:")
            for n, (ct, r) in enumerate(el):
                e(f"v_cndmask_b32_dpp v{TP(ct, r, 4)}, v{TP(ct, r, 0)}, v{VIMP+n}, vcc row_shl:1 row_mask:0xf bank_mask:0xf bound_ctrl:1")
            mm = [conv_mfma(ct, r, 1) for ct, r in el]
            g(f"s_setprio {o.get('cprio', 3)}")
        if not noE:
            for n, y in enumerate(ys):
                if mm: g(mm[n])
                e(f"v_exp_f32 v{VTMP+n}, v{y}")
            if mm: g(f"s_setprio {prio}")
            for n, y in enumerate(ys): e(f"v_fma_f32 v{VTMP+n}, v{VTMP+n}, s{sC}, s{sC}")
            for n, y in enumerate(ys): e(f"v_rcp_f32 v{VTMP+n}, v{VTMP+n}")
            for n, y in enumerate(ys): e(f"v_mul_f32 v{y}, v{y}, v{VTMP+n}")
        for n in range(4): e(f"v_cvt_pk_bf16_f32 v{dst+4*j+n}, v{ys[2*n]}, v{ys[2*n+1]}")
        if after_tile:
            after_tile(e, j)
    e.flush()


vG0, vG1, vG2 = vM0, vM1, vEX


def outv_addr(g, t=144, half=None):
    lane(g, t)
    if half is None:
        g(f"s_lshl_b32 s{sT2}, s{sWv}, 7")
    else:
        g(f"s_add_u32 s{sT2}, s{sW64}, {512 + 256 * half}")
    g(f"v_bfe_u32 v{t+1}, v{t}, 1, 3")
    g(f"v_lshl_add_u32 v{vG0}, v{t+1}, 14, s{sT2}")
    g(f"v_bfe_u32 v{t+2}, v{t}, 4, 1")
    g(f"v_lshl_add_u32 v{vG0}, v{t+2}, 5, v{vG0}")
    g(f"v_lshrrev_b32 v{t+2}, 5, v{t}")
    g(f"v_lshl_add_u32 v{vG0}, v{t+2}, {6 if half is None else 10}, v{vG0}")
    g(f"v_and_b32 v{t+2}, 1, v{t}")
    g(f"v_lshl_add_u32 v{vG0}, v{t+2}, 4, v{vG0}")
    g(f"v_cmp_eq_u32 vcc, 0, v{t+1}")
    g(f"v_mov_b32 v{vG2}, {OOB}")
    g(f"v_add_u32 v{vG1}, 8192, v{vG0}")
    g(f"v_cndmask_b32 v{vG2}, v{vG0}, v{vG2}, vcc")
    g(f"s_movk_i32 s{sT3}, 4096")
    g(f"s_mov_b32 vcc_lo, 0x55555555")
    g(f"s_mov_b32 vcc_hi, 0x55555555")


def outv_items(g, j, n, fl, mode=2, inflight=None, Q=None):
    Q = Q or [ACC(i, j) for i in range(4)]
    def T(i, d): return Q[i >> 1] + 2 * (i & 1) + d
    it = []
    for i in range(4):
        for d in range(2):
            a = Q[i] + 2 * d
            it.append(f"v_cvt_pk_bf16_f32 v{T(i, d)}, v{a}, v{a+1}")
    if not g.opt.get("nsw", 1):
        for d in range(2):
            for i in (0, 2):
                it.append(f"v_permlane16_swap_b32 v{T(i, d)}, v{T(i+1, d)}")
        for d in range(2):
            for i in (0, 1):
                it.append(f"v_permlane32_swap_b32 v{T(i, d)}, v{T(i+2, d)}")
    dpp = "quad_perm:[1,0,3,2] row_mask:0xf bank_mask:0xf"
    so = "0" if j < 4 else f"s{sT3}"
    for hb in ((0, 1) if n % 2 == 0 else (1, 0)):
        S = Q[2 + hb]
        for k in ((0, 1, 2, 3) if g.opt.get('nsw', 1) else (0, 2, 1, 3)):
            it.append(f"v_cndmask_b32_dpp v{S+k}, v{Q[1-hb]+k}, v{Q[hb]+k}, vcc {dpp}")
        if hb == n % 2:
            it.append("s_not_b64 vcc, vcc")
        va = vG1 if hb else (vG2 if j < 2 else vG0)
        if inflight is not None:
            it.append(f"s_waitcnt vmcnt({inflight})")
        it.append(f"buffer_store_dwordx4 {R(S)}, v{va}, s[{sO}:{sO+3}], {so} offen offset:{(j % 4)*1024} {fl}".rstrip())
    if mode == 1: it = [t for t in it if not t.startswith("buffer")]
    if mode == 3: it = [t for t in it if t.startswith("buffer")]
    return [(lambda t=t: g.vmem(t) if t.startswith("buffer") else g(t)) for t in it]


def out_interleave(g, ex, merge, per, ntiles, fl, mode=2):
    pend = []
    step = 16 if merge else 8
    def f(m):
        if m % step == 7 and m >= step and m // step - 1 < ntiles:
            j = m // step - 1
            pend.extend(outv_items(g, j, j, fl, mode))
        for _ in range(per[m % len(per)]):
            if pend: pend.pop(0)()
    for m in range(8 * step):
        mm = 512 - 8 * step + m
        assert (mm // 64, mm % 64) not in ex
        ex[(mm // 64, mm % 64)] = (lambda m=m: f(m))
    return pend


def srd(g, d, lo, size):
    g(f"s_mov_b32 s{d}, s{lo}")
    g(f"s_mov_b32 s{d+1}, s{lo+1}")
    g(f"s_mov_b32 s{d+2}, {size}")
    g(f"s_mov_b32 s{d+3}, 0x20000")


def g_addr(g):
    g(f"v_subrev_u32 v{vX1}, s{sSb}, v{vS}")
    g(f"v_add_u32 v{vX0}, 98304, v{vX1}")
    g(f"v_add_u32 v{vX1}, 32768, v{vX1}")


def build(opt):
    g = Gen(opt)
    HFL[0] = opt.get("hfl", "sc0 sc1")
    halo = opt.get("halo", 1)
    xfl = opt.get("xflag", "nt")
    win = opt.get("win", 2)
    rbar = opt.get("rbar", 15)
    stamps = opt.get("stamps")
    kx, kw1, kdw, kw2, kout, kdbg, kws = KA, KA + 2, KA + 4, KA + 6, KA + 8, KA + 10, KA + 12
    g.l.append(HEAD.rstrip("\n"))
    g("; @launch grid=(256,1,1) block=(512,1,1) lds=163840")
    g.l.append(DOC.strip("\n"))
    g('.amdgcn_target "amdgcn-amd-amdhsa--gfx950"')
    g(".text")
    g(f".globl {KN}_kernel")
    g(".p2align 8")
    g(f".type {KN}_kernel,@function")
    g(f"{KN}_kernel:")
    g("s_cmp_ge_u32 s2, 256")
    g("s_cbranch_scc1 L_end")
    g(f"s_load_dwordx8 s[{KA}:{KA+7}], s[0:1], 0")
    g(f"s_load_dwordx4 s[{KA+8}:{KA+11}], s[0:1], 32")
    g(f"s_load_dwordx2 s[{KA+12}:{KA+13}], s[0:1], 48")
    if stamps:
        g("s_memrealtime s[74:75]")
        g(f"s_mem{'real' if stamps == 3 else ''}time s[100:101]")
    g(f"v_readfirstlane_b32 s{sWv}, v0")
    g(f"s_mov_b32 s{sWg}, s2")
    g(f"s_and_b32 s3, s2, 7")
    g(f"s_lshr_b32 s{sT0}, s2, 3")
    g(f"s_lshl_b32 s{sT1}, s3, 5")
    g(f"s_add_u32 s{sTile}, s{sT0}, s{sT1}")
    g(f"s_mul_i32 s3, s3, {4000 * 1024}")
    g(f"s_bitcmp1_b32 s2, 0")
    g(f"s_cselect_b32 s{sT2}, 32768, 0")
    g(f"s_add_u32 s3, s3, s{sT2}")
    g(f"s_lshr_b32 s{sT2}, s{sT2}, 4")
    g(f"s_sub_u32 s{sRows}, {126 * 1024}, s{sT2}")
    g(f"s_mul_i32 s2, s{sT0}, s{sRows}")
    g(f"s_add_u32 s2, s2, s3")
    g(f"s_and_b32 s{sTau}, s{sTile}, 127")
    g(f"s_lshr_b32 s{sWv}, s{sWv}, 6")
    if opt.get("swap", 1):
        g(f"s_xor_b32 s{sWv}, s{sWv}, 4")
    g(f"s_and_b32 s{sW}, s{sWv}, 3")
    g("v_and_b32 v0, 63, v0")
    if opt.get("stag"):
        g(f"s_bfe_u32 s{sT0}, s{sWg}, {0x10000 * opt.get('stagb', 1) + 3}")
        g("L_stag:")
        g(f"s_sub_u32 s{sT0}, s{sT0}, 1")
        g("s_cbranch_scc1 L_stag_e")
        g(f"s_sleep {opt['stag']}")
        g("s_branch L_stag")
        g("L_stag_e:")
    g(f"s_cmp_lt_u32 s{sWv}, 4")
    g("s_cbranch_scc1 L_startA")

    P = [Stream("P", ph) for ph in range(2)]
    P1, P2, P3, GA, GB = (Direct(n) for n in range(5))
    d1 = opt.get('d1', 1)

    g(f"v_lshrrev_b32 v12, 3, v0")
    g(f"v_and_b32 v13, 7, v0")
    g(f"v_lshrrev_b32 v14, 4, v0")
    g(f"v_xor_b32 v14, v14, v13")
    g(f"s_lshl_b32 s{sT3}, s{sW}, 11")
    g(f"v_lshl_add_u32 v14, v14, 4, s{sT3}")
    g(f"v_lshl_add_u32 v16, v12, 13, v14")
    g(f"v_xor_b32 v17, 0x10040, v16")
    g(f"v_add_u32 v19, 1024, v17")
    g(f"s_cmp_eq_u32 s{sTau}, 0")
    g(f"s_cselect_b32 s{sT3}, 1024, 0")
    g(f"v_cmp_gt_u32 vcc, s{sT3}, v16")
    g(f"v_mov_b32 v15, {OOB}")
    g(f"s_cmp_eq_u32 s{sTau}, 127")
    g(f"v_cndmask_b32 v16, v16, v15, vcc")
    g(f"s_mov_b32 s{sX+3}, 0x20000")
    g(f"s_cselect_b32 s{sX+2}, {126*1024}, s{sX+3}")
    g(f"v_add_u32 v18, 1024, v16")
    g(f"s_lshl_b32 s{sT3}, s{sW}, 12")
    g("s_waitcnt lgkmcnt(0)")
    g(f"s_add_u32 s{sX}, s{kx}, s2")
    g(f"s_addc_u32 s{sX+1}, s{kx+1}, 0")
    g(f"s_sub_u32 s{sX}, s{sX}, 2048")
    g(f"s_subb_u32 s{sX+1}, s{sX+1}, 0")
    if opt.get("hd") == 1: g.stamp(8)

    def d1_addr():
        g(f"v_lshrrev_b32 v1, 5, v0")
        g(f"v_lshlrev_b32 v1, 1, v1")
        g(f"v_and_b32 v2, 3, v0")
        g(f"v_xor_b32 v1, v1, v2")
        g(f"s_lshl_b32 s{sW64}, s{sW}, 6")
        g(f"v_lshl_add_u32 v1, v1, 4, s{sW64}")
        g(f"v_lshrrev_b32 v3, 2, v0")
        g(f"v_lshl_add_u32 v{vD1}, v3, 11, v1")
        g(f"s_lshl_b32 s{sRing}, s{sW}, 13")
        g(f"s_add_u32 s{sRing}, s{sRing}, 131072")
        g(f"s_add_u32 s{sRing+1}, s{sRing}, 4096")
        for f in set_kconst(g, "P"): f()

    def ct_srd():
        g(f"s_lshl_b32 s{sT0}, s{sW}, 11")
        g(f"s_add_u32 s{sT0}, s{sT0}, {CTOFF}")
        g(f"s_add_u32 s{sDW}, s{sWq}, s{sT0}")
        g(f"s_addc_u32 s{sDW+1}, s{sWq+1}, 0")
        g(f"s_mov_b32 s{sDW+2}, 32768")
        g(f"s_mov_b32 s{sDW+3}, 0x20000")

    def common(role):
        srd(g, sW2, kw2, 524288)
        g(f"s_add_u32 s{sO}, s{kout}, s2")
        g(f"s_addc_u32 s{sO+1}, s{kout+1}, 0")
        g(f"s_sub_u32 s{sO}, s{sO}, 2048")
        g(f"s_subb_u32 s{sO+1}, s{sO+1}, 0")
        g(f"s_add_u32 s{sO+2}, s{sRows}, 2048")
        g(f"s_mov_b32 s{sO+3}, 0x20000")
        srd(g, sDBG, kdbg, 256)
        g(f"s_lshl_b32 s{sT0}, s{sTile}, 11")
        g(f"s_add_u32 s{sWS}, s{kws}, s{sT0}")
        g(f"s_addc_u32 s{sWS+1}, s{kws+1}, 0")
        g(f"s_sub_u32 s{sWE}, s{sWS}, 2048")
        g(f"s_subb_u32 s{sWE+1}, s{sWS+1}, 0")
        g(f"s_bitcmp1_b32 s{sTile}, 5")
        g(f"s_cselect_b32 s{sWS+2}, 0, 2048")
        g(f"s_sub_u32 s{sT0}, s{sTile}, 1")
        g(f"s_bitcmp1_b32 s{sT0}, 5")
        g(f"s_cselect_b32 s{sWE+2}, 0, 2048")
        g(f"s_mov_b32 s{sWS+3}, 0x20000")
        g(f"s_mov_b32 s{sWE+3}, 0x20000")
        if stamps:
            g(f"s_mov_b64 s[40:41], s[{kws}:{kws+1}]")
        g(f"s_mov_b32 s{sC}, 0xbfb8aa3b")
        g(f"s_mov_b32 s{sCi}, 0xbf317218")
        g(f"s_lshl_b32 s{sW128}, s{sW}, 7")
        g(f"v_lshrrev_b32 v3, 4, v0")
        g(f"v_lshlrev_b32 v4, 1, v3")
        g(f"v_lshlrev_b32 v{vG8}, 4, v3")
        g(f"v_bfe_u32 v5, v0, 2, 2")
        g(f"v_xor_b32 v24, v5, v3")
        g(f"v_lshlrev_b32 v24, 24, v24")
        g(f"v_lshl_add_u32 v24, v5, 8, v24")
        g(f"v_lshl_add_u32 v{vM0}, v2, 4, v24")
        g(f"v_and_b32 v25, 15, v0")
        g(f"v_lshl_add_u32 v{vEX}, v25, 24, v{vG8}")
        g(f"s_lshr_b32 s{sT0}, s{sW}, 1")
        g(f"s_lshl_b32 s{sT0}, s{sT0}, 14")
        g(f"s_and_b32 s{sT1}, s{sW}, 1")
        g(f"s_lshl_b32 s{sT1}, s{sT1}, 10")
        g(f"s_add_u32 s{sSb}, s{sT0}, s{sT1}")
        g(f"s_add_u32 s{sSb}, s{sSb}, {32768 if role == 0 else 98304}")
        g(f"v_lshl_add_u32 v{vS}, v0, 4, s{sSb}")
        g(f"s_add_u32 s{sWq}, s{kws}, {WPOFF}")
        g(f"s_addc_u32 s{sWq+1}, s{kws+1}, 0")
        g(f"s_lshl_b32 s{sT0}, s{sW}, 16")
        g(f"s_add_u32 s{sWP}, s{sWq}, s{sT0}")
        g(f"s_addc_u32 s{sWP+1}, s{sWq+1}, 0")
        g(f"s_sub_u32 s{sWP}, s{sWP}, s{sSb}")
        g(f"s_subb_u32 s{sWP+1}, s{sWP+1}, 0")
        g(f"s_lshr_b32 s{sT1}, s{sW}, 1")
        g(f"s_lshl_b32 s{sT1}, s{sT1}, 16")
        g(f"s_sub_u32 s{sHo}, s{sT1}, s{sT0}")
        g(f"s_and_b32 s{sT1}, s{sW}, 1")
        g(f"s_lshl_b32 s{sT1}, s{sT1}, 12")
        g(f"s_add_u32 s{sHo}, s{sHo}, s{sT1}")
        g(f"s_mov_b32 s{sWP+2}, 0x200000")
        g(f"s_mov_b32 s{sWP+3}, 0x20000")
        g(f"v_bfe_u32 v4, v0, 4, 1")
        g(f"v_bfe_u32 v5, v0, 2, 2")
        g(f"v_lshl_add_u32 v{vW0}, v3, 9, s{sRing}")
        g(f"v_lshl_add_u32 v{vW0}, v5, 6, v{vW0}")
        g(f"v_lshl_add_u32 v{vW0}, v4, 5, v{vW0}")
        g(f"v_lshl_add_u32 v{vW0}, v2, 3, v{vW0}")
        g(f"v_xor_b32 v{vW1}, 32, v{vW0}")
        g(f"v_and_b32 v4, 15, v0")
        g(f"v_lshrrev_b32 v5, 1, v4")
        g(f"v_xor_b32 v5, v5, v3")
        g(f"v_lshlrev_b32 v5, 4, v5")
        g(f"v_lshl_add_u32 v{vX0}, v4, 7, v5")
        g(f"v_xor_b32 v{vX1}, 64, v{vX0}")
        if stamps:
            g("s_mov_b64 s[76:77], s[100:101]")


    sWB = 0
    sub = (0, 64)
    def wbase(key):
        if key < 2 - d1:
            g(f"s_lshl_b32 s{sT2}, s{sSl}, 13")
            g(f"s_add_u32 s{sT2}, s{sT2}, {key * 256}")
            ptr = sW1
        else:
            g(f"s_lshl_b32 s{sT2}, s{sSl}, 11")
            g(f"s_add_u32 s{sT2}, s{sT2}, {(key - 1) * 262144}")
            ptr = sWq
        g(f"s_add_u32 s{sWB}, s{ptr}, s{sT2}")
        g(f"s_addc_u32 s{sWB+1}, s{ptr+1}, 0")
    def wlines(key):
        if key < 2 - d1:
            return [(key, n * 1024 + e * 64) for n in range(8) for e in range(4)]
        return [(key, n * 64) for n in range(32)]
    def swarm(lines):
        cur = None
        for n, (key, of) in enumerate(lines):
            if key != cur:
                wbase(key); cur = key
            if n % 14 == 0:
                g(f"s_waitcnt lgkmcnt({15 - min(14, len(lines) - n)})")
            g(f"s_load_dword s3, s[{sWB}:{sWB+1}], {of}")
    later = wlines(1)
    nb = 8
    def e_warm(key, n0=0):
        if str(key) not in str(opt.get("wk", "5")):
            return []
        def ld(n, of):
            if n + n0 >= 14:
                g("s_waitcnt lgkmcnt(13)")
            g(f"s_load_dword s3, s[{sWB}:{sWB+1}], {of}")
        return [lambda: wbase(key)] + [(lambda n=n, of=of: ld(n, of)) for n, (_, of) in enumerate(wlines(key))]

    def x_issue(kp):
        g(f"s_movk_i32 s{sT0}, {kp*128}")
        for jj in range(2):
            for hh in range(2):
                g(f"s_add_u32 m0, s{sT3}, {kp*16384 + jj*2048 + hh*1024}")
                g("s_nop 0")
                g.vmem(f"buffer_load_dwordx4 v{16+2*jj+hh}, s[{sX}:{sX+3}], s{sT0} offen {xfl} lds".replace("  ", " "), tag=("x", kp))
    x_issue(0)
    if opt.get("hd") == 2:
        g("s_waitcnt vmcnt(0)"); g.stamp(8)
    srd(g, sW1, kw1, 1048576)
    g(f"s_getpc_b64 s[{sCode}:{sCode+1}]")
    g("L_pc:")
    g(f"s_mov_b32 s{sCode+2}, L_code_end-L_pc")
    g(f"s_mov_b32 s{sCode+3}, 0x20000")
    g(f"s_lshr_b32 s{sT1}, s{sWg}, 3")
    g(f"s_lshl2_add_u32 s{sSl}, s{sT1}, s{sW}")
    g(f"v_lshrrev_b32 v6, 1, v0")
    g(f"v_lshlrev_b32 v6, 10, v6")
    g(f"v_and_b32 v7, 1, v0")
    g(f"v_lshl_add_u32 v6, v7, 7, v6")
    g(f"v_lshrrev_b32 v7, 4, v0")
    g(f"v_lshl_add_u32 v6, v7, 28, v6")
    def warm_w1(ph, dst):
        g(f"s_lshl_b32 s{sT2}, s{sSl}, 13")
        if ph:
            g(f"s_add_u32 s{sT2}, s{sT2}, {ph * 256}")
        g.vmem(f"buffer_load_dword v{dst}, v6, s[{sW1}:{sW1+3}], s{sT2} offen {opt.get('wfl', '')}", [dst])
    if opt.get("warm0", 1) == 1:
        warm_w1(0, 8)
    g(f"s_lshl_b32 s{sT2}, s{sSl}, 7")
    g(f"v_lshlrev_b32 v7, 14, v0")
    g.vmem(f"buffer_load_dword v9, v7, s[{sCode}:{sCode+3}], s{sT2} offen", [9])
    if opt.get("warm0", 1) == 2:
        swarm(wlines(0)[12 * len(sub):])
    if opt.get("hd") in (2, 3):
        g("s_waitcnt vmcnt(0)"); g.stamp(9)
    d1_addr()
    common(1)
    assert d1 and opt.get("nsw", 1)
    oddp = opt.get("oddp", 1)
    vm0 = list(g.vm)
    if oddp:
        g(f"s_bitcmp1_b32 s{sWg}, 0")
        g("s_cbranch_scc1 L_oddB")
    full = opt.get("tmode", 2) == 2
    sE, sS1, sD1, sS2, sD2, sOff = 64, 65, 42, 43, sSl + 1, 3
    BIG = 0x40000000
    if opt.get("emap", 0):
        g(f"s_lshr_b32 s{sT0}, s{sWg}, 3")
        g(f"s_bfe_u32 s{sT1}, s{sWg}, 0x10001")
        g(f"s_lshl1_add_u32 s{sE}, s{sT0}, s{sT1}")
        g(f"s_bfe_u32 s{sT1}, s{sWg}, 0x10002")
        g(f"s_lshl_b32 s{sT1}, s{sT1}, 6")
        g(f"s_add_u32 s{sE}, s{sE}, s{sT1}")
    else:
        g(f"s_lshr_b32 s{sE}, s{sWg}, 1")
    g(f"s_and_b32 s{sOff}, s{sWg}, 1")
    if opt.get("tpar"):
        g(f"s_xor_b32 s{sOff}, s{sOff}, 1")
    g(f"s_lshl_b32 s{sOff}, s{sOff}, 30")
    g(f"s_and_b32 s{sT0}, s{sE}, 15")
    g(f"s_lshr_b32 s{sT1}, s{sT0}, 1")
    g(f"s_lshl_b32 s{sD1}, s{sT1}, 13")
    g(f"s_and_b32 s{sT1}, s{sT0}, 1")
    g(f"s_lshl_b32 s{sT1}, s{sT1}, 10")
    g(f"s_add_u32 s{sD1}, s{sD1}, s{sT1}")
    g(f"s_lshl_b32 s{sS2}, s{sT0}, 15")
    g(f"s_lshl_b32 s{sT2}, s{sW}, 13")
    g(f"s_add_u32 s{sS2}, s{sS2}, s{sT2}")
    g(f"s_lshl_b32 s{sT2}, s{sW}, 11")
    g(f"s_add_u32 s{sD2}, s{sD1}, s{sT2}")
    g(f"s_lshr_b32 s{sT1}, s{sE}, 4")
    g(f"s_lshl_b32 s{sT2}, s{sT1}, 16")
    g(f"s_add_u32 s{sD2}, s{sD2}, s{sT2}")
    g(f"s_add_u32 s{sD2}, s{sD2}, {3 * 262144}")
    g(f"s_lshl_b32 s{sT2}, s{sT1}, 7")
    g(f"s_add_u32 s{sS2}, s{sS2}, s{sT2}")
    g(f"s_lshl_b32 s{sS1}, s{sT0}, 16")
    g(f"s_and_b32 s{sT1}, s{sW}, 1")
    g(f"s_lshl_b32 s{sT2}, s{sT1}, 15")
    g(f"s_add_u32 s{sS1}, s{sS1}, s{sT2}")
    g(f"s_lshl_b32 s{sT2}, s{sT1}, 11")
    g(f"s_add_u32 s{sD1}, s{sD1}, s{sT2}")
    g(f"s_lshr_b32 s{sT1}, s{sW}, 1")
    g(f"s_lshl_b32 s{sT2}, s{sT1}, 13")
    g(f"s_add_u32 s{sS1}, s{sS1}, s{sT2}")
    g(f"s_lshl_b32 s{sT2}, s{sT1}, 16")
    g(f"s_add_u32 s{sD1}, s{sD1}, s{sT2}")
    g(f"s_bfe_u32 s{sT1}, s{sE}, 0x10004")
    g(f"s_lshl_b32 s{sT2}, s{sT1}, 10")
    g(f"s_add_u32 s{sS1}, s{sS1}, s{sT2}")
    g(f"s_lshl_b32 s{sT2}, s{sT1}, 12")
    g(f"s_add_u32 s{sD1}, s{sD1}, s{sT2}")
    g(f"s_lshr_b32 s{sT1}, s{sE}, 5")
    g(f"s_lshl_b32 s{sT2}, s{sT1}, 7")
    g(f"s_add_u32 s{sS1}, s{sS1}, s{sT2}")
    g(f"s_add_u32 s{sS1}, s{sS1}, 256")
    g(f"s_lshl_b32 s{sT2}, s{sT1}, 17")
    g(f"s_add_u32 s{sD1}, s{sD1}, s{sT2}")
    g(f"s_cmp_lt_u32 s{sE}, 64")
    g(f"s_cselect_b32 s{sT1}, s{sOff}, {BIG}")
    g(f"s_xor_b32 s{sT2}, s{sOff}, {0 if full else BIG}")
    g(f"s_add_u32 s{sT0}, s{sOff}, 256")
    g(f"v_lshlrev_b32 v27, 4, v13")
    g(f"v_lshl_add_u32 v44, v12, 10, v27")
    g(f"v_add_u32 v44, s{sT2}, v44")
    g(f"v_and_b32 v28, 3, v12")
    g(f"v_lshrrev_b32 v26, 2, v12")
    g(f"v_lshl_add_u32 v26, v26, 3, v28")
    g(f"v_lshl_add_u32 v26, v26, 11, v27")
    g(f"v_add_u32 v42, s{sT0}, v26")
    g(f"v_add_u32 v43, s{sT1}, v26")
    g(f"s_add_u32 s{sT0}, s{sOff}, 262144")
    g(f"v_lshl_add_u32 v45, v0, 4, s{sT0}")
    g(f"v_lshl_add_u32 v46, v0, 4, s{sT1}")
    g(f"v_lshl_add_u32 v47, v0, 4, s{sT2}")
    g(f"v_lshrrev_b32 v26, 2, v0")
    g(f"v_lshlrev_b32 v26, 7, v26")
    g(f"s_lshl_b32 s{sT1}, s{sW}, 3")
    g(f"s_add_u32 s{sT1}, s{sT1}, {SCR}")
    g(f"v_lshl_add_u32 v27, v2, 5, v26")
    g(f"v_add_u32 v27, s{sT1}, v27")
    g(f"s_lshl_b32 s{sT1}, s{sW}, 5")
    g(f"s_add_u32 s{sT1}, s{sT1}, {SCR}")
    g(f"v_lshl_add_u32 v26, v2, 3, v26")
    g(f"v_add_u32 v26, s{sT1}, v26")
    srd(g, sDW, kdw, 5120)
    g(f"s_lshl_b32 s{sT1}, s{sW}, 28")
    g(f"s_add_u32 s{sT1}, s{sT1}, s{sOff}")
    g(f"s_lshl3_add_u32 s{sT2}, s{sE}, s{sT1}")
    g(f"v_bfe_u32 v37, v0, 2, 2")
    g(f"v_lshlrev_b32 v38, 1, v2")
    g(f"v_sub_u32 v37, v38, v37")
    g(f"v_lshl_add_u32 v37, v37, 10, s{sT2}")
    g(f"v_lshl_add_u32 v37, v3, 1, v37")
    g(f"v_add_u32 v38, 1024, v37")
    g(f"s_lshl_b32 s{sT2}, s{sE}, 8")
    g(f"s_add_u32 s{sT1}, s{sT1}, s{sT2}")
    g(f"s_add_u32 s{sT1}, s{sT1}, {CTOFF}")
    g(f"v_lshl_add_u32 v41, v0, 2, s{sT1}")
    def task_load():
        g(f"s_lshl_b32 s{sT1}, s{sW}, 10")
        g(f"s_add_u32 m0, s{sT1}, {SCR}")
        g.vmem(f"buffer_load_ushort v48, v37, s[{sDW}:{sDW+3}], 0 offen", [48], tag="task")
        g.vmem(f"buffer_load_dwordx4 v42, s[{sW1}:{sW1+3}], s{sS1} offen nt lds", tag="task")
        g(f"s_add_u32 m0, m0, 4096")
        g.vmem(f"buffer_load_ushort v49, v38, s[{sDW}:{sDW+3}], 0 offen", [49], tag="task")
        g.vmem(f"buffer_load_dwordx4 v43, s[{sW1}:{sW1+3}], s{sS1} offen nt lds", tag="task")
        g(f"s_add_u32 m0, m0, 4096")
        ct_srd()
        g.vmem(f"buffer_load_dwordx4 v44, s[{sW2}:{sW2+3}], s{sS2} offen nt lds", tag="task")
        srd(g, sW2, sWq, 0x148000)
    tk = opt.get("tk", 1)
    if tk == 1:
        task_load()
    assert rbar and win == 2
    def w_first():
        P[0].advance(g, 0)
        for ab in range(2):
            set_m0(g, ab)
            g("s_nop 0")
            for m in range(4):
                P[0].dma(g, ab, m, ("x", 0))
    wA = opt.get("wA", 2)
    if wA:
        g.barrier("w0")
    else:
        w_first()
    for kp in range(1, win):
        x_issue(kp)
    g.wait(vm=("x", 0))
    g.barrier("x0")
    g("s_branch L_roleB")
    vmB = list(g.vm)
    if oddp:
        assert full and wA and tk == 1 and opt.get("ak", 2) == 2
        g.vm, g.bars = vm0, []
        g("L_oddB:")
        ct_srd()
        g.barrier("w0")
        x_issue(1)
        for kp in range(3):
            g.wait(vm=("x", kp))
            g.barrier(f"x{kp}")
            if kp < 2:
                g.barrier(f"r{kp}")
                x_issue(kp + 2)
        odd_state = ([t for _, t in g.vm], list(g.bars))
        g("s_branch L_noann")
    g.vm = []; g.bars = []

    g("L_startA:")
    d1_addr()
    g("s_waitcnt lgkmcnt(0)")
    if opt.get("tlb", 0):
        g(f"s_add_u32 s{sO}, s{kout}, s2")
        g(f"s_addc_u32 s{sO+1}, s{kout+1}, 0")
        for n, (k, off) in enumerate(((kw1, 0), (kdw, 0), (kw2, 0), (kws, 0x80000), (sO, 0))):
            g(f"s_load_dword s3, s[{k}:{k+1}], {off}")
    srd(g, sW1, kw1, 1048576)
    g(f"s_lshr_b32 s{sT1}, s{sWg}, 3")
    g(f"s_lshl2_add_u32 s{sSl}, s{sT1}, s{sW}")
    if opt.get("warm0", 1) == 2:
        swarm(wlines(0)[:12 * len(sub)])
    if wA == 2:
        w_first()
    common(0)
    ct_srd()
    if wA == 1:
        w_first()
    if stamps == 4:
        g(f"s_add_u32 s4, s40, {STAMP_OFF}\ns_addc_u32 s5, s41, 0\ns_mov_b32 s6, 0x100000\ns_mov_b32 s7, 0x20000")
        g(f"s_lshl_b32 s42, s{sWg}, 3\ns_add_u32 s42, s42, s{sWv}\ns_lshl_b32 s42, s42, 7")
        g("v_mov_b32 v8, s74\nv_mov_b32 v9, s75\nv_mov_b32 v10, s74\nv_mov_b32 v11, s75\nv_and_b32 v12, 1, v0\nv_lshrrev_b32 v13, 1, v0\nv_lshlrev_b32 v12, 9, v12\nv_lshl_add_u32 v12, v13, 24, v12")
        g.vmem("buffer_store_dwordx4 v[8:11], v12, s[4:7], s42 offen sc0 sc1")
    if wA:
        g.barrier("w0")
        g.drain(vm=True)
        g("s_waitcnt lgkmcnt(0)")
    g.stamp(8)
    g.barrier("x0")
    g.stamp(9)
    it = start_a(g, P[0])
    run(it[:8] + start_x(g, P[0]) + start_b(g, P[0])[:8])
    run(it[8:10]); g("s_nop 0"); run(it[10:] + start_b(g, P[0])[8:])
    ex = {(kp, rbar): (lambda kp=kp: g.barrier(f"r{kp}")) for kp in range(8 - win)} if rbar else {}
    g.stamp(1)
    if d1:
        def h0():
            g.wait(lg=("rb", 7))
            g.barrier("h0")
        ex[(7, opt.get("h0g", 45))] = h0
    mfma_phase(g, P[0], None if d1 else P[1], "h0", xbar=lambda kp: g.barrier(f"x{kp}"), first=True, extra=ex)
    g.stamp(2)
    def sw(reg, off, va=vS):
        return lambda: g.ds(f"ds_write_b128 v{va}, {R(reg)} offset:{off}", tag="sw")
    e_phase(g, 0, VH, pre=P2.start_w(g) + P2.start_x(g), warm=e_warm(2))
    if not d1:
        g.barrier("h1")
    g.stamp(3)
    direct_phase(g, P2)
    g.stamp(4)
    e_phase(g, 2, 0, pre=GA.start_w(g), warm=e_warm(4) + (e_warm(5, 14 if e_warm(4) else 0) if opt.get('w5', 2) == 2 else []))
    g_addr(g)
    outv_addr(g, 64)
    g.barrier("h3")
    nb_ = opt.get("burst", 0)
    if nb_ >= 8:
        run([sw(4 * j, 32768 + j * 2048) for j in range(8)] + GA.start_x(g) + [sw(VH + 4 * j, j * 2048) for j in range(nb_ - 8)])
    else:
        run([sw(0, 32768), sw(4, 32768 + 2048)] + GA.start_x(g) + [sw(8, 32768 + 4096)])
    g.stamp(5)
    yl = [int(v) for v in str(opt.get("yl", "4 6 7")).split()]
    GA.merge = len(yl) > 1
    def xbarA(kp, j):
        if kp == 2 and j == 0:
            g.wait(lg="sw")
            g.barrier("V")
        if kp == 6 and (j == 0 or j - 1 in yl):
            g.barrier(f"Y{min(v for v in yl if v >= j)}")
    ex = {(0, 8 * (j - 3) + 4): sw(4 * j, 32768 + j * 2048) for j in range(3, 8)} if nb_ < 8 else {}
    fr = ((0, 44), (0, 52), (1, 4), (1, 12), (1, 20), (1, 28), (1, 34), (1, 38))
    ex.update({fr[j]: sw(VH + 4 * j, j * 2048) for j in range(max(nb_ - 8, 0), 8)})
    na = opt.get("na", 0) if GA.merge else 0
    pend = out_interleave(g, ex, True, [int(c) for c in str(opt.get("opera", 2))], na, opt.get("stA", "nt")) if na else []
    split = opt.get("split", 0)
    HB, HA = Half(0), Half(1)
    if split:
        assert GA.merge and not na
        for n, f in enumerate(HA.loads(g, 4) + HA.loads(g, 5)):
            ex[(6, 8 * (n // 2) + 3 + 2 * (n % 2))] = f
    direct_phase(g, GA, xbar=xbarA, extra=ex)
    g.stamp(6)
    g("s_setprio 0")
    g("s_nop 6")
    run(pend)
    zg = [int(v) for v in str(opt.get("zg", "2 2 2 2")).split() if int(v)]
    j = na
    assert na + sum(zg) <= 8
    for n, cnt in enumerate(zg):
        for jj in range(j, j + cnt):
            run(outv_items(g, jj, jj, opt.get("stA", "nt"), 1))
        g.barrier(f"Z{n}")
        for jj in range(j, j + cnt):
            run(outv_items(g, jj, jj, opt.get("stA", "nt"), 3))
        j += cnt
    for jj in range(j, 8):
        if opt.get("outA", 2): run(outv_items(g, jj, jj, opt.get("stA", "nt"), opt.get("outA", 2), None if split else opt.get("infl", 1)))
        if split and jj < 6:
            run(HA.loads(g, (0, 1, 2, 3, 6, 7)[jj]))
    if split:
        g("s_nop 0")
        outv_addr(g, 16, 1)
        run(HA.start_x(g, 0, 5))
        g.stamp(8)
        ex, pend = {}, []
        def f(m):
            if m % 64 == 7 and m > 63:
                j = 2 * (m // 64 - 1)
                pend.extend(outv_items(g, j, j // 2, opt.get("stH", "sc1"), Q=[HA.aq(j + q // 2, q % 2) for q in range(4)]))
            if m % 4 >= 2:
                for _ in range(opt.get("hper", 2)):
                    if pend: pend.pop(0)()
        HA.phase(g, {m: (lambda m=m: f(m)) for m in range(256)})
        assert not pend
        g.stamp(9)
        g("s_nop 7")
        run(outv_items(g, 6, 3, opt.get("stH", "sc1"), Q=[HA.aq(6 + q // 2, q % 2) for q in range(4)]))
    g.stamp(7)
    barsA = g.bars
    g("s_branch L_fin")

    g.lg, g.vm, g.bars = [], vmB, ["w0", "x0"] if wA else ["x0"]
    g("L_roleB:")
    def task_read():
        assert not any(t == "task" for _, t in g.vm)
        for n in range(3):
            g(f"ds_read_b64_tr_b16 v[{28+4*n}:{29+4*n}], v{26 + n // 2} offset:{4096*n}")
            g(f"ds_read_b64_tr_b16 v[{30+4*n}:{31+4*n}], v{26 + n // 2} offset:{4096*n + 2048}")
        g(f"v_lshl_or_b32 v48, v49, 16, v48")
        g("s_waitcnt lgkmcnt(0)")
    def task_store():
        if opt.get("psc", 0):
            g(f"s_bitcmp1_b32 s{sE}, 4")
            g(f"s_cselect_b32 s{sT1}, s{sC}, 1.0")
            for r in range(28, 36):
                g(f"v_lshlrev_b32 v50, 16, v{r}")
                g(f"v_and_b32 v51, 0xffff0000, v{r}")
                g(f"v_mul_f32 v50, s{sT1}, v50")
                g(f"v_mul_f32 v51, s{sT1}, v51")
                g(f"v_cvt_pk_bf16_f32 v{r}, v50, v51")
        g.vmem(f"buffer_store_dword v48, v41, s[{sW2}:{sW2+3}], 0 offen sc0 sc1", tag="clr")
        for n in range(3):
            g.vmem(f"buffer_store_dwordx4 {R(28+4*n)}, v{45+n}, s[{sW2}:{sW2+3}], s{(sD1, sD1, sD2)[n]} offen sc0 sc1", tag="clr")
    if tk == 2 and opt.get("tpre", 1):
        task_load()
    g.barrier("r0")
    if tk == 2 and not opt.get("tpre", 1):
        task_load()
    x_issue(win)
    g(f"s_and_b32 s{sGrp}, s{sTile}, 0xfc")
    g(f"s_lshl_b32 s{sT1}, s{sW}, 9")
    g(f"v_lshlrev_b32 v21, 3, v0")
    g(f"v_mov_b32 v22, -1")
    g(f"v_mov_b32 v23, -1")
    g.vmem(f"buffer_store_dwordx2 v[22:23], v21, s[{sWS}:{sWS+3}], s{sT1} offen {opt.get('tfl', 'sc0 sc1')}", tag="clr")
    g.stamp(1)
    def ready():
        g(f"s_mov_b32 s{sT2}, {opt.get('spin', 4000000)}")
        g.wait(regs=[22])
        g.point("rdy_")
        if opt.get("p1", 1):
            assert pk < 7 and "1" not in str(opt.get("wk", "5"))
            g(f"s_cmp_lg_u32 s{sW}, 0")
            g("s_cbranch_scc1 L_rdy_ok")
        g("L_rdy:")
        g(f"v_cmp_lt_u32 vcc, v22, v23")
        g(f"s_sub_u32 s{sT2}, s{sT2}, 1")
        g("s_cbranch_scc1 L_rdy_ok")
        g("s_cbranch_vccz L_rdy_ok")
        g(f"buffer_load_dword v22, v21, s[{sDBG}:{sDBG+3}], 0 offen sc0 sc1")
        g("s_waitcnt vmcnt(0)")
        g("s_branch L_rdy")
        g("L_rdy_ok:")
        g.point("rdy")
    pk = opt.get("pk", 6) if d1 else 7
    ak = opt.get("ak", 2)
    for kp in range(1, 8):
        g.wait(vm=("x", kp))
        if kp == ak:
            g.wait(vm="clr")
        g.barrier(f"x{kp}")
        if kp in (3, 7) and not opt.get("hd"):
            g.stamp({0: 1, 3: 8, 7: 9}[kp])
        if kp == tk:
            task_read()
            task_store()
        if kp == ak:
            assert not any(t == "clr" for _, t in g.vm)
            assert full
            g(f"s_and_b32 s{sT1}, s{sWg}, 1")
            g(f"s_or_b32 s{sT1}, s{sT1}, s{sW}")
            g("s_cbranch_scc1 L_noann")
            g(f"s_and_b32 s{sT1}, s{sTile}, 3")
            g(f"s_lshl_b32 s{sT1}, 1, s{sT1}")
            if "a" not in str(opt.get("abl", "")):
                g(f"s_atomic_or s{sT1}, s[{sDBG}:{sDBG+1}], s{sGrp}")
            g("L_noann:")
            if oddp:
                assert odd_state == ([t for _, t in g.vm], g.bars), (odd_state, g.vm, g.bars)
        if kp + win < 8:
            g.barrier(f"r{kp}")
        if kp == pk - 1:
            g(f"v_bfe_u32 v23, v0, 3, 1")
            g(f"v_add_u32 v23, -1, v23")
            g(f"v_and_b32 v23, 15, v23")
            g(f"s_lshl_b32 s{sT2}, s{sW}, {20 if opt.get('p1', 1) else 32}")
            g(f"v_lshlrev_b32 v21, 2, v0") if not opt.get("p1", 1) else g(f"v_lshl_add_u32 v21, v0, 2, s{sT2}")
            g.vmem(f"buffer_load_dword v22, v21, s[{sDBG}:{sDBG+3}], 0 offen sc0 sc1", [22])
        if kp + win < 8:
            x_issue(kp + win)
        if kp == pk:
            ready()
        if "1" in str(opt.get("wk", "5")) or not d1:
            if d1:
                nb = -(-32 // (8 - pk))
                if kp >= pk: swarm(later[(kp - pk) * nb:(kp - pk + 1) * nb])
            elif 2 <= kp < 6:
                swarm(later[(kp - 2) * nb:(kp - 1) * nb])
    g.drain(vm=True)
    def idle_start(name, own):
        run(start_x(g, own))
        g.barrier(name + "a")
        run(start_a(g, own))
        g.barrier(name + "b")
        g("s_setprio 1")
        run(start_b(g, own))
    if d1:
        run(P1.start_w(g))
        g("s_waitcnt lgkmcnt(0)")
        run(P1.start_x(g))
        g.barrier("h0")
        g.stamp(2)
        direct_phase(g, P1, reset=True)
    else:
        g("s_waitcnt lgkmcnt(0)")
        idle_start("h0", P[1])
        g.stamp(2)
        def h1():
            g.wait(lg=("rb", 7))
            g.barrier("h1")
        mfma_phase(g, P[1], None, None, extra={(7, opt.get("h1g", 20)): h1})
    g.stamp(3)
    e_phase(g, 1, 0, pre=P3.start_w(g) + P3.start_x(g), warm=e_warm(3), after_tile=lambda e, j: e.q2.append(sw(4 * j, 32768 + j * 2048)))
    g.wait(lg="sw")
    g.stamp(4)
    def h3():
        assert not any(t == "sw" for _, t in g.lg)
        g.barrier("h3")
    ex = {(7, opt.get("h3g", 30)): h3}
    if split:
        for n, f in enumerate(HB.loads(g, 0) + HB.loads(g, 1)):
            ex[(7, 8 * (n // 2) + 3 + 2 * (n % 2))] = f
    direct_phase(g, P3, extra=ex)
    g.stamp(5)
    def vB(e, j):
        if j == opt.get("vtile", 4):
            g.barrier("V")
            g_addr(g)
    def yB(e, j):
        e.q2.append(sw(4 * j, j * 2048))
        if j in yl:
            def f():
                g.wait(lg="sw")
                g.barrier(f"Y{j}")
            e.q2 += [lambda: None] * opt.get("ydel", 2) + [f]
    if split:
        np4 = opt.get("np4", 2)
        pre4 = [f for kp in range(2, 2 + np4) for f in HB.loads(g, kp)] + HB.start_x(g, 0, 3)
        e_phase(g, 3, 0, pre4=pre4, glu_tile=vB, after_tile=yB, tw=0)
        run(HB.start_x(g, 3, 5) + [f for kp in range(2 + np4, 8) for f in HB.loads(g, kp)])
        outv_addr(g, 88, 0)
        g.stamp(6)
        HB.phase(g, {opt.get("hbp", 66): lambda: g("s_setprio 2")})
        g.stamp(7)
        g("s_setprio 0")
        g("s_nop 6")
        for jp in range(4):
            run(outv_items(g, 2 * jp, jp, opt.get("stH", "sc1"), inflight=opt.get("inflB"), Q=[HB.aq(2 * jp + q // 2, q % 2) for q in range(4)]))
    else:
        e_phase(g, 3, 0, pre=GB.start_w(g) + GB.start_x(g), glu_tile=vB,
                warm=e_warm(5) if opt.get('w5', 2) == 3 else [], after_tile=yB, tw=0)
        outv_addr(g)
        GB.merge = bool(opt.get("merge", 1))
        if GB.merge and opt.get("early7", 1):
            GB.early7 = True
            GB.soff(g, 7, 0); GB.soff(g, 7, 1)
            for f in range(8): GB.load(g, 7, f)
            GB.soff(g, 1, 0); GB.soff(g, 1, 1)
        g.stamp(6)
        ex = {}
        for n in range(len(zg)):
            ex[(n, opt.get("zat", 30))] = (lambda n=n: g.barrier(f"Z{n}"))
        pend = out_interleave(g, ex, GB.merge, [int(c) for c in str(opt.get("oper", 2 if GB.merge else 4))], 7, opt.get("stB", "nt"), opt.get("outB", 2))
        direct_phase(g, GB, extra=ex)
        g.stamp(7)
        if len(pend) < 8:
            g("s_nop 7")
        run(pend)
        run(outv_items(g, 7, 7, opt.get("stB", "nt"), opt.get("outB", 2)))
    assert g.bars == barsA, (g.bars, barsA)
    g("L_fin:")
    if stamps and stamps != 4:
        g("s_waitcnt vmcnt(0)")
        g("s_memrealtime s[98:99]")
        g(f"s_mem{'real' if stamps == 3 else ''}time s[100:101]")
        g(f"s_add_u32 s4, s40, {STAMP_OFF}\ns_addc_u32 s5, s41, 0\ns_mov_b32 s6, 0x100000\ns_mov_b32 s7, 0x20000")
        g(f"s_lshl_b32 s8, s{sWg}, 3\ns_add_u32 s8, s8, s{sWv}\ns_lshl_b32 s8, s8, 7")
        g("s_waitcnt lgkmcnt(0)")
        g("s_mov_b64 exec, 1")
        g("v_mov_b32 v4, 0")
        g("s_getreg_b32 s10, hwreg(HW_REG_XCC_ID)\ns_mov_b32 s11, 0")
        order = [74, 98, 76, 100] + [76 + 2 * n for n in range(1, 10)] + [10]
        for n, s in enumerate(order):
            g(f"v_mov_b32 v0, s{s}\nv_mov_b32 v1, s{s+1}")
            g(f"buffer_store_dwordx2 v[0:1], v4, s[4:7], s8 offen offset:{8*n}")
            g("s_nop 1")
    g("L_end:")
    g("s_endpgm")
    g("L_code_end:")
    g('.section .rodata,"a"')
    g(".p2align 6")
    g(f".amdhsa_kernel {KN}_kernel")
    g.l += ["  .amdhsa_next_free_vgpr 256", "  .amdhsa_next_free_sgpr 102", "  .amdhsa_accum_offset 256",
            "  .amdhsa_group_segment_fixed_size 0", "  .amdhsa_kernarg_size 56", "  .amdhsa_user_sgpr_count 2",
            "  .amdhsa_user_sgpr_kernarg_segment_ptr 1", "  .amdhsa_system_sgpr_workgroup_id_x 1",
            f"  .amdhsa_float_denorm_mode_32 {opt.get('dn', 3)}"]
    g(".end_amdhsa_kernel")
    t = g.text()
    if stamps and opt.get("probe", 1):
        t = t.replace("; @launch grid=(256,1,1) block=(512,1,1) lds=163840",
                      f"; @launch kernel={KN}_kernel grid=(256,1,1) block=(512,1,1) lds=163840\n; @launch kernel=probe_kernel grid=(1,1,1) block=(64,1,1) lds=0")
        a = [".p2align 8", ".globl probe_kernel", ".type probe_kernel,@function", "probe_kernel:",
             "s_memrealtime s[8:9]", "s_load_dwordx2 s[4:5], s[0:1], 48", "s_waitcnt lgkmcnt(0)",
             f"s_add_u32 s4, s4, {STAMP_OFF}", "s_addc_u32 s5, s5, 0", "s_mov_b32 s6, 0x100000", "s_mov_b32 s7, 0x20000",
             "v_mov_b32 v2, s8", "v_mov_b32 v3, s9", "v_mov_b32 v1, 120", "buffer_store_dwordx2 v[2:3], v1, s[4:7], 0 offen", "s_endpgm"]
        t = t.replace('.section .rodata,"a"', "\n".join(a) + '\n.section .rodata,"a"')
        t += ".p2align 6\n.amdhsa_kernel probe_kernel\n  .amdhsa_next_free_vgpr 16\n  .amdhsa_next_free_sgpr 32\n  .amdhsa_accum_offset 16\n" \
             "  .amdhsa_group_segment_fixed_size 0\n  .amdhsa_kernarg_size 56\n  .amdhsa_user_sgpr_count 2\n" \
             "  .amdhsa_user_sgpr_kernarg_segment_ptr 1\n  .amdhsa_system_sgpr_workgroup_id_x 1\n.end_amdhsa_kernel\n"
    return t


def parse(args):
    opt = {}
    for a in args:
        k, v = a.split("=", 1)
        try:
            v = int(v)
        except ValueError:
            v = v.replace("+", " ")
        opt[k] = v
    return opt


if __name__ == "__main__":
    open(sys.argv[1], "w").write(build(parse(sys.argv[2:])))
```

```python
import sys

KN = "standalone__conformer_conv_module__speech"
STAMP_OFF = 255 * 1024 * 1024

HEAD = """; Kernarg layout for this problem (56 bytes, ptrs only, base s[0:1]):
;   offset   0: d_in[0] x  shape=(2, 16000, 512) dtype=bfloat16 strides=(16384000, 1024, 2) contiguous=True
;   offset   8: d_in[1] w_pw1  shape=(512, 1024) dtype=bfloat16 strides=(2048, 2) contiguous=True
;   offset  16: d_in[2] dw  shape=(5, 512) dtype=bfloat16 strides=(1024, 2) contiguous=True
;   offset  24: d_in[3] w_pw2  shape=(512, 512) dtype=bfloat16 strides=(1024, 2) contiguous=True
; Override launch geometry by editing the next line (default: block=256,
"""

DOC = """
;
; Fused  out = silu(dwconv5(glu(x @ W1))) @ W2.   One workgroup per CU, 126 or 124 output rows (128-row tile, row u = 8*lane15 + tile).
;   phase   0          1          2          3          4           5
; x lives in LDS (128 KB, LDS-DMA, swizzled); silu output fragments replace it for GEMM2.
; Phase 0 transposes W1 through a small LDS ring (ds_read_b64_tr_b16).  Meanwhile every even workgroup re-lays a slice of the
; The depthwise conv is one MFMA per 4 outputs (banded weights x time-packed GLU output).  The two GLU rows a 126-row tile lacks
; come from the next tile's workgroup through a mailbox in d_ws that is emptied at the start of each launch.
"""

def ACC(i, j): return 4 * (i * 8 + j)
VH = 128
VWX, VWY, VWZ = 160, 176, 192
VXR = 208
vDc, vW0, vW1, vD1 = 240, 242, 243, 244
def DW(i, h, p): return 160 + 32 * (p % 2) + 8 * i + 4 * h
def DX(n, h): return 224 + 8 * (n % 3) + 4 * h
vX0, vX1, vS = 248, 249, 250
vG8, vM0, vM1, vEX = 251, 252, 253, 254
def AF(ct, r): return 192 + 16 * ct + 4 * r
def TP(ct, r, q):
    n = 4 * ct + r
    return (160 + 6 * n if n < 5 else 224 + 6 * (n - 5)) + q + 1
def YY(ct, r, j): return 64 + 32 * ct + 8 * r + j
VEXP = 192
VTMP, VIMP = 32, 40
CTOFF = 0x140000
sX, sW1, sW2, sO, sDW, sWS, sDBG, sWE = 4, 8, 12, 16, 20, 24, 28, 32
sW64, sHo, sW128, sSb = 36, 37, 38, 39
sRows = 50
sRing = 44
sT0, sT1, sT2, sT3 = 46, 47, 48, 49
sC, sCi = 50, 51
sWv, sW, sTile, sTau, sWg, sGrp = 52, 53, 54, 55, 56, 57
sWP = 60
sWq = 58
sK = 66
sSl = 96
sCode = 16
KA = 76
QORD = (1, 2, 0, 3)
WPOFF = 1 << 20

OOB = 0x7f000000
SCR = 7 * 16384


class Gen:
    def __init__(self, opt):
        self.l = []
        self.opt = opt
        self.lg = []
        self.vm = []
        self.bars = []

    def __call__(self, s=""):
        for line in s.split("\n"):
            self.l.append(line if line.endswith(":") or line.startswith(".") or line.startswith(";") else "    " + line)

    def text(self):
        return "\n".join(self.l) + "\n"

    def ds(self, text, regs=(), tag=None):
        if self.opt.get("nosw") and tag == "sw":
            return
        if len(self.lg) >= 15:
            self("s_waitcnt lgkmcnt(11)"); self.lg = self.lg[-11:]
        self(text); self.lg.append((set(regs), tag))

    def vmem(self, text, regs=(), tag=None):
        abl = str(self.opt.get("abl", ""))
        if ("s" in abl and tag == "clr" and "dwordx4" in text) or ("c" in abl and tag == "clr" and "dwordx2" in text) or \
           ("p" in abl and regs == [22]) or ("d" in abl and regs == [10]) or ("t" in abl and tag == "task"):
            return
        self(text); self.vm.append((set(regs), tag))

    def _idx(self, q, regs, tag):
        idx = -1
        for n, (r, t) in enumerate(q):
            if (regs and (r & set(regs))) or (tag is not None and t == tag):
                idx = n
        return idx

    def wait(self, regs=(), lg=None, vm=None):
        parts = []
        i = self._idx(self.vm, regs, vm)
        if i >= 0:
            n = min(len(self.vm) - 1 - i, 63)
            parts.append(f"vmcnt({n})"); self.vm = self.vm[len(self.vm) - n:] if n else []
        i = self._idx(self.lg, regs, lg)
        if i >= 0:
            n = min(len(self.lg) - 1 - i, 15)
            parts.append(f"lgkmcnt({n})"); self.lg = self.lg[len(self.lg) - n:] if n else []
        if parts:
            self("s_waitcnt " + " ".join(parts))

    def drain(self, vm=False, lg=False):
        parts = []
        if vm and self.vm:
            parts.append("vmcnt(0)"); self.vm = []
        if lg and self.lg:
            parts.append("lgkmcnt(0)"); self.lg = []
        if parts:
            self("s_waitcnt " + " ".join(parts))

    def barrier(self, name):
        self.point(name + "_")
        self(f"s_barrier"); self.bars.append(name)
        self.point(name)

    def point(self, name):
        pts = self.opt.get("pts")
        if pts and name in pts.split():
            n = pts.split().index(name) + 1
            self(f"s_mem{'real' if self.opt['stamps'] == 3 else ''}time s[{76+2*n}:{77+2*n}]")

    def stamp(self, n):
        if self.opt.get("pts"):
            return self.point(f"s{n}")
        if self.opt.get("stamps") in (1, 3):
            self(f"s_mem{'real' if self.opt['stamps'] == 3 else ''}time s[{76+2*n}:{77+2*n}]")
            self("s_waitcnt lgkmcnt(0)")
            self.lg = []


def R(a, n=4): return f"v[{a}:{a+n-1}]"
def rs(a, n=4): return list(range(a, a + n))


def wreg(i, h, p, kind="P"):
    if i < 2:
        return (VWX if p % 2 == 0 else VWY) + 8 * i + 4 * h
    return VWZ + 8 * (i - 2) + 4 * h


def xreg(j, h): return VXR + 8 * (j % 4) + 4 * h


def kconst(kind, ab, m):
    return 16 * m * 2048 + ab * 1024 - m * 1024


def set_kconst(g, kind):
    return [lambda ab=ab, m=m: g(f"s_mov_b32 s{sK + 4*ab + m}, {kconst(kind, ab, m)}") for ab in range(2) for m in range(4)]


class Stream:
    def __init__(self, kind, arg):
        self.kind, self.arg = kind, arg

    def advance(self, g, kp, fresh=False):
        g(f"v_add_u32 v{vDc}, {kp * 131072 + self.arg * 256}, v{vD1}")

    def dma(self, g, ab, m, tag, fl=""):
        if g.opt.get("nodma"):
            return
        srd = sW1
        g.vmem(f"buffer_load_dwordx4 v{vDc}, s[{srd}:{srd+3}], s{sK + 4*ab + m} offen offset:{m*1024} {fl} lds", tag=tag)


def set_m0(g, ab):
    g(f"s_mov_b32 m0, s{sRing + ab}")


def tr_read(g, i, h, q, p, tag, kind="P"):
    d = wreg(i, h, p, kind) + 2 * q
    off, base = (i >> 1) * 4096 + h * 2048 + q * 256, vW0 + (i & 1)
    g.ds(f"ds_read_b64_tr_b16 {R(d, 2)}, v{base} offset:{off}", rs(d, 2), tag)


def part_reads(kind, ab):
    return [(i, h, q) for i in ((0, 1) if ab == 0 else (3, 2)) for h in range(2) for q in range(2)]


def x_read(g, kind, kp, j, h, d=None):
    if d is None:
        d = xreg(j, h)
    if kind == "P":
        off, base = (kp * 8 + j) * 2048 % 65536, vX0 + h
    else:
        off = (1 - (kp >> 2)) * 32768 + (kp & 1) * 16384 + j * 2048 + h * 1024
        base = vX0 + (0, 1, 1, 0)[kp >> 1]
    g.ds(f"ds_read_b128 {R(d)}, v{base} offset:{off}", rs(d))


def chain_order(jp):
    j0, j1 = 2 * jp, 2 * jp + 1
    if jp % 2 == 0:
        return [(j0, 0), (j0, 1), (j1, 1), (j1, 0), (j1, 2), (j1, 3), (j0, 3), (j0, 2)]
    return [(j0, 2), (j0, 3), (j1, 3), (j1, 2), (j1, 0), (j1, 1), (j0, 1), (j0, 0)]


def mfma(g, acc, A, B, first):
    g.wait(regs=rs(A) + rs(B))
    c = "0" if first else R(acc)
    if g.opt.get("al", 0) & 1:
        g(".p2align 3")
    if g.opt.get("al", 0) & 4 and not g.l[-1].lstrip().startswith(("v_mfma", "ds_", "buffer_")):
        g(".p2align 3"); g("s_nop 0")
    g(f"v_mfma_f32_16x16x32_bf16 {R(acc)}, {R(A)}, {R(B)}, {c}")


def start_a(g, own):
    it = [lambda i=i, h=h, q=q: tr_read(g, i, h, q, 0, ("ra", 0), own.kind) for i, h, q in part_reads(own.kind, 0)]
    it.append(lambda: own.advance(g, 1, fresh=True))
    it.append(lambda: set_m0(g, 0))
    it += [None] * g.opt.get("sgap", 3)
    it.append(lambda: g.wait(lg=("ra", 0)))
    for m in range(4):
        it.append(lambda m=m: own.dma(g, 0, m, ("a", 1)))
        it += [None] * (g.opt.get("sgap", 3) - 1)
    return it


def start_x(g, own):
    return [lambda j=j, h=h: x_read(g, own.kind, 0, j, h) for j in range(2) for h in range(2)]


def start_b(g, own):
    return [lambda i=i, h=h, q=q: tr_read(g, i, h, q, 0, ("rb", 0), own.kind) for i, h, q in part_reads(own.kind, 1)] + \
           [lambda: set_m0(g, 1)]


def run(items):
    for f in items:
        if f: f()


def mfma_phase(g, own, nxt, hname, xbar=None, first=False, extra=None):
    o = g.opt
    kind = own.kind
    extra = extra or {}

    def st(p):
        return (own, p) if p < 8 else ((nxt, 0) if (nxt and p == 8) else (None, 0))

    for kp in range(8):
        gaps = {m: [] for m in range(64)}
        late = (first and o.get("late0", 1))
        for jp in range(4):
            nkp, njp = (kp, jp + 1) if jp < 3 else (kp + 1, 0)
            if nkp > 7:
                continue
            slots = [16 * jp + n for n in ((0, 1, 2, 3) if (jp % 2 or (late and jp)) else (0, 1, 4, 5))]
            for n in range(4):
                j, h = 2 * njp + n // 2, n % 2
                def f(nkp=nkp, j=j, h=h, n=n, jp=jp):
                    if n == 0 and jp == 3 and xbar:
                        xbar(nkp)
                    x_read(g, kind, nkp, j, h)
                gaps[slots[n]].append(f)
            gaps[16 * jp + 15].append(lambda njp=njp: g.wait(regs=rs(xreg(2 * njp, 0), 16)))
        if kind == "P" and kp in (3, 7):
            k = "0x10000" if kp == 3 else "0xffff0000"
            gaps[40].append(lambda k=k: g(f"v_add_u32 v{vX0}, {k}, v{vX0}"))
            gaps[41].append(lambda k=k: g(f"v_add_u32 v{vX1}, {k}, v{vX1}"))
        s_, p_ = st(kp + 1)
        if s_:
            gaps[2].append(lambda kp=kp: g.wait(lg=("rb", kp)))
            for m, at in enumerate((3, 7, 11, 14)):
                gaps[at].append(lambda m=m, s_=s_, kp=kp: s_.dma(g, 1, m, ("b", kp + 1)))
        if kp < 7:
            a0 = 37 if late else 21
            adv, am0, aw, ad = (45, 46, 49, (50, 54, 58, 61)) if late else (29, 30, 34, (35, 39, 43, 46))
            if not o.get("novm"):
                gaps[a0 - 1].append(lambda kp=kp: g.wait(vm=("a", kp + 1)))
            for n, (i, h, q) in enumerate(part_reads(kind, 0)):
                gaps[a0 + n].append(lambda i=i, h=h, q=q, kp=kp: tr_read(g, i, h, q, kp + 1, ("ra", kp + 1), kind))
            s_, p_ = st(kp + 2)
            if s_:
                gaps[adv].append(lambda s_=s_, p_=p_: s_.advance(g, p_))
                gaps[am0].append(lambda: set_m0(g, 0))
                gaps[aw].append(lambda kp=kp: g.wait(lg=("ra", kp + 1)))
                for m in range(4):
                    gaps[ad[m]].append(lambda m=m, s_=s_, kp=kp: s_.dma(g, 0, m, ("a", kp + 2)))
                gaps[62].append(lambda: set_m0(g, 1))
            if not o.get("novm"):
                gaps[52].insert(0, lambda kp=kp: g.wait(vm=("b", kp + 1)))
            for n, (i, h, q) in enumerate(part_reads(kind, 1)):
                gaps[53 + n].insert(0, lambda i=i, h=h, q=q, kp=kp: tr_read(g, i, h, q, kp + 1, ("rb", kp + 1), kind))
        if kp == 7 and nxt:
            def fa():
                g.wait(vm=("a", 8), lg="sw")
                g.barrier(hname + "a")
            gaps[o.get("handa", 20) if not late else 36].append(fa)
            def fb():
                g.drain(vm=True, lg=True)
                g.barrier(hname + "b")
            gaps[o.get("handb", 50)].append(fb)
        if kp == 0 and o.get("prio", 1):
            gaps[o.get("prioat", 13)].append(lambda: g("s_setprio 2"))
        m = 0
        for jp in range(4):
            for (j, i) in chain_order(jp):
                for h in range(2):
                    mfma(g, ACC(i, j), wreg(i, h, kp, kind), xreg(j, h), kp == 0 and h == 0)
                    g.point(f"k{kp}g{m}")
                    for f in gaps[m]:
                        f()
                    if (kp, m) in extra:
                        extra[(kp, m)]()
                    m += 1


class Direct:
    def __init__(self, idx):
        self.idx, self.kind = idx, "PPPGG"[idx]

    def soff(self, g, kp, half):
        src = kp if self.kind == "P" else QORD[kp >> 1] * 2 + (kp & 1)
        g(f"s_mov_b32 s{sT0 + half}, {self.idx * 262144 + src * 8192 + half * 4096}")

    early7 = False
    merge = False

    def seq(self):
        seq = [(n // 8, n % 8) for n in range(64)]
        if self.merge == 1:
            seq = seq[:48] + [(6 + n % 2, n // 2) for n in range(16)]
        if self.merge == 2:
            seq = seq[:40] + [(5 + 2 * (n % 2), n // 2) for n in range(8)] + [(6, j) for j in range(4)] + \
                  [(5 + n % 3, 4 + n // 3) for n in range(12)]
        if self.merge == 3:
            seq = seq[:40] + [(5 + 2 * (n % 2), n // 2) for n in range(6)] + [(6, j) for j in range(3)] + \
                  [(5 + n % 3, 3 + n // 3) for n in range(15)]
        assert sorted(seq) == [(n // 8, n % 8) for n in range(64)]
        return seq

    def wr(self, i, h, kp):
        return VH + 8 * i + 4 * h if (self.merge and kp == 7) else DW(i, h, kp)

    def load(self, g, kp, f):
        if g.opt.get("nodma"):
            return
        d = self.wr(f >> 1, f & 1, kp)
        if g.opt.get("wskip") and 2 <= kp < 7 and (f % 2 or g.opt["wskip"] == 2):
            return
        g.vmem(f"buffer_load_dwordx4 {R(d)}, v{vS}, s[{sWP}:{sWP+3}], s{sT0 + (f >> 2)} offen offset:{(f & 3) * 1024} {g.opt.get('wpfl', 'sc1')}".rstrip(), rs(d))

    def start_w(self, g):
        it = [lambda: self.soff(g, 0, 0), lambda: self.soff(g, 0, 1)]
        for f in range(8):
            it += [lambda f=f: self.load(g, 0, f), None, None]
        return it + [lambda: self.soff(g, 1, 0), lambda: self.soff(g, 1, 1)]

    def start_x(self, g):
        return [lambda j=j, h=h: x_read(g, self.kind, 0, j, h, DX(j, h)) for j in range(2) for h in range(2)]


def direct_phase(g, own, xbar=None, extra=None, reset=False):
    g(f"; ---- phase {own.idx + 1}: matrix phase, weights straight into registers")
    o = g.opt
    kind = own.kind
    extra = extra or {}
    wat = [int(v) for v in str(o.get("wat", "2 5 10 13 18 21 26 29")).split()]
    g("s_setprio 1")
    seq = own.seq()
    for blk in range(8):
        gaps = {m: [] for m in range(64)}
        for t in range(8):
            n = blk * 8 + t + 2
            if n < 64:
                for h in range(2):
                    def f(n=n, h=h):
                        if h == 0 and xbar:
                            xbar(*seq[n])
                        if o.get("xskip") and n >= 6 and (n % 2 == 1 or o["xskip"] == 2):
                            return
                        x_read(g, kind, seq[n][0], seq[n][1], h, DX(n, h))
                    gaps[8 * t + int(str(o.get('xg', 'x01'))[1 + h])].append(f)
            if n - 1 < 64:
                r = rs(DX(n - 1, 0), 8)
                if seq[n - 1][1] == 0 and not o.get("novm"):
                    r = r + rs(own.wr(0, 0, seq[n - 1][0]), 16 if t == 7 else 32)
                gaps[8 * t + 7].append(lambda r=r: g.wait(regs=r))
        if not o.get("novm"):
            gaps[3].append(lambda blk=blk: g.wait(regs=rs(own.wr(2, 0, seq[8 * blk][0]), 16)))
        if kind == "P" and blk == 3:
            gaps[43].append(lambda: g(f"v_add_u32 v{vX0}, 0x10000, v{vX0}"))
            gaps[44].append(lambda: g(f"v_add_u32 v{vX1}, 0x10000, v{vX1}"))
        if reset and blk == 7:
            gaps[43].append(lambda: g(f"v_add_u32 v{vX0}, 0xffff0000, v{vX0}"))
            gaps[44].append(lambda: g(f"v_add_u32 v{vX1}, 0xffff0000, v{vX1}"))
        if blk < (6 if own.merge else 7):
            for f in range(8):
                at = wat[f] if not (own.merge == 3 and blk == 5) else (2, 3, 4, 5, 6, 10, 11, 12)[f]
                gaps[at].append(lambda f=f, blk=blk: own.load(g, blk + 1, f))
        if own.merge and blk == 4 and not own.early7:
            gaps[30].append(lambda: own.soff(g, 7, 0))
            gaps[31].append(lambda: own.soff(g, 7, 1))
            for f in range(8):
                gaps[min(wat[f] + 32, 58)].append(lambda f=f: own.load(g, 7, f))
        if blk < (5 if own.merge else 6):
            gaps[59].append(lambda blk=blk: own.soff(g, blk + 2, 0))
            gaps[60].append(lambda blk=blk: own.soff(g, blk + 2, 1))
        if blk == 3:
            gaps[36].append(lambda: g("s_setprio 2"))
        m = 0
        g.point(f"b{own.idx}{blk}")
        for t in range(8):
            kp, j = seq[blk * 8 + t]
            for i in (range(4) if t % 2 == 0 else range(3, -1, -1)):
                for h in range(2):
                    if o.get("novm"):
                        g.vm = [(set(), tg) for _, tg in g.vm]
                    mfma(g, ACC(i, j), own.wr(i, h, kp), DX(blk * 8 + t, h), kp == 0 and h == 0)
                    for f in gaps[m]:
                        f()
                    if (blk, m) in extra:
                        extra[(blk, m)]()
                    m += 1


class Half:
    def __init__(self, half):
        self.half = half

    def wr(self, kp, i, h):
        base = 128 + 16 * kp if kp < 6 else ((96, 112), (0, 32))[self.half][kp - 6]
        return base + 8 * i + 4 * h

    def aq(self, j, i):
        return ((0, 16, 32, 48), (16, 48, 64, 80))[self.half][j >> 1] + 8 * (j & 1) + 4 * i

    def xr(self, n, h):
        n %= 6
        return (224 + 8 * n if n < 3 else (64, 96)[self.half] + 8 * (n - 3)) + 4 * h

    def loads(self, g, kp):
        src = QORD[kp >> 1] * 2 + (kp & 1)
        it = [lambda: g(f"s_add_u32 s{sT0}, s{sHo}, {4 * 262144 + self.half * 131072 + src * 8192}")]
        for f in range(4):
            d = self.wr(kp, f >> 1, f & 1)
            if not g.opt.get("nodma"):
                it.append(lambda d=d, f=f: g.vmem(f"buffer_load_dwordx4 {R(d)}, v{vS}, s[{sWP}:{sWP+3}], s{sT0} offen offset:{f * 1024} sc1", rs(d)))
        return it

    def seq(self):
        return [(kp, j) for kp in range(8) for j in range(8)] if self.half == 0 else [(kp, j) for j in range(8) for kp in range(8)]

    def xread(self, g, n, h):
        kp, j = self.seq()[n]
        x_read(g, "G", kp, j, h, self.xr(n, h))

    def start_x(self, g, lo, hi):
        return [lambda n=n, h=h: self.xread(g, n, h) for n in range(lo, hi) for h in range(2)]

    def phase(self, g, extra):
        seq = self.seq()
        g("s_setprio 1")
        m = 0
        for n, (kp, j) in enumerate(seq):
            if n % 16 == 0:
                g.point(f"H{self.half}{n // 16}")
            for t, i in enumerate((0, 1) if n % 2 == 0 else (1, 0)):
                for h in range(2):
                    mfma(g, self.aq(j, i), self.wr(kp, i, h), self.xr(n, h), kp == 0 and h == 0)
                    gp = 2 * t + h
                    if gp < 2 and n + 5 < 64:
                        self.xread(g, n + 5, gp)
                    if gp == 3 and n % 2 == 1 and n + 1 < 64:
                        r = rs(self.xr(n + 1, 0), 8) + rs(self.xr(n + 2, 0), 8)
                        for nn in (n + 1, n + 2):
                            r += rs(self.wr(seq[nn][0], 0, 0), 16)
                        g.wait(regs=r)
                    if m in extra:
                        extra[m]()
                    m += 1


def lane(g, v):
    g(f"v_mbcnt_lo_u32_b32 v{v}, -1, 0")
    g(f"v_mbcnt_hi_u32_b32 v{v}, -1, v{v}")


class Mixer:
    def __init__(self, g):
        self.g, self.q, self.every, self.n = g, [], 2, 0
        self.q2, self.n2 = [], 0
        self.q3, self.n3 = [], 0

    def __call__(self, s):
        if self.g.opt.get("al", 0) & 2 and s.startswith(("v_fma", "v_cvt_pk", "v_mov_b32_dpp", "v_cndmask_b32_dpp")):
            self.g(".p2align 3")
        self.g(s)
        self.n += 1
        self.n3 += 1
        if self.q3 and self.n3 % self.ev3 == 4:
            self.q3.pop(0)()
        if self.q2:
            self.n2 += 1
            if self.n2 >= self.g.opt.get("wdelay", 8):
                self.q2.pop(0)(); self.n2 = 0
        if self.q and self.n % self.every == 0:
            f = self.q.pop(0)
            if f: f()

    def flush(self):
        while self.q2:
            self.q2.pop(0)()
        self.n2 = 0
        while self.q:
            f = self.q.pop(0)
            if f: f()


def glu(e, pairs, scaled=False):
    if e.g.opt.get("noE"): return
    if not scaled:
        for a, b in pairs: e(f"v_mul_f32 v{b}, s{sC}, v{b}")
    for a, b in pairs: e(f"v_exp_f32 v{b}, v{b}")
    for a, b in pairs: e(f"v_fma_f32 v{b}, v{b}, s{sCi}, s{sCi}")
    for a, b in pairs: e(f"v_rcp_f32 v{b}, v{b}")
    for a, b in pairs: e(f"v_mul_f32 v{a}, v{a}, v{b}")


HFL = ["sc0 sc1"]
def halo_loads(ph):
    return [f"buffer_load_dwordx4 {R(VIMP + 4*ct)}, v{vG8}, s[{sWS}:{sWS+3}], s{sW128} offen offset:{ph*512 + ct*64} {HFL[0]}" for ct in range(2)]


def halo_check(g, ph):
    lab = f"L_poll{ph}"
    g(f"s_mov_b32 s{sT2}, {g.opt.get('spin', 4000000)}")
    g.wait(regs=rs(VIMP, 8))
    g(f"{lab}:")
    g(f"v_max3_u32 v{VTMP}, v{VIMP}, v{VIMP+1}, v{VIMP+2}")
    g(f"v_max3_u32 v{VTMP+1}, v{VIMP+3}, v{VIMP+4}, v{VIMP+5}")
    g(f"v_max3_u32 v{VTMP}, v{VTMP}, v{VIMP+6}, v{VIMP+7}")
    g(f"v_max_u32 v{VTMP}, v{VTMP}, v{VTMP+1}")
    g(f"v_cmp_eq_u32 vcc, -1, v{VTMP}")
    g(f"s_sub_u32 s{sT2}, s{sT2}, 1")
    g(f"s_cbranch_scc1 {lab}_ok")
    g(f"s_cbranch_vccz {lab}_ok")
    for t in halo_loads(ph):
        g(t)
    g("s_waitcnt vmcnt(0)")
    g(f"s_branch {lab}")
    g(f"{lab}_ok:")


def conv_mfma(ct, r, half):
    return f"v_mfma_f32_16x16x32_bf16 {R(YY(ct, r, 4*half))}, {R(AF(ct, r))}, {R(TP(ct, r, 2*half - 1))}, 0"


def e_phase(g, ph, dst, pre=(), after_tile=None, glu_tile=None, silu_tile=None, warm=(), tw=3, pre4=()):
    o = g.opt
    halo = o.get("halo", 1)
    noE = o.get("noE")
    skip = o.get("skip", 1)
    e = Mixer(g)
    prio = 0
    g("s_setprio 0")
    g(f"s_movk_i32 s{sT3}, {ph * 8192}")
    g("s_nop 5")
    el = [(ct, r) for ct in range(2) for r in range(4)]
    for ct, r in el:
        e.q.append(lambda ct=ct, r=r: g.vmem(
            f"buffer_load_dwordx4 {R(AF(ct, r))}, v{vM0}, s[{sDW}:{sDW+3}], s{sT3} offen offset:{ct*1024 + r*64} sc1", rs(AF(ct, r))))
    q0 = e.q; e.q = []
    e.q3 = list(warm); e.ev3 = 12 if len(e.q3) < 40 else 6
    e.every = 8
    def pack(q): return [f"v_cvt_pk_bf16_f32 v{TP(ct, r, q)}, v{ACC(ct, 2*q)+r}, v{ACC(ct, 2*q+1)+r}" for ct, r in el]
    for n_, j in enumerate((2, 3, 0, 1, 4, 5, 6, 7)):
        glu(e, [(ACC(ct, j) + r, ACC(2 + ct, j) + r) for ct in range(2) for r in range(4)], ph > 0 and o.get('psc', 0))
        if n_ == 1:
            for t in pack(1): e(t)
            if halo:
                assert not any(r for r, _ in g.vm)
                if skip:
                    g(f"s_cmp_eq_u32 s{sWE+2}, 0")
                    g(f"s_cbranch_scc1 L_noexp{ph}")
                for n, (ct, r) in enumerate(el):
                    g(f"v_min_u32 v{VEXP+n}, -2, v{TP(ct, r, 1)}")
                for ct in range(2):
                    g.vmem(f"buffer_store_dwordx4 {R(VEXP+4*ct)}, v{vEX}, s[{sWE}:{sWE+3}], s{sW128} offen offset:{ph*512 + ct*64} {HFL[0]}")
                g(f"L_noexp{ph}:")
            e.n = 0
            e.q = q0
        if glu_tile:
            glu_tile(e, n_)
    e.flush()
    if not noE:
        for t in pack(3): e(t)
        for ct, r in el:
            e(f"v_mov_b32_dpp v{TP(ct, r, -1)}, v{TP(ct, r, 3)} row_shr:1 row_mask:0xf bank_mask:0xf bound_ctrl:1")
        p1, p2 = pack(0), pack(2)
        fill = [t for n in range(8) for t in (p1[n], p2[n])]
        for t in fill[:4]: e(t)
        g.wait(regs=rs(192, 32))
        g(f"s_setprio {o.get('cprio', 3)}")
        for n, (ct, r) in enumerate(el):
            g(conv_mfma(ct, r, 0))
            for t in fill[2*n + 4:2*n + 6]: e(t)
            if n == 5: g("s_nop 0")
        g("s_setprio 0")
    if halo and o.get("ti", -1) < 0:
        assert not any(r for r, _ in g.vm)
        if skip:
            g(f"s_cmp_eq_u32 s{sWS+2}, 0")
            g(f"s_cbranch_scc1 L_noimp{ph}")
        for ct, t in enumerate(halo_loads(ph)):
            g.vmem(t, rs(VIMP + 4 * ct))
        g(f"L_noimp{ph}:")
    while e.q3:
        e.q3.pop(0)()
    ta = o.get("ta", 6)
    ti, tc = o.get("ti", -1), o.get("tc", 3)
    for j in range(8):
        if silu_tile:
            silu_tile(e, j)
        if j == tw and warm:
            g("s_waitcnt lgkmcnt(0)"); g.lg = []
        if j == ti:
            if halo:
                for ct, t in enumerate(halo_loads(ph)):
                    g.vmem(t, rs(VIMP + 4 * ct))
        if j == 4 and pre4:
            assert tc < 4
            e.q += list(pre4); e.every = o.get("p4ev", 8); e.n = 0
        if j == ta and pre4:
            g("s_setprio 1"); prio = 1
        elif j == ta:
            g("s_setprio 1"); prio = 1
            e.q += list(pre); e.every = 2; e.n = 0
        ys = [YY(ct, r, j) for ct, r in el]
        mm = []
        if j == tc and not noE:
            if halo and skip:
                g(f"s_mov_b64 vcc, 0")
                g(f"s_cmp_eq_u32 s{sWS+2}, 0")
                g(f"s_cbranch_scc1 L_nochk{ph}")
            if halo:
                halo_check(g, ph)
            g(f"s_mov_b32 vcc_lo, {0x80008000 if halo else 0}")
            g(f"s_mov_b32 vcc_hi, {0x80008000 if halo else 0}")
            g(f"L_nochk{ph}:")
            for n, (ct, r) in enumerate(el):
                e(f"v_cndmask_b32_dpp v{TP(ct, r, 4)}, v{TP(ct, r, 0)}, v{VIMP+n}, vcc row_shl:1 row_mask:0xf bank_mask:0xf bound_ctrl:1")
            mm = [conv_mfma(ct, r, 1) for ct, r in el]
            g(f"s_setprio {o.get('cprio', 3)}")
        if not noE:
            for n, y in enumerate(ys):
                if mm: g(mm[n])
                e(f"v_exp_f32 v{VTMP+n}, v{y}")
            if mm: g(f"s_setprio {prio}")
            for n, y in enumerate(ys): e(f"v_fma_f32 v{VTMP+n}, v{VTMP+n}, s{sC}, s{sC}")
            for n, y in enumerate(ys): e(f"v_rcp_f32 v{VTMP+n}, v{VTMP+n}")
            for n, y in enumerate(ys): e(f"v_mul_f32 v{y}, v{y}, v{VTMP+n}")
        for n in range(4): e(f"v_cvt_pk_bf16_f32 v{dst+4*j+n}, v{ys[2*n]}, v{ys[2*n+1]}")
        if after_tile:
            after_tile(e, j)
    e.flush()


vG0, vG1, vG2 = vM0, vM1, vEX


def outv_addr(g, t=144, half=None):
    lane(g, t)
    if half is None:
        g(f"s_lshl_b32 s{sT2}, s{sWv}, 7")
    else:
        g(f"s_add_u32 s{sT2}, s{sW64}, {512 + 256 * half}")
    g(f"v_bfe_u32 v{t+1}, v{t}, 1, 3")
    g(f"v_lshl_add_u32 v{vG0}, v{t+1}, 14, s{sT2}")
    g(f"v_bfe_u32 v{t+2}, v{t}, 4, 1")
    g(f"v_lshl_add_u32 v{vG0}, v{t+2}, 5, v{vG0}")
    g(f"v_lshrrev_b32 v{t+2}, 5, v{t}")
    g(f"v_lshl_add_u32 v{vG0}, v{t+2}, {6 if half is None else 10}, v{vG0}")
    g(f"v_and_b32 v{t+2}, 1, v{t}")
    g(f"v_lshl_add_u32 v{vG0}, v{t+2}, 4, v{vG0}")
    g(f"v_cmp_eq_u32 vcc, 0, v{t+1}")
    g(f"v_mov_b32 v{vG2}, {OOB}")
    g(f"v_add_u32 v{vG1}, 8192, v{vG0}")
    g(f"v_cndmask_b32 v{vG2}, v{vG0}, v{vG2}, vcc")
    g(f"s_movk_i32 s{sT3}, 4096")
    g(f"s_mov_b32 vcc_lo, 0x55555555")
    g(f"s_mov_b32 vcc_hi, 0x55555555")


def outv_items(g, j, n, fl, mode=2, inflight=None, Q=None):
    Q = Q or [ACC(i, j) for i in range(4)]
    def T(i, d): return Q[i >> 1] + 2 * (i & 1) + d
    it = []
    for i in range(4):
        for d in range(2):
            a = Q[i] + 2 * d
            it.append(f"v_cvt_pk_bf16_f32 v{T(i, d)}, v{a}, v{a+1}")
    if not g.opt.get("nsw", 1):
        for d in range(2):
            for i in (0, 2):
                it.append(f"v_permlane16_swap_b32 v{T(i, d)}, v{T(i+1, d)}")
        for d in range(2):
            for i in (0, 1):
                it.append(f"v_permlane32_swap_b32 v{T(i, d)}, v{T(i+2, d)}")
    dpp = "quad_perm:[1,0,3,2] row_mask:0xf bank_mask:0xf"
    so = "0" if j < 4 else f"s{sT3}"
    for hb in ((0, 1) if n % 2 == 0 else (1, 0)):
        S = Q[2 + hb]
        for k in ((0, 1, 2, 3) if g.opt.get('nsw', 1) else (0, 2, 1, 3)):
            it.append(f"v_cndmask_b32_dpp v{S+k}, v{Q[1-hb]+k}, v{Q[hb]+k}, vcc {dpp}")
        if hb == n % 2:
            it.append("s_not_b64 vcc, vcc")
        va = vG1 if hb else (vG2 if j < 2 else vG0)
        if inflight is not None:
            it.append(f"s_waitcnt vmcnt({inflight})")
        it.append(f"buffer_store_dwordx4 {R(S)}, v{va}, s[{sO}:{sO+3}], {so} offen offset:{(j % 4)*1024} {fl}".rstrip())
    if mode == 1: it = [t for t in it if not t.startswith("buffer")]
    if mode == 3: it = [t for t in it if t.startswith("buffer")]
    return [(lambda t=t: g.vmem(t) if t.startswith("buffer") else g(t)) for t in it]


def out_interleave(g, ex, own, per, ntiles, fl, mode=2):
    pend = []
    seq = own.seq()
    done = {8 * max(n for n in range(64) if seq[n][1] == j) + 15: j for j in range(ntiles)}
    def f(m):
        if m in done:
            pend.extend(outv_items(g, done[m], done[m], fl, mode))
        for _ in range(per[m % len(per)]):
            if pend: pend.pop(0)()
    for m in range(min(done), 512):
        assert (m // 64, m % 64) not in ex
        ex[(m // 64, m % 64)] = (lambda m=m: f(m))
    return pend


def srd(g, d, lo, size):
    g(f"s_mov_b32 s{d}, s{lo}")
    g(f"s_mov_b32 s{d+1}, s{lo+1}")
    g(f"s_mov_b32 s{d+2}, {size}")
    g(f"s_mov_b32 s{d+3}, 0x20000")


def g_addr(g):
    g(f"v_subrev_u32 v{vX1}, s{sSb}, v{vS}")
    g(f"v_add_u32 v{vX0}, 98304, v{vX1}")
    g(f"v_add_u32 v{vX1}, 32768, v{vX1}")


def build(opt):
    g = Gen(opt)
    HFL[0] = opt.get("hfl", "sc0 sc1")
    halo = opt.get("halo", 1)
    xfl = opt.get("xflag", "nt")
    win = opt.get("win", 2)
    rbar = opt.get("rbar", 15)
    stamps = opt.get("stamps")
    kx, kw1, kdw, kw2, kout, kdbg, kws = KA, KA + 2, KA + 4, KA + 6, KA + 8, KA + 10, KA + 12
    g.l.append(HEAD.rstrip("\n"))
    g("; @launch grid=(256,1,1) block=(512,1,1) lds=163840")
    g.l.append(DOC.strip("\n"))
    g('.amdgcn_target "amdgcn-amd-amdhsa--gfx950"')
    g(".text")
    g(f".globl {KN}_kernel")
    g(".p2align 8")
    g(f".type {KN}_kernel,@function")
    g(f"{KN}_kernel:")
    g("s_cmp_ge_u32 s2, 256")
    g("s_cbranch_scc1 L_end")
    g(f"s_load_dwordx8 s[{KA}:{KA+7}], s[0:1], 0")
    g(f"s_load_dwordx4 s[{KA+8}:{KA+11}], s[0:1], 32")
    g(f"s_load_dwordx2 s[{KA+12}:{KA+13}], s[0:1], 48")
    if stamps:
        g("s_memrealtime s[74:75]")
        g(f"s_mem{'real' if stamps == 3 else ''}time s[100:101]")
    g(f"v_readfirstlane_b32 s{sWv}, v0")
    g(f"s_mov_b32 s{sWg}, s2")
    g(f"s_and_b32 s3, s2, 7")
    g(f"s_lshr_b32 s{sT0}, s2, 3")
    g(f"s_lshl_b32 s{sT1}, s3, 5")
    g(f"s_add_u32 s{sTile}, s{sT0}, s{sT1}")
    g(f"s_mul_i32 s3, s3, {4000 * 1024}")
    g(f"s_bitcmp1_b32 s2, 0")
    g(f"s_cselect_b32 s{sT2}, 32768, 0")
    g(f"s_add_u32 s3, s3, s{sT2}")
    g(f"s_lshr_b32 s{sT2}, s{sT2}, 4")
    g(f"s_sub_u32 s{sRows}, {126 * 1024}, s{sT2}")
    g(f"s_mul_i32 s2, s{sT0}, s{sRows}")
    g(f"s_add_u32 s2, s2, s3")
    g(f"s_and_b32 s{sTau}, s{sTile}, 127")
    g(f"s_lshr_b32 s{sWv}, s{sWv}, 6")
    if opt.get("swap", 1):
        g(f"s_xor_b32 s{sWv}, s{sWv}, 4")
    g(f"s_and_b32 s{sW}, s{sWv}, 3")
    g("v_and_b32 v0, 63, v0")
    if opt.get("stag"):
        g(f"s_bfe_u32 s{sT0}, s{sWg}, {0x10000 * opt.get('stagb', 1) + 3}")
        g("L_stag:")
        g(f"s_sub_u32 s{sT0}, s{sT0}, 1")
        g("s_cbranch_scc1 L_stag_e")
        g(f"s_sleep {opt['stag']}")
        g("s_branch L_stag")
        g("L_stag_e:")
    g(f"s_cmp_lt_u32 s{sWv}, 4")
    g("s_cbranch_scc1 L_startA")

    P = [Stream("P", ph) for ph in range(2)]
    P1, P2, P3, GA, GB = (Direct(n) for n in range(5))
    d1 = opt.get('d1', 1)

    g(f"v_lshrrev_b32 v12, 3, v0")
    g(f"v_and_b32 v13, 7, v0")
    g(f"v_lshrrev_b32 v14, 4, v0")
    g(f"v_xor_b32 v14, v14, v13")
    g(f"s_lshl_b32 s{sT3}, s{sW}, 11")
    g(f"v_lshl_add_u32 v14, v14, 4, s{sT3}")
    g(f"v_lshl_add_u32 v16, v12, 13, v14")
    g(f"v_xor_b32 v17, 0x10040, v16")
    g(f"v_add_u32 v19, 1024, v17")
    g(f"s_cmp_eq_u32 s{sTau}, 0")
    g(f"s_cselect_b32 s{sT3}, 1024, 0")
    g(f"v_cmp_gt_u32 vcc, s{sT3}, v16")
    g(f"v_mov_b32 v15, {OOB}")
    g(f"s_cmp_eq_u32 s{sTau}, 127")
    g(f"v_cndmask_b32 v16, v16, v15, vcc")
    g(f"s_mov_b32 s{sX+3}, 0x20000")
    g(f"s_cselect_b32 s{sX+2}, {126*1024}, s{sX+3}")
    g(f"v_add_u32 v18, 1024, v16")
    g(f"s_lshl_b32 s{sT3}, s{sW}, 12")
    g("s_waitcnt lgkmcnt(0)")
    g(f"s_add_u32 s{sX}, s{kx}, s2")
    g(f"s_addc_u32 s{sX+1}, s{kx+1}, 0")
    g(f"s_sub_u32 s{sX}, s{sX}, 2048")
    g(f"s_subb_u32 s{sX+1}, s{sX+1}, 0")
    if opt.get("hd") == 1: g.stamp(8)

    def d1_addr():
        g(f"v_lshrrev_b32 v1, 5, v0")
        g(f"v_lshlrev_b32 v1, 1, v1")
        g(f"v_and_b32 v2, 3, v0")
        g(f"v_xor_b32 v1, v1, v2")
        g(f"s_lshl_b32 s{sW64}, s{sW}, 6")
        g(f"v_lshl_add_u32 v1, v1, 4, s{sW64}")
        g(f"v_lshrrev_b32 v3, 2, v0")
        g(f"v_lshl_add_u32 v{vD1}, v3, 11, v1")
        g(f"s_lshl_b32 s{sRing}, s{sW}, 13")
        g(f"s_add_u32 s{sRing}, s{sRing}, 131072")
        g(f"s_add_u32 s{sRing+1}, s{sRing}, 4096")
        for f in set_kconst(g, "P"): f()

    def ct_srd():
        g(f"s_lshl_b32 s{sT0}, s{sW}, 11")
        g(f"s_add_u32 s{sT0}, s{sT0}, {CTOFF}")
        g(f"s_add_u32 s{sDW}, s{sWq}, s{sT0}")
        g(f"s_addc_u32 s{sDW+1}, s{sWq+1}, 0")
        g(f"s_mov_b32 s{sDW+2}, 32768")
        g(f"s_mov_b32 s{sDW+3}, 0x20000")

    def common(role):
        srd(g, sW2, kw2, 524288)
        g(f"s_add_u32 s{sO}, s{kout}, s2")
        g(f"s_addc_u32 s{sO+1}, s{kout+1}, 0")
        g(f"s_sub_u32 s{sO}, s{sO}, 2048")
        g(f"s_subb_u32 s{sO+1}, s{sO+1}, 0")
        g(f"s_add_u32 s{sO+2}, s{sRows}, 2048")
        g(f"s_mov_b32 s{sO+3}, 0x20000")
        srd(g, sDBG, kdbg, 256)
        g(f"s_lshl_b32 s{sT0}, s{sTile}, 11")
        g(f"s_add_u32 s{sWS}, s{kws}, s{sT0}")
        g(f"s_addc_u32 s{sWS+1}, s{kws+1}, 0")
        g(f"s_sub_u32 s{sWE}, s{sWS}, 2048")
        g(f"s_subb_u32 s{sWE+1}, s{sWS+1}, 0")
        g(f"s_bitcmp1_b32 s{sTile}, 5")
        g(f"s_cselect_b32 s{sWS+2}, 0, 2048")
        g(f"s_sub_u32 s{sT0}, s{sTile}, 1")
        g(f"s_bitcmp1_b32 s{sT0}, 5")
        g(f"s_cselect_b32 s{sWE+2}, 0, 2048")
        g(f"s_mov_b32 s{sWS+3}, 0x20000")
        g(f"s_mov_b32 s{sWE+3}, 0x20000")
        if stamps:
            g(f"s_mov_b64 s[40:41], s[{kws}:{kws+1}]")
        g(f"s_mov_b32 s{sC}, 0xbfb8aa3b")
        g(f"s_mov_b32 s{sCi}, 0xbf317218")
        g(f"s_lshl_b32 s{sW128}, s{sW}, 7")
        g(f"v_lshrrev_b32 v3, 4, v0")
        g(f"v_lshlrev_b32 v4, 1, v3")
        g(f"v_lshlrev_b32 v{vG8}, 4, v3")
        g(f"v_bfe_u32 v5, v0, 2, 2")
        g(f"v_xor_b32 v24, v5, v3")
        g(f"v_lshlrev_b32 v24, 24, v24")
        g(f"v_lshl_add_u32 v24, v5, 8, v24")
        g(f"v_lshl_add_u32 v{vM0}, v2, 4, v24")
        g(f"v_and_b32 v25, 15, v0")
        g(f"v_lshl_add_u32 v{vEX}, v25, 24, v{vG8}")
        g(f"s_lshr_b32 s{sT0}, s{sW}, 1")
        g(f"s_lshl_b32 s{sT0}, s{sT0}, 14")
        g(f"s_and_b32 s{sT1}, s{sW}, 1")
        g(f"s_lshl_b32 s{sT1}, s{sT1}, 10")
        g(f"s_add_u32 s{sSb}, s{sT0}, s{sT1}")
        g(f"s_add_u32 s{sSb}, s{sSb}, {32768 if role == 0 else 98304}")
        g(f"v_lshl_add_u32 v{vS}, v0, 4, s{sSb}")
        g(f"s_add_u32 s{sWq}, s{kws}, {WPOFF}")
        g(f"s_addc_u32 s{sWq+1}, s{kws+1}, 0")
        g(f"s_lshl_b32 s{sT0}, s{sW}, 16")
        g(f"s_add_u32 s{sWP}, s{sWq}, s{sT0}")
        g(f"s_addc_u32 s{sWP+1}, s{sWq+1}, 0")
        g(f"s_sub_u32 s{sWP}, s{sWP}, s{sSb}")
        g(f"s_subb_u32 s{sWP+1}, s{sWP+1}, 0")
        g(f"s_lshr_b32 s{sT1}, s{sW}, 1")
        g(f"s_lshl_b32 s{sT1}, s{sT1}, 16")
        g(f"s_sub_u32 s{sHo}, s{sT1}, s{sT0}")
        g(f"s_and_b32 s{sT1}, s{sW}, 1")
        g(f"s_lshl_b32 s{sT1}, s{sT1}, 12")
        g(f"s_add_u32 s{sHo}, s{sHo}, s{sT1}")
        g(f"s_mov_b32 s{sWP+2}, 0x200000")
        g(f"s_mov_b32 s{sWP+3}, 0x20000")
        g(f"v_bfe_u32 v4, v0, 4, 1")
        g(f"v_bfe_u32 v5, v0, 2, 2")
        g(f"v_lshl_add_u32 v{vW0}, v3, 9, s{sRing}")
        g(f"v_lshl_add_u32 v{vW0}, v5, 6, v{vW0}")
        g(f"v_lshl_add_u32 v{vW0}, v4, 5, v{vW0}")
        g(f"v_lshl_add_u32 v{vW0}, v2, 3, v{vW0}")
        g(f"v_xor_b32 v{vW1}, 32, v{vW0}")
        g(f"v_and_b32 v4, 15, v0")
        g(f"v_lshrrev_b32 v5, 1, v4")
        g(f"v_xor_b32 v5, v5, v3")
        g(f"v_lshlrev_b32 v5, 4, v5")
        g(f"v_lshl_add_u32 v{vX0}, v4, 7, v5")
        g(f"v_xor_b32 v{vX1}, 64, v{vX0}")
        if stamps:
            g("s_mov_b64 s[76:77], s[100:101]")


    sWB = 0
    sub = (0, 64)
    def wbase(key):
        if key < 2 - d1:
            g(f"s_lshl_b32 s{sT2}, s{sSl}, 13")
            g(f"s_add_u32 s{sT2}, s{sT2}, {key * 256}")
            ptr = sW1
        else:
            g(f"s_lshl_b32 s{sT2}, s{sSl}, 11")
            g(f"s_add_u32 s{sT2}, s{sT2}, {(key - 1) * 262144}")
            ptr = sWq
        g(f"s_add_u32 s{sWB}, s{ptr}, s{sT2}")
        g(f"s_addc_u32 s{sWB+1}, s{ptr+1}, 0")
    def wlines(key):
        if key < 2 - d1:
            return [(key, n * 1024 + e * 64) for n in range(8) for e in range(4)]
        return [(key, n * 64) for n in range(32)]
    def swarm(lines):
        cur = None
        for n, (key, of) in enumerate(lines):
            if key != cur:
                wbase(key); cur = key
            if n % 14 == 0:
                g(f"s_waitcnt lgkmcnt({15 - min(14, len(lines) - n)})")
            g(f"s_load_dword s3, s[{sWB}:{sWB+1}], {of}")
    later = wlines(1)
    nb = 8
    def e_warm(key, n0=0):
        if str(key) not in str(opt.get("wk", "5")):
            return []
        def ld(n, of):
            if n + n0 >= 14:
                g("s_waitcnt lgkmcnt(13)")
            g(f"s_load_dword s3, s[{sWB}:{sWB+1}], {of}")
        return [lambda: wbase(key)] + [(lambda n=n, of=of: ld(n, of)) for n, (_, of) in enumerate(wlines(key))]

    def x_issue(kp):
        g(f"s_movk_i32 s{sT0}, {kp*128}")
        for jj in range(2):
            for hh in range(2):
                g(f"s_add_u32 m0, s{sT3}, {kp*16384 + jj*2048 + hh*1024}")
                g("s_nop 0")
                g.vmem(f"buffer_load_dwordx4 v{16+2*jj+hh}, s[{sX}:{sX+3}], s{sT0} offen {xfl} lds".replace("  ", " "), tag=("x", kp))
    x_issue(0)
    if opt.get("hd") == 2:
        g("s_waitcnt vmcnt(0)"); g.stamp(8)
    srd(g, sW1, kw1, 1048576)
    g(f"s_getpc_b64 s[{sCode}:{sCode+1}]")
    g("L_pc:")
    g(f"s_mov_b32 s{sCode+2}, L_code_end-L_pc")
    g(f"s_mov_b32 s{sCode+3}, 0x20000")
    g(f"s_lshr_b32 s{sT1}, s{sWg}, 3")
    g(f"s_lshl2_add_u32 s{sSl}, s{sT1}, s{sW}")
    g(f"v_lshrrev_b32 v6, 1, v0")
    g(f"v_lshlrev_b32 v6, 10, v6")
    g(f"v_and_b32 v7, 1, v0")
    g(f"v_lshl_add_u32 v6, v7, 7, v6")
    g(f"v_lshrrev_b32 v7, 4, v0")
    g(f"v_lshl_add_u32 v6, v7, 28, v6")
    def warm_w1(ph, dst):
        g(f"s_lshl_b32 s{sT2}, s{sSl}, 13")
        if ph:
            g(f"s_add_u32 s{sT2}, s{sT2}, {ph * 256}")
        g.vmem(f"buffer_load_dword v{dst}, v6, s[{sW1}:{sW1+3}], s{sT2} offen {opt.get('wfl', '')}", [dst])
    if opt.get("warm0", 1) == 1:
        warm_w1(0, 8)
    if opt.get("cw", 1) == 1:
        g(f"s_lshl_b32 s{sT2}, s{sSl}, 7")
        g(f"v_lshlrev_b32 v7, 14, v0")
        g.vmem(f"buffer_load_dword v9, v7, s[{sCode}:{sCode+3}], s{sT2} offen", [9])
    if opt.get("warm0", 1) == 2:
        swarm(wlines(0)[12 * len(sub):])
    if opt.get("hd") in (2, 3):
        g("s_waitcnt vmcnt(0)"); g.stamp(9)
    d1_addr()
    common(1)
    assert d1 and opt.get("nsw", 1)
    oddp = opt.get("oddp", 1)
    vm0 = list(g.vm)
    if oddp:
        g(f"s_bitcmp1_b32 s{sWg}, 0")
        g("s_cbranch_scc1 L_oddB")
    full = opt.get("tmode", 2) == 2
    sE, sS1, sD1, sS2, sD2, sOff = 64, 65, 42, 43, sSl + 1, 3
    BIG = 0x40000000
    if opt.get("emap", 0):
        g(f"s_lshr_b32 s{sT0}, s{sWg}, 3")
        g(f"s_bfe_u32 s{sT1}, s{sWg}, 0x10001")
        g(f"s_lshl1_add_u32 s{sE}, s{sT0}, s{sT1}")
        g(f"s_bfe_u32 s{sT1}, s{sWg}, 0x10002")
        g(f"s_lshl_b32 s{sT1}, s{sT1}, 6")
        g(f"s_add_u32 s{sE}, s{sE}, s{sT1}")
    else:
        g(f"s_lshr_b32 s{sE}, s{sWg}, 1")
    g(f"s_and_b32 s{sOff}, s{sWg}, 1")
    if opt.get("tpar"):
        g(f"s_xor_b32 s{sOff}, s{sOff}, 1")
    g(f"s_lshl_b32 s{sOff}, s{sOff}, 30")
    g(f"s_and_b32 s{sT0}, s{sE}, 15")
    g(f"s_lshr_b32 s{sT1}, s{sT0}, 1")
    g(f"s_lshl_b32 s{sD1}, s{sT1}, 13")
    g(f"s_and_b32 s{sT1}, s{sT0}, 1")
    g(f"s_lshl_b32 s{sT1}, s{sT1}, 10")
    g(f"s_add_u32 s{sD1}, s{sD1}, s{sT1}")
    g(f"s_lshl_b32 s{sS2}, s{sT0}, 15")
    g(f"s_lshl_b32 s{sT2}, s{sW}, 13")
    g(f"s_add_u32 s{sS2}, s{sS2}, s{sT2}")
    g(f"s_lshl_b32 s{sT2}, s{sW}, 11")
    g(f"s_add_u32 s{sD2}, s{sD1}, s{sT2}")
    g(f"s_lshr_b32 s{sT1}, s{sE}, 4")
    g(f"s_lshl_b32 s{sT2}, s{sT1}, 16")
    g(f"s_add_u32 s{sD2}, s{sD2}, s{sT2}")
    g(f"s_add_u32 s{sD2}, s{sD2}, {3 * 262144}")
    g(f"s_lshl_b32 s{sT2}, s{sT1}, 7")
    g(f"s_add_u32 s{sS2}, s{sS2}, s{sT2}")
    g(f"s_lshl_b32 s{sS1}, s{sT0}, 16")
    g(f"s_and_b32 s{sT1}, s{sW}, 1")
    g(f"s_lshl_b32 s{sT2}, s{sT1}, 15")
    g(f"s_add_u32 s{sS1}, s{sS1}, s{sT2}")
    g(f"s_lshl_b32 s{sT2}, s{sT1}, 11")
    g(f"s_add_u32 s{sD1}, s{sD1}, s{sT2}")
    g(f"s_lshr_b32 s{sT1}, s{sW}, 1")
    g(f"s_lshl_b32 s{sT2}, s{sT1}, 13")
    g(f"s_add_u32 s{sS1}, s{sS1}, s{sT2}")
    g(f"s_lshl_b32 s{sT2}, s{sT1}, 16")
    g(f"s_add_u32 s{sD1}, s{sD1}, s{sT2}")
    g(f"s_bfe_u32 s{sT1}, s{sE}, 0x10004")
    g(f"s_lshl_b32 s{sT2}, s{sT1}, 10")
    g(f"s_add_u32 s{sS1}, s{sS1}, s{sT2}")
    g(f"s_lshl_b32 s{sT2}, s{sT1}, 12")
    g(f"s_add_u32 s{sD1}, s{sD1}, s{sT2}")
    g(f"s_lshr_b32 s{sT1}, s{sE}, 5")
    g(f"s_lshl_b32 s{sT2}, s{sT1}, 7")
    g(f"s_add_u32 s{sS1}, s{sS1}, s{sT2}")
    g(f"s_add_u32 s{sS1}, s{sS1}, 256")
    g(f"s_lshl_b32 s{sT2}, s{sT1}, 17")
    g(f"s_add_u32 s{sD1}, s{sD1}, s{sT2}")
    g(f"s_cmp_lt_u32 s{sE}, 64")
    g(f"s_cselect_b32 s{sT1}, s{sOff}, {BIG}")
    g(f"s_xor_b32 s{sT2}, s{sOff}, {0 if full else BIG}")
    g(f"s_add_u32 s{sT0}, s{sOff}, 256")
    g(f"v_lshlrev_b32 v27, 4, v13")
    g(f"v_lshl_add_u32 v44, v12, 10, v27")
    g(f"v_add_u32 v44, s{sT2}, v44")
    g(f"v_and_b32 v28, 3, v12")
    g(f"v_lshrrev_b32 v26, 2, v12")
    g(f"v_lshl_add_u32 v26, v26, 3, v28")
    g(f"v_lshl_add_u32 v26, v26, 11, v27")
    g(f"v_add_u32 v42, s{sT0}, v26")
    g(f"v_add_u32 v43, s{sT1}, v26")
    g(f"s_add_u32 s{sT0}, s{sOff}, 262144")
    g(f"v_lshl_add_u32 v45, v0, 4, s{sT0}")
    g(f"v_lshl_add_u32 v46, v0, 4, s{sT1}")
    g(f"v_lshl_add_u32 v47, v0, 4, s{sT2}")
    g(f"v_lshrrev_b32 v26, 2, v0")
    g(f"v_lshlrev_b32 v26, 7, v26")
    g(f"s_lshl_b32 s{sT1}, s{sW}, 3")
    g(f"s_add_u32 s{sT1}, s{sT1}, {SCR}")
    g(f"v_lshl_add_u32 v27, v2, 5, v26")
    g(f"v_add_u32 v27, s{sT1}, v27")
    g(f"s_lshl_b32 s{sT1}, s{sW}, 5")
    g(f"s_add_u32 s{sT1}, s{sT1}, {SCR}")
    g(f"v_lshl_add_u32 v26, v2, 3, v26")
    g(f"v_add_u32 v26, s{sT1}, v26")
    srd(g, sDW, kdw, 5120)
    g(f"s_lshl_b32 s{sT1}, s{sW}, 28")
    g(f"s_add_u32 s{sT1}, s{sT1}, s{sOff}")
    g(f"s_lshl3_add_u32 s{sT2}, s{sE}, s{sT1}")
    g(f"v_bfe_u32 v37, v0, 2, 2")
    g(f"v_lshlrev_b32 v38, 1, v2")
    g(f"v_sub_u32 v37, v38, v37")
    g(f"v_lshl_add_u32 v37, v37, 10, s{sT2}")
    g(f"v_lshl_add_u32 v37, v3, 1, v37")
    g(f"v_add_u32 v38, 1024, v37")
    g(f"s_lshl_b32 s{sT2}, s{sE}, 8")
    g(f"s_add_u32 s{sT1}, s{sT1}, s{sT2}")
    g(f"s_add_u32 s{sT1}, s{sT1}, {CTOFF}")
    g(f"v_lshl_add_u32 v41, v0, 2, s{sT1}")
    def task_load():
        g(f"s_lshl_b32 s{sT1}, s{sW}, 10")
        g(f"s_add_u32 m0, s{sT1}, {SCR}")
        g.vmem(f"buffer_load_ushort v48, v37, s[{sDW}:{sDW+3}], 0 offen", [48], tag="task")
        g.vmem(f"buffer_load_dwordx4 v42, s[{sW1}:{sW1+3}], s{sS1} offen nt lds", tag="task")
        g(f"s_add_u32 m0, m0, 4096")
        g.vmem(f"buffer_load_ushort v49, v38, s[{sDW}:{sDW+3}], 0 offen", [49], tag="task")
        g.vmem(f"buffer_load_dwordx4 v43, s[{sW1}:{sW1+3}], s{sS1} offen nt lds", tag="task")
        g(f"s_add_u32 m0, m0, 4096")
        ct_srd()
        g.vmem(f"buffer_load_dwordx4 v44, s[{sW2}:{sW2+3}], s{sS2} offen nt lds", tag="task")
        srd(g, sW2, sWq, 0x148000)
    tk = opt.get("tk", 1)
    if tk == 1:
        task_load()
    assert rbar and win == 2
    def w_first():
        P[0].advance(g, 0)
        for ab in range(2):
            set_m0(g, ab)
            g("s_nop 0")
            for m in range(4):
                P[0].dma(g, ab, m, ("x", 0))
    wA = opt.get("wA", 2)
    if wA:
        g.barrier("w0")
    else:
        w_first()
    for kp in range(1, win):
        x_issue(kp)
    g.wait(vm=("x", 0))
    g.barrier("x0")
    g("s_branch L_roleB")
    vmB = list(g.vm)
    if oddp:
        assert full and wA and tk == 1 and opt.get("ak", 2) == 2
        g.vm, g.bars = vm0, []
        g("L_oddB:")
        ct_srd()
        g.barrier("w0")
        x_issue(1)
        for kp in range(3):
            g.wait(vm=("x", kp))
            g.barrier(f"x{kp}")
            if kp < 2:
                g.barrier(f"r{kp}")
                x_issue(kp + 2)
        odd_state = ([t for _, t in g.vm], list(g.bars))
        g("s_branch L_noann")
    g.vm = []; g.bars = []

    g("L_startA:")
    d1_addr()
    g("s_waitcnt lgkmcnt(0)")
    if opt.get("tlb", 0):
        g(f"s_add_u32 s{sO}, s{kout}, s2")
        g(f"s_addc_u32 s{sO+1}, s{kout+1}, 0")
        for n, (k, off) in enumerate(((kw1, 0), (kdw, 0), (kw2, 0), (kws, 0x80000), (sO, 0))):
            g(f"s_load_dword s3, s[{k}:{k+1}], {off}")
    srd(g, sW1, kw1, 1048576)
    g(f"s_lshr_b32 s{sT1}, s{sWg}, 3")
    g(f"s_lshl2_add_u32 s{sSl}, s{sT1}, s{sW}")
    if opt.get("warm0", 1) == 2:
        swarm(wlines(0)[:12 * len(sub)])
    if opt.get("cw", 1) == 2:
        g(f"s_getpc_b64 s[{sCode}:{sCode+1}]")
        g("L_pc2:")
        g(f"s_mov_b32 s{sCode+2}, L_code_end-L_pc2")
        g(f"s_mov_b32 s{sCode+3}, 0x20000")
        g(f"s_lshl_b32 s{sT2}, s{sSl}, 6")
        for n in range(9):
            g(f"s_buffer_load_dword s3, s[{sCode}:{sCode+3}], s{sT2}")
            g(f"s_add_u32 s{sT2}, s{sT2}, 8192")
    if wA == 2:
        w_first()
    common(0)
    ct_srd()
    if wA == 1:
        w_first()
    if stamps == 4:
        g(f"s_add_u32 s4, s40, {STAMP_OFF}\ns_addc_u32 s5, s41, 0\ns_mov_b32 s6, 0x100000\ns_mov_b32 s7, 0x20000")
        g(f"s_lshl_b32 s42, s{sWg}, 3\ns_add_u32 s42, s42, s{sWv}\ns_lshl_b32 s42, s42, 7")
        g("v_mov_b32 v8, s74\nv_mov_b32 v9, s75\nv_mov_b32 v10, s74\nv_mov_b32 v11, s75\nv_and_b32 v12, 1, v0\nv_lshrrev_b32 v13, 1, v0\nv_lshlrev_b32 v12, 9, v12\nv_lshl_add_u32 v12, v13, 24, v12")
        g.vmem("buffer_store_dwordx4 v[8:11], v12, s[4:7], s42 offen sc0 sc1")
    if wA:
        g.barrier("w0")
        g.drain(vm=True)
        g("s_waitcnt lgkmcnt(0)")
    g.stamp(8)
    g.barrier("x0")
    g.stamp(9)
    it = start_a(g, P[0])
    run(it[:8] + start_x(g, P[0]) + start_b(g, P[0])[:8])
    run(it[8:10]); g("s_nop 0"); run(it[10:] + start_b(g, P[0])[8:])
    ex = {(kp, rbar): (lambda kp=kp: g.barrier(f"r{kp}")) for kp in range(8 - win)} if rbar else {}
    g.stamp(1)
    if d1:
        def h0():
            g.wait(lg=("rb", 7))
            g.barrier("h0")
        ex[(7, opt.get("h0g", 45))] = h0
    mfma_phase(g, P[0], None if d1 else P[1], "h0", xbar=lambda kp: g.barrier(f"x{kp}"), first=True, extra=ex)
    g.stamp(2)
    def sw(reg, off, va=vS):
        return lambda: g.ds(f"ds_write_b128 v{va}, {R(reg)} offset:{off}", tag="sw")
    e_phase(g, 0, VH, pre=P2.start_w(g) + P2.start_x(g), warm=e_warm(2))
    if not d1:
        g.barrier("h1")
    g.stamp(3)
    direct_phase(g, P2)
    g.stamp(4)
    e_phase(g, 2, 0, pre=GA.start_w(g), warm=e_warm(4) + (e_warm(5, 14 if e_warm(4) else 0) if opt.get('w5', 2) == 2 else []))
    g_addr(g)
    outv_addr(g, 64)
    g.barrier("h3")
    nb_ = opt.get("burst", 0)
    if nb_ >= 8:
        run([sw(4 * j, 32768 + j * 2048) for j in range(8)] + GA.start_x(g) + [sw(VH + 4 * j, j * 2048) for j in range(nb_ - 8)])
    else:
        run([sw(0, 32768), sw(4, 32768 + 2048)] + GA.start_x(g) + [sw(8, 32768 + 4096)])
    g.stamp(5)
    yl = [int(v) for v in str(opt.get("yl", "4 6 7")).split()]
    GA.merge = int(len(yl) > 1)
    def xbarA(kp, j):
        if kp == 2 and j == 0:
            g.wait(lg="sw")
            g.barrier("V")
        if kp == 6 and (j == 0 or j - 1 in yl):
            g.barrier(f"Y{min(v for v in yl if v >= j)}")
    ex = {(0, 8 * (j - 3) + 4): sw(4 * j, 32768 + j * 2048) for j in range(3, 8)} if nb_ < 8 else {}
    fr = ((0, 44), (0, 52), (1, 4), (1, 12), (1, 20), (1, 28), (1, 34), (1, 38))
    ex.update({fr[j]: sw(VH + 4 * j, j * 2048) for j in range(max(nb_ - 8, 0), 8)})
    na = opt.get("na", 0) if GA.merge else 0
    pend = out_interleave(g, ex, GA, [int(c) for c in str(opt.get("opera", 2))], na, opt.get("stA", "nt")) if na else []
    split = opt.get("split", 0)
    HB, HA = Half(0), Half(1)
    if split:
        assert GA.merge and not na
        for n, f in enumerate(HA.loads(g, 4) + HA.loads(g, 5)):
            ex[(6, 8 * (n // 2) + 3 + 2 * (n % 2))] = f
    direct_phase(g, GA, xbar=xbarA, extra=ex)
    g.stamp(6)
    g("s_setprio 0")
    g("s_nop 6")
    run(pend)
    zg = [int(v) for v in str(opt.get("zg", "2 2 2 2")).split() if int(v)]
    j = na
    assert na + sum(zg) <= 8
    for n, cnt in enumerate(zg):
        for jj in range(j, j + cnt):
            run(outv_items(g, jj, jj, opt.get("stA", "nt"), 1))
        g.barrier(f"Z{n}")
        for jj in range(j, j + cnt):
            run(outv_items(g, jj, jj, opt.get("stA", "nt"), 3))
        j += cnt
    for jj in range(j, 8):
        if opt.get("outA", 2): run(outv_items(g, jj, jj, opt.get("stA", "nt"), opt.get("outA", 2), None if split else opt.get("infl", 1)))
        if split and jj < 6:
            run(HA.loads(g, (0, 1, 2, 3, 6, 7)[jj]))
    if split:
        g("s_nop 0")
        outv_addr(g, 16, 1)
        run(HA.start_x(g, 0, 5))
        g.stamp(8)
        ex, pend = {}, []
        def f(m):
            if m % 64 == 7 and m > 63:
                j = 2 * (m // 64 - 1)
                pend.extend(outv_items(g, j, j // 2, opt.get("stH", "sc1"), Q=[HA.aq(j + q // 2, q % 2) for q in range(4)]))
            if m % 4 >= 2:
                for _ in range(opt.get("hper", 2)):
                    if pend: pend.pop(0)()
        HA.phase(g, {m: (lambda m=m: f(m)) for m in range(256)})
        assert not pend
        g.stamp(9)
        g("s_nop 7")
        run(outv_items(g, 6, 3, opt.get("stH", "sc1"), Q=[HA.aq(6 + q // 2, q % 2) for q in range(4)]))
    g.stamp(7)
    barsA = g.bars
    g("s_branch L_fin")

    g.lg, g.vm, g.bars = [], vmB, ["w0", "x0"] if wA else ["x0"]
    g("L_roleB:")
    def task_read():
        assert not any(t == "task" for _, t in g.vm)
        for n in range(3):
            g(f"ds_read_b64_tr_b16 v[{28+4*n}:{29+4*n}], v{26 + n // 2} offset:{4096*n}")
            g(f"ds_read_b64_tr_b16 v[{30+4*n}:{31+4*n}], v{26 + n // 2} offset:{4096*n + 2048}")
        g(f"v_lshl_or_b32 v48, v49, 16, v48")
        g("s_waitcnt lgkmcnt(0)")
    def task_store():
        if opt.get("psc", 0):
            g(f"s_bitcmp1_b32 s{sE}, 4")
            g(f"s_cselect_b32 s{sT1}, s{sC}, 1.0")
            for r in range(28, 36):
                g(f"v_lshlrev_b32 v50, 16, v{r}")
                g(f"v_and_b32 v51, 0xffff0000, v{r}")
                g(f"v_mul_f32 v50, s{sT1}, v50")
                g(f"v_mul_f32 v51, s{sT1}, v51")
                g(f"v_cvt_pk_bf16_f32 v{r}, v50, v51")
        g.vmem(f"buffer_store_dword v48, v41, s[{sW2}:{sW2+3}], 0 offen sc0 sc1", tag="clr")
        for n in range(3):
            g.vmem(f"buffer_store_dwordx4 {R(28+4*n)}, v{45+n}, s[{sW2}:{sW2+3}], s{(sD1, sD1, sD2)[n]} offen sc0 sc1", tag="clr")
    if tk == 2 and opt.get("tpre", 1):
        task_load()
    g.barrier("r0")
    if tk == 2 and not opt.get("tpre", 1):
        task_load()
    x_issue(win)
    g(f"s_and_b32 s{sGrp}, s{sTile}, 0xfc")
    g(f"s_lshl_b32 s{sT1}, s{sW}, 9")
    g(f"v_lshlrev_b32 v21, 3, v0")
    g(f"v_mov_b32 v22, -1")
    g(f"v_mov_b32 v23, -1")
    g.vmem(f"buffer_store_dwordx2 v[22:23], v21, s[{sWS}:{sWS+3}], s{sT1} offen {opt.get('tfl', 'sc0 sc1')}", tag="clr")
    g.stamp(1)
    def ready():
        g(f"s_mov_b32 s{sT2}, {opt.get('spin', 4000000)}")
        g.wait(regs=[22])
        g.point("rdy_")
        if opt.get("p1", 1):
            assert pk < 7 and "1" not in str(opt.get("wk", "5"))
            g(f"s_cmp_lg_u32 s{sW}, 0")
            g("s_cbranch_scc1 L_rdy_ok")
        g("L_rdy:")
        g(f"v_cmp_lt_u32 vcc, v22, v23")
        g(f"s_sub_u32 s{sT2}, s{sT2}, 1")
        g("s_cbranch_scc1 L_rdy_ok")
        g("s_cbranch_vccz L_rdy_ok")
        g(f"buffer_load_dword v22, v21, s[{sDBG}:{sDBG+3}], 0 offen sc0 sc1")
        g("s_waitcnt vmcnt(0)")
        g("s_branch L_rdy")
        g("L_rdy_ok:")
        g.point("rdy")
    pk = opt.get("pk", 6) if d1 else 7
    ak = opt.get("ak", 2)
    for kp in range(1, 8):
        g.wait(vm=("x", kp))
        if kp == ak:
            g.wait(vm="clr")
        g.barrier(f"x{kp}")
        if kp in (3, 7) and not opt.get("hd"):
            g.stamp({0: 1, 3: 8, 7: 9}[kp])
        if kp == tk:
            task_read()
            task_store()
        if kp == ak:
            assert not any(t == "clr" for _, t in g.vm)
            assert full
            g(f"s_and_b32 s{sT1}, s{sWg}, 1")
            g(f"s_or_b32 s{sT1}, s{sT1}, s{sW}")
            g("s_cbranch_scc1 L_noann")
            g(f"s_and_b32 s{sT1}, s{sTile}, 3")
            g(f"s_lshl_b32 s{sT1}, 1, s{sT1}")
            if "a" not in str(opt.get("abl", "")):
                g(f"s_atomic_or s{sT1}, s[{sDBG}:{sDBG+1}], s{sGrp}")
            g("L_noann:")
            if oddp:
                assert odd_state == ([t for _, t in g.vm], g.bars), (odd_state, g.vm, g.bars)
        if kp + win < 8:
            g.barrier(f"r{kp}")
        if kp == pk - 1:
            g(f"v_bfe_u32 v23, v0, 3, 1")
            g(f"v_add_u32 v23, -1, v23")
            g(f"v_and_b32 v23, 15, v23")
            g(f"s_lshl_b32 s{sT2}, s{sW}, {20 if opt.get('p1', 1) else 32}")
            g(f"v_lshlrev_b32 v21, 2, v0") if not opt.get("p1", 1) else g(f"v_lshl_add_u32 v21, v0, 2, s{sT2}")
            g.vmem(f"buffer_load_dword v22, v21, s[{sDBG}:{sDBG+3}], 0 offen sc0 sc1", [22])
        if kp + win < 8:
            x_issue(kp + win)
        if kp == pk:
            ready()
        if "1" in str(opt.get("wk", "5")) or not d1:
            if d1:
                nb = -(-32 // (8 - pk))
                if kp >= pk: swarm(later[(kp - pk) * nb:(kp - pk + 1) * nb])
            elif 2 <= kp < 6:
                swarm(later[(kp - 2) * nb:(kp - 1) * nb])
    g.drain(vm=True)
    def idle_start(name, own):
        run(start_x(g, own))
        g.barrier(name + "a")
        run(start_a(g, own))
        g.barrier(name + "b")
        g("s_setprio 1")
        run(start_b(g, own))
    if d1:
        run(P1.start_w(g))
        g("s_waitcnt lgkmcnt(0)")
        run(P1.start_x(g))
        g.barrier("h0")
        g.stamp(2)
        direct_phase(g, P1, reset=True)
    else:
        g("s_waitcnt lgkmcnt(0)")
        idle_start("h0", P[1])
        g.stamp(2)
        def h1():
            g.wait(lg=("rb", 7))
            g.barrier("h1")
        mfma_phase(g, P[1], None, None, extra={(7, opt.get("h1g", 20)): h1})
    g.stamp(3)
    e_phase(g, 1, 0, pre=P3.start_w(g) + P3.start_x(g), warm=e_warm(3), after_tile=lambda e, j: e.q2.append(sw(4 * j, 32768 + j * 2048)))
    g.wait(lg="sw")
    g.stamp(4)
    def h3():
        assert not any(t == "sw" for _, t in g.lg)
        g.barrier("h3")
    ex = {(7, opt.get("h3g", 30)): h3}
    if split:
        for n, f in enumerate(HB.loads(g, 0) + HB.loads(g, 1)):
            ex[(7, 8 * (n // 2) + 3 + 2 * (n % 2))] = f
    direct_phase(g, P3, extra=ex)
    g.stamp(5)
    def vB(e, j):
        if j == opt.get("vtile", 4):
            g.barrier("V")
            g_addr(g)
    def yB(e, j):
        e.q2.append(sw(4 * j, j * 2048))
        if j in yl:
            def f():
                g.wait(lg="sw")
                g.barrier(f"Y{j}")
            e.q2 += [lambda: None] * opt.get("ydel", 2) + [f]
    if split:
        np4 = opt.get("np4", 2)
        pre4 = [f for kp in range(2, 2 + np4) for f in HB.loads(g, kp)] + HB.start_x(g, 0, 3)
        e_phase(g, 3, 0, pre4=pre4, glu_tile=vB, after_tile=yB, tw=0)
        run(HB.start_x(g, 3, 5) + [f for kp in range(2 + np4, 8) for f in HB.loads(g, kp)])
        outv_addr(g, 88, 0)
        g.stamp(6)
        HB.phase(g, {opt.get("hbp", 66): lambda: g("s_setprio 2")})
        g.stamp(7)
        g("s_setprio 0")
        g("s_nop 6")
        for jp in range(4):
            run(outv_items(g, 2 * jp, jp, opt.get("stH", "sc1"), inflight=opt.get("inflB"), Q=[HB.aq(2 * jp + q // 2, q % 2) for q in range(4)]))
    else:
        e_phase(g, 3, 0, pre=GB.start_w(g) + GB.start_x(g), glu_tile=vB,
                warm=e_warm(5) if opt.get('w5', 2) == 3 else [], after_tile=yB, tw=0)
        outv_addr(g)
        GB.merge = opt.get("merge", 2)
        if GB.merge and opt.get("early7", 1):
            GB.early7 = True
            GB.soff(g, 7, 0); GB.soff(g, 7, 1)
            for f in range(8): GB.load(g, 7, f)
            GB.soff(g, 1, 0); GB.soff(g, 1, 1)
        g.stamp(6)
        ex = {}
        for n in range(len(zg)):
            ex[(n, opt.get("zat", 30))] = (lambda n=n: g.barrier(f"Z{n}"))
        pend = out_interleave(g, ex, GB, [int(c) for c in str(opt.get("oper", 2 if GB.merge else 4))], 7, opt.get("stB", "nt"), opt.get("outB", 2))
        direct_phase(g, GB, extra=ex)
        g.stamp(7)
        if len(pend) < 8:
            g("s_nop 7")
        run(pend)
        run(outv_items(g, 7, 7, opt.get("stB", "nt"), opt.get("outB", 2)))
    assert g.bars == barsA, (g.bars, barsA)
    g("L_fin:")
    if stamps and stamps != 4:
        g("s_waitcnt vmcnt(0)")
        g("s_memrealtime s[98:99]")
        g(f"s_mem{'real' if stamps == 3 else ''}time s[100:101]")
        g(f"s_add_u32 s4, s40, {STAMP_OFF}\ns_addc_u32 s5, s41, 0\ns_mov_b32 s6, 0x100000\ns_mov_b32 s7, 0x20000")
        g(f"s_lshl_b32 s8, s{sWg}, 3\ns_add_u32 s8, s8, s{sWv}\ns_lshl_b32 s8, s8, 7")
        g("s_waitcnt lgkmcnt(0)")
        g("s_mov_b64 exec, 1")
        g("v_mov_b32 v4, 0")
        g("s_getreg_b32 s10, hwreg(HW_REG_XCC_ID)\ns_mov_b32 s11, 0")
        order = [74, 98, 76, 100] + [76 + 2 * n for n in range(1, 10)] + [10]
        for n, s in enumerate(order):
            g(f"v_mov_b32 v0, s{s}\nv_mov_b32 v1, s{s+1}")
            g(f"buffer_store_dwordx2 v[0:1], v4, s[4:7], s8 offen offset:{8*n}")
            g("s_nop 1")
    g("L_end:")
    g("s_endpgm")
    g("L_code_end:")
    g('.section .rodata,"a"')
    g(".p2align 6")
    g(f".amdhsa_kernel {KN}_kernel")
    g.l += ["  .amdhsa_next_free_vgpr 256", "  .amdhsa_next_free_sgpr 102", "  .amdhsa_accum_offset 256",
            "  .amdhsa_group_segment_fixed_size 0", "  .amdhsa_kernarg_size 56", "  .amdhsa_user_sgpr_count 2",
            "  .amdhsa_user_sgpr_kernarg_segment_ptr 1", "  .amdhsa_system_sgpr_workgroup_id_x 1",
            f"  .amdhsa_float_denorm_mode_32 {opt.get('dn', 3)}"]
    g(".end_amdhsa_kernel")
    t = g.text()
    if stamps and opt.get("probe", 1):
        t = t.replace("; @launch grid=(256,1,1) block=(512,1,1) lds=163840",
                      f"; @launch kernel={KN}_kernel grid=(256,1,1) block=(512,1,1) lds=163840\n; @launch kernel=probe_kernel grid=(1,1,1) block=(64,1,1) lds=0")
        a = [".p2align 8", ".globl probe_kernel", ".type probe_kernel,@function", "probe_kernel:",
             "s_memrealtime s[8:9]", "s_load_dwordx2 s[4:5], s[0:1], 48", "s_waitcnt lgkmcnt(0)",
             f"s_add_u32 s4, s4, {STAMP_OFF}", "s_addc_u32 s5, s5, 0", "s_mov_b32 s6, 0x100000", "s_mov_b32 s7, 0x20000",
             "v_mov_b32 v2, s8", "v_mov_b32 v3, s9", "v_mov_b32 v1, 120", "buffer_store_dwordx2 v[2:3], v1, s[4:7], 0 offen", "s_endpgm"]
        t = t.replace('.section .rodata,"a"', "\n".join(a) + '\n.section .rodata,"a"')
        t += ".p2align 6\n.amdhsa_kernel probe_kernel\n  .amdhsa_next_free_vgpr 16\n  .amdhsa_next_free_sgpr 32\n  .amdhsa_accum_offset 16\n" \
             "  .amdhsa_group_segment_fixed_size 0\n  .amdhsa_kernarg_size 56\n  .amdhsa_user_sgpr_count 2\n" \
             "  .amdhsa_user_sgpr_kernarg_segment_ptr 1\n  .amdhsa_system_sgpr_workgroup_id_x 1\n.end_amdhsa_kernel\n"
    return t


def parse(args):
    opt = {}
    for a in args:
        k, v = a.split("=", 1)
        try:
            v = int(v)
        except ValueError:
            v = v.replace("+", " ")
        opt[k] = v
    return opt


if __name__ == "__main__":
    open(sys.argv[1], "w").write(build(parse(sys.argv[2:])))
```

```python
import sys

KN = "standalone__conformer_conv_module__speech"
STAMP_OFF = 255 * 1024 * 1024

HEAD = """; Kernarg layout for this problem (56 bytes, ptrs only, base s[0:1]):
;   offset   0: d_in[0] x  shape=(2, 16000, 512) dtype=bfloat16 strides=(16384000, 1024, 2) contiguous=True
;   offset   8: d_in[1] w_pw1  shape=(512, 1024) dtype=bfloat16 strides=(2048, 2) contiguous=True
;   offset  16: d_in[2] dw  shape=(5, 512) dtype=bfloat16 strides=(1024, 2) contiguous=True
;   offset  24: d_in[3] w_pw2  shape=(512, 512) dtype=bfloat16 strides=(1024, 2) contiguous=True
; Override launch geometry by editing the next line (default: block=256,
"""

DOC = """
;
; Fused  out = silu(dwconv5(glu(x @ W1))) @ W2.   One workgroup per CU, 128 or 126 output rows on 252 of them (128-row tile, row u = 8*lane15 + tile).
;   phase   0          1          2          3          4           5
; x lives in LDS (128 KB, LDS-DMA, swizzled); silu output fragments replace it for GEMM2.
; Phase 0 transposes W1 through a small LDS ring (ds_read_b64_tr_b16).  Meanwhile every even workgroup re-lays a slice of the
; The depthwise conv is one MFMA per 4 outputs (banded weights x time-packed GLU output).  The four (two) GLU rows a tile lacks
; come from the next tile's workgroup through a mailbox in d_ws that is emptied at the start of each launch.
"""

def ACC(i, j): return 4 * (i * 8 + j)
VH = 128
VWX, VWY, VWZ = 160, 176, 192
VXR = 208
vDc, vW0, vW1, vD1 = 240, 242, 243, 244
def DW(i, h, p): return 160 + 32 * (p % 2) + 8 * i + 4 * h
def DX(n, h): return 224 + 8 * (n % 3) + 4 * h
vX0, vX1, vS = 248, 249, 250
vG8, vM0, vM1, vEX = 251, 252, 253, 254
def AF(ct, r): return 192 + 16 * ct + 4 * r
def TP(ct, r, q):
    n = 4 * ct + r
    return (160 + 6 * n if n < 5 else 224 + 6 * (n - 5)) + q
def YY(ct, r, j): return 64 + 32 * ct + 8 * r + j
VEXP = 192
VTMP, VIMP = 32, 40
CTOFF = 0x140000
sX, sW1, sW2, sO, sDW, sWS, sDBG, sWE = 4, 8, 12, 16, 20, 24, 28, 32
sW64, sHo, sW128, sSb = 36, 37, 38, 39
sRows = 50
sRing = 44
sT0, sT1, sT2, sT3 = 46, 47, 48, 49
sC, sCi = 50, 51
sWv, sW, sTile, sTau, sWg, sGrp = 52, 53, 54, 55, 56, 57
sWP = 60
sWq = 58
sK = 66
sSl = 96
sCode = 16
KA = 76
QORD = (1, 2, 0, 3)
WPOFF = 1 << 20

OOB = 0x7f000000
SCR = 7 * 16384


class Gen:
    def __init__(self, opt):
        self.l = []
        self.opt = opt
        self.lg = []
        self.vm = []
        self.bars = []

    def __call__(self, s=""):
        for line in s.split("\n"):
            self.l.append(line if line.endswith(":") or line.startswith(".") or line.startswith(";") else "    " + line)

    def text(self):
        return "\n".join(self.l) + "\n"

    def ds(self, text, regs=(), tag=None):
        if self.opt.get("nosw") and tag == "sw":
            return
        if len(self.lg) >= 15:
            self("s_waitcnt lgkmcnt(11)"); self.lg = self.lg[-11:]
        self(text); self.lg.append((set(regs), tag))

    def vmem(self, text, regs=(), tag=None):
        abl = str(self.opt.get("abl", ""))
        if ("s" in abl and tag == "clr" and "dwordx4" in text) or ("c" in abl and tag == "clr" and "dwordx2" in text) or \
           ("p" in abl and regs == [22]) or ("d" in abl and regs == [10]) or ("t" in abl and tag == "task"):
            return
        self(text); self.vm.append((set(regs), tag))

    def _idx(self, q, regs, tag):
        idx = -1
        for n, (r, t) in enumerate(q):
            if (regs and (r & set(regs))) or (tag is not None and t == tag):
                idx = n
        return idx

    def wait(self, regs=(), lg=None, vm=None):
        parts = []
        i = self._idx(self.vm, regs, vm)
        if i >= 0:
            n = min(len(self.vm) - 1 - i, 63)
            parts.append(f"vmcnt({n})"); self.vm = self.vm[len(self.vm) - n:] if n else []
        i = self._idx(self.lg, regs, lg)
        if i >= 0:
            n = min(len(self.lg) - 1 - i, 15)
            parts.append(f"lgkmcnt({n})"); self.lg = self.lg[len(self.lg) - n:] if n else []
        if parts:
            self("s_waitcnt " + " ".join(parts))

    def drain(self, vm=False, lg=False):
        parts = []
        if vm and self.vm:
            parts.append("vmcnt(0)"); self.vm = []
        if lg and self.lg:
            parts.append("lgkmcnt(0)"); self.lg = []
        if parts:
            self("s_waitcnt " + " ".join(parts))

    def barrier(self, name):
        self.point(name + "_")
        self(f"s_barrier"); self.bars.append(name)
        self.point(name)

    def point(self, name):
        pts = self.opt.get("pts")
        if pts and name in pts.split():
            n = pts.split().index(name) + 1
            self(f"s_mem{'real' if self.opt['stamps'] == 3 else ''}time s[{76+2*n}:{77+2*n}]")

    def stamp(self, n):
        if self.opt.get("pts"):
            return self.point(f"s{n}")
        if self.opt.get("stamps") in (1, 3):
            self(f"s_mem{'real' if self.opt['stamps'] == 3 else ''}time s[{76+2*n}:{77+2*n}]")
            self("s_waitcnt lgkmcnt(0)")
            self.lg = []


def R(a, n=4): return f"v[{a}:{a+n-1}]"
def rs(a, n=4): return list(range(a, a + n))


def wreg(i, h, p, kind="P"):
    if i < 2:
        return (VWX if p % 2 == 0 else VWY) + 8 * i + 4 * h
    return VWZ + 8 * (i - 2) + 4 * h


def xreg(j, h): return VXR + 8 * (j % 4) + 4 * h


def kconst(kind, ab, m):
    return 16 * m * 2048 + ab * 1024 - m * 1024


def set_kconst(g, kind):
    return [lambda ab=ab, m=m: g(f"s_mov_b32 s{sK + 4*ab + m}, {kconst(kind, ab, m)}") for ab in range(2) for m in range(4)]


class Stream:
    def __init__(self, kind, arg):
        self.kind, self.arg = kind, arg

    def advance(self, g, kp, fresh=False):
        g(f"v_add_u32 v{vDc}, {kp * 131072 + self.arg * 256}, v{vD1}")

    def dma(self, g, ab, m, tag, fl=""):
        if g.opt.get("nodma"):
            return
        srd = sW1
        g.vmem(f"buffer_load_dwordx4 v{vDc}, s[{srd}:{srd+3}], s{sK + 4*ab + m} offen offset:{m*1024} {fl} lds", tag=tag)


def set_m0(g, ab):
    g(f"s_mov_b32 m0, s{sRing + ab}")


def tr_read(g, i, h, q, p, tag, kind="P"):
    d = wreg(i, h, p, kind) + 2 * q
    off, base = (i >> 1) * 4096 + h * 2048 + q * 256, vW0 + (i & 1)
    g.ds(f"ds_read_b64_tr_b16 {R(d, 2)}, v{base} offset:{off}", rs(d, 2), tag)


def part_reads(kind, ab):
    return [(i, h, q) for i in ((0, 1) if ab == 0 else (3, 2)) for h in range(2) for q in range(2)]


def x_read(g, kind, kp, j, h, d=None):
    if d is None:
        d = xreg(j, h)
    if kind == "P":
        off, base = (kp * 8 + j) * 2048 % 65536, vX0 + h
    else:
        off = (1 - (kp >> 2)) * 32768 + (kp & 1) * 16384 + j * 2048 + h * 1024
        base = vX0 + (0, 1, 1, 0)[kp >> 1]
    g.ds(f"ds_read_b128 {R(d)}, v{base} offset:{off}", rs(d))


def chain_order(jp):
    j0, j1 = 2 * jp, 2 * jp + 1
    if jp % 2 == 0:
        return [(j0, 0), (j0, 1), (j1, 1), (j1, 0), (j1, 2), (j1, 3), (j0, 3), (j0, 2)]
    return [(j0, 2), (j0, 3), (j1, 3), (j1, 2), (j1, 0), (j1, 1), (j0, 1), (j0, 0)]


def mfma(g, acc, A, B, first):
    g.wait(regs=rs(A) + rs(B))
    c = "0" if first else R(acc)
    if g.opt.get("al", 0) & 1:
        g(".p2align 3")
    if g.opt.get("al", 0) & 4 and not g.l[-1].lstrip().startswith(("v_mfma", "ds_", "buffer_")):
        g(".p2align 3"); g("s_nop 0")
    g(f"v_mfma_f32_16x16x32_bf16 {R(acc)}, {R(A)}, {R(B)}, {c}")


def start_a(g, own):
    it = [lambda i=i, h=h, q=q: tr_read(g, i, h, q, 0, ("ra", 0), own.kind) for i, h, q in part_reads(own.kind, 0)]
    it.append(lambda: own.advance(g, 1, fresh=True))
    it.append(lambda: set_m0(g, 0))
    it += [None] * g.opt.get("sgap", 3)
    it.append(lambda: g.wait(lg=("ra", 0)))
    for m in range(4):
        it.append(lambda m=m: own.dma(g, 0, m, ("a", 1)))
        it += [None] * (g.opt.get("sgap", 3) - 1)
    return it


def start_x(g, own):
    return [lambda j=j, h=h: x_read(g, own.kind, 0, j, h) for j in range(2) for h in range(2)]


def start_b(g, own):
    return [lambda i=i, h=h, q=q: tr_read(g, i, h, q, 0, ("rb", 0), own.kind) for i, h, q in part_reads(own.kind, 1)] + \
           [lambda: set_m0(g, 1)]


def run(items):
    for f in items:
        if f: f()


def mfma_phase(g, own, nxt, hname, xbar=None, first=False, extra=None):
    o = g.opt
    kind = own.kind
    extra = extra or {}

    def st(p):
        return (own, p) if p < 8 else ((nxt, 0) if (nxt and p == 8) else (None, 0))

    for kp in range(8):
        gaps = {m: [] for m in range(64)}
        late = (first and o.get("late0", 1))
        for jp in range(4):
            nkp, njp = (kp, jp + 1) if jp < 3 else (kp + 1, 0)
            if nkp > 7:
                continue
            slots = [16 * jp + n for n in ((0, 1, 2, 3) if (jp % 2 or (late and jp)) else (0, 1, 4, 5))]
            for n in range(4):
                j, h = 2 * njp + n // 2, n % 2
                def f(nkp=nkp, j=j, h=h, n=n, jp=jp):
                    if n == 0 and jp == 3 and xbar:
                        xbar(nkp)
                    x_read(g, kind, nkp, j, h)
                gaps[slots[n]].append(f)
            gaps[16 * jp + 15].append(lambda njp=njp: g.wait(regs=rs(xreg(2 * njp, 0), 16)))
        if kind == "P" and kp in (3, 7):
            k = "0x10000" if kp == 3 else "0xffff0000"
            gaps[40].append(lambda k=k: g(f"v_add_u32 v{vX0}, {k}, v{vX0}"))
            gaps[41].append(lambda k=k: g(f"v_add_u32 v{vX1}, {k}, v{vX1}"))
        s_, p_ = st(kp + 1)
        if s_:
            gaps[2].append(lambda kp=kp: g.wait(lg=("rb", kp)))
            for m, at in enumerate((3, 7, 11, 14)):
                gaps[at].append(lambda m=m, s_=s_, kp=kp: s_.dma(g, 1, m, ("b", kp + 1)))
        if kp < 7:
            a0 = 37 if late else 21
            adv, am0, aw, ad = (45, 46, 49, (50, 54, 58, 61)) if late else (29, 30, 34, (35, 39, 43, 46))
            if not o.get("novm"):
                gaps[a0 - 1].append(lambda kp=kp: g.wait(vm=("a", kp + 1)))
            for n, (i, h, q) in enumerate(part_reads(kind, 0)):
                gaps[a0 + n].append(lambda i=i, h=h, q=q, kp=kp: tr_read(g, i, h, q, kp + 1, ("ra", kp + 1), kind))
            s_, p_ = st(kp + 2)
            if s_:
                gaps[adv].append(lambda s_=s_, p_=p_: s_.advance(g, p_))
                gaps[am0].append(lambda: set_m0(g, 0))
                gaps[aw].append(lambda kp=kp: g.wait(lg=("ra", kp + 1)))
                for m in range(4):
                    gaps[ad[m]].append(lambda m=m, s_=s_, kp=kp: s_.dma(g, 0, m, ("a", kp + 2)))
                gaps[62].append(lambda: set_m0(g, 1))
            if not o.get("novm"):
                gaps[52].insert(0, lambda kp=kp: g.wait(vm=("b", kp + 1)))
            for n, (i, h, q) in enumerate(part_reads(kind, 1)):
                gaps[53 + n].insert(0, lambda i=i, h=h, q=q, kp=kp: tr_read(g, i, h, q, kp + 1, ("rb", kp + 1), kind))
        if kp == 7 and nxt:
            def fa():
                g.wait(vm=("a", 8), lg="sw")
                g.barrier(hname + "a")
            gaps[o.get("handa", 20) if not late else 36].append(fa)
            def fb():
                g.drain(vm=True, lg=True)
                g.barrier(hname + "b")
            gaps[o.get("handb", 50)].append(fb)
        if kp == 0 and o.get("prio", 1):
            gaps[o.get("prioat", 13)].append(lambda: g("s_setprio 2"))
        m = 0
        for jp in range(4):
            for (j, i) in chain_order(jp):
                for h in range(2):
                    mfma(g, ACC(i, j), wreg(i, h, kp, kind), xreg(j, h), kp == 0 and h == 0)
                    g.point(f"k{kp}g{m}")
                    for f in gaps[m]:
                        f()
                    if (kp, m) in extra:
                        extra[(kp, m)]()
                    m += 1


class Direct:
    def __init__(self, idx):
        self.idx, self.kind = idx, "PPPGG"[idx]

    def soff(self, g, kp, half):
        src = kp if self.kind == "P" else QORD[kp >> 1] * 2 + (kp & 1)
        g(f"s_mov_b32 s{sT0 + half}, {self.idx * 262144 + src * 8192 + half * 4096}")

    early7 = False
    merge = False

    def seq(self):
        seq = [(n // 8, n % 8) for n in range(64)]
        if self.merge == 1:
            seq = seq[:48] + [(6 + n % 2, n // 2) for n in range(16)]
        if self.merge == 2:
            seq = seq[:40] + [(5 + 2 * (n % 2), n // 2) for n in range(8)] + [(6, j) for j in range(4)] + \
                  [(5 + n % 3, 4 + n // 3) for n in range(12)]
        if self.merge == 3:
            seq = seq[:40] + [(5 + 2 * (n % 2), n // 2) for n in range(6)] + [(6, j) for j in range(3)] + \
                  [(5 + n % 3, 3 + n // 3) for n in range(15)]
        assert sorted(seq) == [(n // 8, n % 8) for n in range(64)]
        return seq

    def wr(self, i, h, kp):
        return VH + 8 * i + 4 * h if (self.merge and kp == 7) else DW(i, h, kp)

    def load(self, g, kp, f):
        if g.opt.get("nodma"):
            return
        d = self.wr(f >> 1, f & 1, kp)
        if g.opt.get("wskip") and 2 <= kp < 7 and (f % 2 or g.opt["wskip"] == 2):
            return
        g.vmem(f"buffer_load_dwordx4 {R(d)}, v{vS}, s[{sWP}:{sWP+3}], s{sT0 + (f >> 2)} offen offset:{(f & 3) * 1024} {g.opt.get('wpfl', 'sc1')}".rstrip(), rs(d))

    def start_w(self, g):
        it = [lambda: self.soff(g, 0, 0), lambda: self.soff(g, 0, 1)]
        for f in range(8):
            it += [lambda f=f: self.load(g, 0, f), None, None]
        return it + [lambda: self.soff(g, 1, 0), lambda: self.soff(g, 1, 1)]

    def start_x(self, g):
        return [lambda j=j, h=h: x_read(g, self.kind, 0, j, h, DX(j, h)) for j in range(2) for h in range(2)]


def direct_phase(g, own, xbar=None, extra=None, reset=False):
    g(f"; ---- phase {own.idx + 1}: matrix phase, weights straight into registers")
    o = g.opt
    kind = own.kind
    extra = extra or {}
    wat = [int(v) for v in str(o.get("wat", "2 5 10 13 18 21 26 29")).split()]
    g("s_setprio 1")
    seq = own.seq()
    for blk in range(8):
        gaps = {m: [] for m in range(64)}
        for t in range(8):
            n = blk * 8 + t + 2
            if n < 64:
                for h in range(2):
                    def f(n=n, h=h):
                        if h == 0 and xbar:
                            xbar(*seq[n])
                        if o.get("xskip") and n >= 6 and (n % 2 == 1 or o["xskip"] == 2):
                            return
                        x_read(g, kind, seq[n][0], seq[n][1], h, DX(n, h))
                    gaps[8 * t + int(str(o.get('xg', 'x01'))[1 + h])].append(f)
            if n - 1 < 64:
                r = rs(DX(n - 1, 0), 8)
                if seq[n - 1][1] == 0 and not o.get("novm"):
                    r = r + rs(own.wr(0, 0, seq[n - 1][0]), 16 if t == 7 else 32)
                gaps[8 * t + 7].append(lambda r=r: g.wait(regs=r))
        if not o.get("novm"):
            gaps[3].append(lambda blk=blk: g.wait(regs=rs(own.wr(2, 0, seq[8 * blk][0]), 16)))
        if kind == "P" and blk == 3:
            gaps[43].append(lambda: g(f"v_add_u32 v{vX0}, 0x10000, v{vX0}"))
            gaps[44].append(lambda: g(f"v_add_u32 v{vX1}, 0x10000, v{vX1}"))
        if reset and blk == 7:
            gaps[43].append(lambda: g(f"v_add_u32 v{vX0}, 0xffff0000, v{vX0}"))
            gaps[44].append(lambda: g(f"v_add_u32 v{vX1}, 0xffff0000, v{vX1}"))
        if blk < (6 if own.merge else 7):
            for f in range(8):
                at = wat[f] if not (own.merge == 3 and blk == 5) else (2, 3, 4, 5, 6, 10, 11, 12)[f]
                gaps[at].append(lambda f=f, blk=blk: own.load(g, blk + 1, f))
        if own.merge and blk == 4 and not own.early7:
            gaps[30].append(lambda: own.soff(g, 7, 0))
            gaps[31].append(lambda: own.soff(g, 7, 1))
            for f in range(8):
                gaps[min(wat[f] + 32, 58)].append(lambda f=f: own.load(g, 7, f))
        if blk < (5 if own.merge else 6):
            gaps[59].append(lambda blk=blk: own.soff(g, blk + 2, 0))
            gaps[60].append(lambda blk=blk: own.soff(g, blk + 2, 1))
        if blk == o.get("p2b", 3):
            gaps[36].append(lambda: g("s_setprio 2"))
        m = 0
        g.point(f"b{own.idx}{blk}")
        for t in range(8):
            kp, j = seq[blk * 8 + t]
            for i in (range(4) if t % 2 == 0 else range(3, -1, -1)):
                for h in range(2):
                    if o.get("novm"):
                        g.vm = [(set(), tg) for _, tg in g.vm]
                    mfma(g, ACC(i, j), own.wr(i, h, kp), DX(blk * 8 + t, h), kp == 0 and h == 0)
                    for f in gaps[m]:
                        f()
                    if (blk, m) in extra:
                        extra[(blk, m)]()
                    m += 1


class Half:
    def __init__(self, half):
        self.half = half

    def wr(self, kp, i, h):
        base = 128 + 16 * kp if kp < 6 else ((96, 112), (0, 32))[self.half][kp - 6]
        return base + 8 * i + 4 * h

    def aq(self, j, i):
        return ((0, 16, 32, 48), (16, 48, 64, 80))[self.half][j >> 1] + 8 * (j & 1) + 4 * i

    def xr(self, n, h):
        n %= 6
        return (224 + 8 * n if n < 3 else (64, 96)[self.half] + 8 * (n - 3)) + 4 * h

    def loads(self, g, kp):
        src = QORD[kp >> 1] * 2 + (kp & 1)
        it = [lambda: g(f"s_add_u32 s{sT0}, s{sHo}, {4 * 262144 + self.half * 131072 + src * 8192}")]
        for f in range(4):
            d = self.wr(kp, f >> 1, f & 1)
            if not g.opt.get("nodma"):
                it.append(lambda d=d, f=f: g.vmem(f"buffer_load_dwordx4 {R(d)}, v{vS}, s[{sWP}:{sWP+3}], s{sT0} offen offset:{f * 1024} sc1", rs(d)))
        return it

    def seq(self):
        return [(kp, j) for kp in range(8) for j in range(8)] if self.half == 0 else [(kp, j) for j in range(8) for kp in range(8)]

    def xread(self, g, n, h):
        kp, j = self.seq()[n]
        x_read(g, "G", kp, j, h, self.xr(n, h))

    def start_x(self, g, lo, hi):
        return [lambda n=n, h=h: self.xread(g, n, h) for n in range(lo, hi) for h in range(2)]

    def phase(self, g, extra):
        seq = self.seq()
        g("s_setprio 1")
        m = 0
        for n, (kp, j) in enumerate(seq):
            if n % 16 == 0:
                g.point(f"H{self.half}{n // 16}")
            for t, i in enumerate((0, 1) if n % 2 == 0 else (1, 0)):
                for h in range(2):
                    mfma(g, self.aq(j, i), self.wr(kp, i, h), self.xr(n, h), kp == 0 and h == 0)
                    gp = 2 * t + h
                    if gp < 2 and n + 5 < 64:
                        self.xread(g, n + 5, gp)
                    if gp == 3 and n % 2 == 1 and n + 1 < 64:
                        r = rs(self.xr(n + 1, 0), 8) + rs(self.xr(n + 2, 0), 8)
                        for nn in (n + 1, n + 2):
                            r += rs(self.wr(seq[nn][0], 0, 0), 16)
                        g.wait(regs=r)
                    if m in extra:
                        extra[m]()
                    m += 1


def lane(g, v):
    g(f"v_mbcnt_lo_u32_b32 v{v}, -1, 0")
    g(f"v_mbcnt_hi_u32_b32 v{v}, -1, v{v}")


class Mixer:
    def __init__(self, g):
        self.g, self.q, self.every, self.n = g, [], 2, 0
        self.q2, self.n2 = [], 0
        self.q3, self.n3 = [], 0

    def __call__(self, s):
        if self.g.opt.get("al", 0) & 2 and s.startswith(("v_fma", "v_cvt_pk", "v_mov_b32_dpp", "v_cndmask_b32_dpp")):
            self.g(".p2align 3")
        self.g(s)
        self.n += 1
        self.n3 += 1
        if self.q3 and self.n3 % self.ev3 == 4:
            self.q3.pop(0)()
        if self.q2:
            self.n2 += 1
            if self.n2 >= self.g.opt.get("wdelay", 8):
                self.q2.pop(0)(); self.n2 = 0
        if self.q and self.n % self.every == 0:
            f = self.q.pop(0)
            if f: f()

    def flush(self):
        while self.q2:
            self.q2.pop(0)()
        self.n2 = 0
        while self.q:
            f = self.q.pop(0)
            if f: f()


def glu(e, pairs, scaled=False):
    if e.g.opt.get("noE"): return
    if not scaled:
        for a, b in pairs: e(f"v_mul_f32 v{b}, s{sC}, v{b}")
    for a, b in pairs: e(f"v_exp_f32 v{b}, v{b}")
    for a, b in pairs: e(f"v_fma_f32 v{b}, v{b}, s{sCi}, s{sCi}")
    for a, b in pairs: e(f"v_rcp_f32 v{b}, v{b}")
    for a, b in pairs: e(f"v_mul_f32 v{a}, v{a}, v{b}")


HFL = ["sc0 sc1"]
def halo_loads(ph):
    return [f"buffer_load_dwordx4 {R(VIMP + 4*ct)}, v{vG8}, s[{sWS}:{sWS+3}], s{sW128} offen offset:{ph*512 + ct*64} {HFL[0]}" for ct in range(2)]


def halo_check(g, ph):
    lab = f"L_poll{ph}"
    g(f"s_mov_b32 s{sT2}, {g.opt.get('spin', 4000000)}")
    g.wait(regs=rs(VIMP, 8))
    g(f"{lab}:")
    g(f"v_max3_u32 v{VTMP}, v{VIMP}, v{VIMP+1}, v{VIMP+2}")
    g(f"v_max3_u32 v{VTMP+1}, v{VIMP+3}, v{VIMP+4}, v{VIMP+5}")
    g(f"v_max3_u32 v{VTMP}, v{VTMP}, v{VIMP+6}, v{VIMP+7}")
    g(f"v_max_u32 v{VTMP}, v{VTMP}, v{VTMP+1}")
    g(f"v_cmp_eq_u32 vcc, -1, v{VTMP}")
    g(f"s_sub_u32 s{sT2}, s{sT2}, 1")
    g(f"s_cbranch_scc1 {lab}_ok")
    g(f"s_cbranch_vccz {lab}_ok")
    for t in halo_loads(ph):
        g(t)
    g("s_waitcnt vmcnt(0)")
    g(f"s_branch {lab}")
    g(f"{lab}_ok:")


def conv_mfma(ct, r, half):
    return f"v_mfma_f32_16x16x32_bf16 {R(YY(ct, r, 4*half))}, {R(AF(ct, r))}, {R(TP(ct, r, 2*half))}, 0"


def e_phase(g, ph, dst, pre=(), after_tile=None, glu_tile=None, silu_tile=None, warm=(), tw=3, pre4=()):
    o = g.opt
    halo = o.get("halo", 1)
    noE = o.get("noE")
    skip = o.get("skip", 1)
    e = Mixer(g)
    prio = 0
    g("s_setprio 0")
    g(f"s_movk_i32 s{sT3}, {ph * 8192}")
    g("s_nop 5")
    el = [(ct, r) for ct in range(2) for r in range(4)]
    for ct, r in el:
        e.q.append(lambda ct=ct, r=r: g.vmem(
            f"buffer_load_dwordx4 {R(AF(ct, r))}, v{vM0}, s[{sDW}:{sDW+3}], s{sT3} offen offset:{ct*1024 + r*64} sc1", rs(AF(ct, r))))
    e.q = [None] * 2 + e.q
    e.q3 = list(warm); e.ev3 = 12 if len(e.q3) < 40 else 6
    e.every = o.get('afev', 8)
    def pack(q): return [f"v_cvt_pk_bf16_f32 v{TP(ct, r, q)}, v{ACC(ct, 2*q)+r}, v{ACC(ct, 2*q+1)+r}" for ct, r in el]
    for n_, j in enumerate((2, 3, 0, 1, 4, 5, 6, 7)):
        glu(e, [(ACC(ct, j) + r, ACC(2 + ct, j) + r) for ct in range(2) for r in range(4)], ph > 0 and o.get('psc', 0))
        if n_ == 3:
            for t in pack(1) + pack(0): e(t)
            if halo:
                for ct, r in el:
                    e(f"v_min_u32 v{ACC(2+ct, 2)+r}, -2, v{TP(ct, r, 1)}")
                g(f"s_cmp_lg_u32 s{sWE+2}, 4096")
                g(f"s_cbranch_scc1 L_exp2{ph}")
                for ct, r in el:
                    g(f"v_min_u32_dpp v{ACC(2+ct, 2)+r}, v{TP(ct, r, 0)}, v{vM1} row_shr:1 row_mask:0xf bank_mask:0xf")
                g(f"L_exp2{ph}:")
                def ex_():
                    for ct in range(2):
                        g.vmem(f"buffer_store_dwordx4 {R(ACC(2+ct, 2))}, v{vEX}, s[{sWE}:{sWE+3}], s{sW128} offen offset:{ph*512 + ct*64} {HFL[0]}")
                assert not e.q2
                if o.get("exd", 5):
                    e.q2 += [lambda: None] * (o.get("exd", 5) - 1) + [ex_]
                else:
                    ex_()
        if glu_tile:
            glu_tile(e, n_)
    e.flush()
    if not noE:
        p1, p2 = pack(2), pack(3)
        fill = [t for n in range(8) for t in (p1[n], p2[n])]
        for t in fill[:4]: e(t)
        g.wait(regs=rs(192, 32))
        g(f"s_setprio {o.get('cprio', 3)}")
        for n, (ct, r) in enumerate(el):
            g(conv_mfma(ct, r, 0))
            for t in fill[2*n + 4:2*n + 6]: e(t)
            if n == 5: g("s_nop 0")
        g("s_setprio 0")
    if halo and o.get("ti", 1) < 0:
        for ct, t in enumerate(halo_loads(ph)):
            g.vmem(t, rs(VIMP + 4 * ct))
    while e.q3:
        e.q3.pop(0)()
    ta = o.get("ta", 6)
    ti, tc = o.get("ti", 1), o.get("tc", 3)
    for j in range(8):
        if silu_tile:
            silu_tile(e, j)
        if j == tw and warm:
            g("s_waitcnt lgkmcnt(0)"); g.lg = []
        if j == ti:
            if halo:
                for ct, t in enumerate(halo_loads(ph)):
                    g.vmem(t, rs(VIMP + 4 * ct))
        if j == 4 and pre4:
            assert tc < 4
            e.q += list(pre4); e.every = o.get("p4ev", 8); e.n = 0
        if j == ta and pre4:
            g("s_setprio 1"); prio = 1
        elif j == ta:
            g("s_setprio 1"); prio = 1
            e.q += list(pre); e.every = 2; e.n = 0
        ys = [YY(ct, r, j) for ct, r in el]
        mm = []
        if j == tc and not noE:
            for ct, r in el:
                e(f"v_mov_b32_dpp v{TP(ct, r, 5)}, v{TP(ct, r, 1)} row_shl:1 row_mask:0xf bank_mask:0xf bound_ctrl:1")
            if halo:
                halo_check(g, ph)
            g(f"s_mov_b32 vcc_lo, {0x80008000 if halo else 0}")
            g(f"s_mov_b32 vcc_hi, {0x80008000 if halo else 0}")
            if halo:
                g(f"s_cmp_lg_u32 s{sWS+2}, 4096")
                g(f"s_cbranch_scc1 L_imp2{ph}")
                for n, (ct, r) in enumerate(el):
                    g(f"v_mov_b32_dpp v{TP(ct, r, 5)}, v{VIMP+n} row_shr:15 row_mask:0xf bank_mask:0xf")
                g(f"L_imp2{ph}:")
            for n, (ct, r) in enumerate(el):
                e(f"v_cndmask_b32_dpp v{TP(ct, r, 4)}, v{TP(ct, r, 0)}, v{VIMP+n}, vcc row_shl:1 row_mask:0xf bank_mask:0xf bound_ctrl:1")
            mm = [conv_mfma(ct, r, 1) for ct, r in el]
            g(f"s_setprio {o.get('cprio', 3)}")
        if not noE:
            for n, y in enumerate(ys):
                if mm: g(mm[n])
                e(f"v_exp_f32 v{VTMP+n}, v{y}")
            if mm: g(f"s_setprio {prio}")
            for n, y in enumerate(ys): e(f"v_fma_f32 v{VTMP+n}, v{VTMP+n}, s{sC}, s{sC}")
            for n, y in enumerate(ys): e(f"v_rcp_f32 v{VTMP+n}, v{VTMP+n}")
            for n, y in enumerate(ys): e(f"v_mul_f32 v{y}, v{y}, v{VTMP+n}")
        for n in range(4): e(f"v_cvt_pk_bf16_f32 v{dst+4*j+n}, v{ys[2*n]}, v{ys[2*n+1]}")
        if after_tile:
            after_tile(e, j)
    e.flush()


vG0, vG1, vG2 = vM0, vM1, vEX


def outv_addr(g, t=144, half=None):
    lane(g, t)
    if half is None:
        g(f"s_lshl_b32 s{sT2}, s{sWv}, 7")
    else:
        g(f"s_add_u32 s{sT2}, s{sW64}, {512 + 256 * half}")
    g(f"v_bfe_u32 v{t+1}, v{t}, 1, 3")
    g(f"v_lshl_add_u32 v{vG0}, v{t+1}, 14, s{sT2}")
    g(f"v_bfe_u32 v{t+2}, v{t}, 4, 1")
    g(f"v_lshl_add_u32 v{vG0}, v{t+2}, 5, v{vG0}")
    g(f"v_lshrrev_b32 v{t+2}, 5, v{t}")
    g(f"v_lshl_add_u32 v{vG0}, v{t+2}, {6 if half is None else 10}, v{vG0}")
    g(f"v_and_b32 v{t+2}, 1, v{t}")
    g(f"v_lshl_add_u32 v{vG0}, v{t+2}, 4, v{vG0}")
    g(f"v_add_u32 v{vG1}, 8192, v{vG0}")
    g(f"s_movk_i32 s{sT3}, 4096")
    g(f"s_mov_b32 vcc_lo, 0x55555555")
    g(f"s_mov_b32 vcc_hi, 0x55555555")


def outv_items(g, j, n, fl, mode=2, inflight=None, Q=None):
    Q = Q or [ACC(i, j) for i in range(4)]
    def T(i, d): return Q[i >> 1] + 2 * (i & 1) + d
    it = []
    for i in range(4):
        for d in range(2):
            a = Q[i] + 2 * d
            it.append(f"v_cvt_pk_bf16_f32 v{T(i, d)}, v{a}, v{a+1}")
    if not g.opt.get("nsw", 1):
        for d in range(2):
            for i in (0, 2):
                it.append(f"v_permlane16_swap_b32 v{T(i, d)}, v{T(i+1, d)}")
        for d in range(2):
            for i in (0, 1):
                it.append(f"v_permlane32_swap_b32 v{T(i, d)}, v{T(i+2, d)}")
    dpp = "quad_perm:[1,0,3,2] row_mask:0xf bank_mask:0xf"
    so = "0" if j < 4 else f"s{sT3}"
    for hb in ((0, 1) if n % 2 == 0 else (1, 0)):
        S = Q[2 + hb]
        for k in ((0, 1, 2, 3) if g.opt.get('nsw', 1) else (0, 2, 1, 3)):
            it.append(f"v_cndmask_b32_dpp v{S+k}, v{Q[1-hb]+k}, v{Q[hb]+k}, vcc {dpp}")
        if hb == n % 2:
            it.append("s_not_b64 vcc, vcc")
        va = vG1 if hb else vG0
        if inflight is not None:
            it.append(f"s_waitcnt vmcnt({inflight})")
        it.append(f"buffer_store_dwordx4 {R(S)}, v{va}, s[{sO}:{sO+3}], {so} offen offset:{(j % 4)*1024} {fl}".rstrip())
    if mode == 1: it = [t for t in it if not t.startswith("buffer")]
    if mode == 3: it = [t for t in it if t.startswith("buffer")]
    return [(lambda t=t: g.vmem(t) if t.startswith("buffer") else g(t)) for t in it]


def out_interleave(g, ex, own, per, ntiles, fl, mode=2):
    pend = []
    seq = own.seq()
    done = {8 * max(n for n in range(64) if seq[n][1] == j) + 15: j for j in range(ntiles)}
    def f(m):
        if m in done:
            pend.extend(outv_items(g, done[m], done[m], fl, mode))
        for _ in range(per[m % len(per)]):
            if pend: pend.pop(0)()
    for m in range(min(done), 512):
        assert (m // 64, m % 64) not in ex
        ex[(m // 64, m % 64)] = (lambda m=m: f(m))
    return pend


def srd(g, d, lo, size):
    g(f"s_mov_b32 s{d}, s{lo}")
    g(f"s_mov_b32 s{d+1}, s{lo+1}")
    g(f"s_mov_b32 s{d+2}, {size}")
    g(f"s_mov_b32 s{d+3}, 0x20000")


def g_addr(g):
    g(f"v_subrev_u32 v{vX1}, s{sSb}, v{vS}")
    g(f"v_add_u32 v{vX0}, 98304, v{vX1}")
    g(f"v_add_u32 v{vX1}, 32768, v{vX1}")


def build(opt):
    g = Gen(opt)
    HFL[0] = opt.get("hfl", "sc0 sc1")
    halo = opt.get("halo", 1)
    xfl = opt.get("xflag", "nt")
    win = opt.get("win", 2)
    rbar = opt.get("rbar", 15)
    stamps = opt.get("stamps")
    kx, kw1, kdw, kw2, kout, kdbg, kws = KA, KA + 2, KA + 4, KA + 6, KA + 8, KA + 10, KA + 12
    g.l.append(HEAD.rstrip("\n"))
    g("; @launch grid=(256,1,1) block=(512,1,1) lds=163840")
    g.l.append(DOC.strip("\n"))
    g('.amdgcn_target "amdgcn-amd-amdhsa--gfx950"')
    g(".text")
    g(f".globl {KN}_kernel")
    g(".p2align 8")
    g(f".type {KN}_kernel,@function")
    g(f"{KN}_kernel:")
    g("s_cmp_ge_u32 s2, 256")
    g("s_cbranch_scc1 L_end")
    for wgi in str(opt.get("idle", "")).split():
        g(f"s_cmp_eq_u32 s2, {wgi}")
        g("s_cbranch_scc1 L_end")
    g(f"s_load_dwordx8 s[{KA}:{KA+7}], s[0:1], 0")
    g(f"s_load_dwordx4 s[{KA+8}:{KA+11}], s[0:1], 32")
    g(f"s_load_dwordx2 s[{KA+12}:{KA+13}], s[0:1], 48")
    if stamps:
        g("s_memrealtime s[74:75]")
        g(f"s_mem{'real' if stamps == 3 else ''}time s[100:101]")
    g(f"v_readfirstlane_b32 s{sWv}, v0")
    g(f"s_mov_b32 s{sWg}, s2")
    g(f"s_and_b32 s3, s2, 7")
    g(f"s_lshr_b32 s{sT0}, s2, 3")
    g(f"s_lshl_b32 s{sT1}, s3, 5")
    g(f"s_add_u32 s{sTile}, s{sT0}, s{sT1}")
    g(f"s_and_b32 s{sT1}, s2, 1")
    g(f"s_lshl_b32 s{sT2}, s{sT1}, 11")
    g(f"s_sub_u32 s{sRows}, 0x20000, s{sT2}")
    g(f"s_mul_i32 s{sTau}, s{sT0}, s{sRows}")
    g(f"s_lshl_b32 s{sT1}, s{sT1}, 22")
    g(f"s_add_u32 s{sTau}, s{sTau}, s{sT1}")
    g(f"s_bitcmp1_b32 s2, 1")
    g(f"s_cselect_b32 s{sT1}, {8002 * 1024}, 0")
    g(f"s_add_u32 s{sTau}, s{sTau}, s{sT1}")
    g(f"s_bitcmp1_b32 s2, 2")
    g(f"s_cselect_b32 s{sT1}, 16384000, 0")
    g(f"s_add_u32 s2, s{sTau}, s{sT1}")
    g(f"s_lshr_b32 s{sWv}, s{sWv}, 6")
    if opt.get("swap", 1):
        g(f"s_xor_b32 s{sWv}, s{sWv}, 4")
    g(f"s_and_b32 s{sW}, s{sWv}, 3")
    g("v_and_b32 v0, 63, v0")
    if opt.get("stag"):
        g(f"s_bfe_u32 s{sT0}, s{sWg}, {0x10000 * opt.get('stagb', 1) + 3}")
        g("L_stag:")
        g(f"s_sub_u32 s{sT0}, s{sT0}, 1")
        g("s_cbranch_scc1 L_stag_e")
        g(f"s_sleep {opt['stag']}")
        g("s_branch L_stag")
        g("L_stag_e:")
    g(f"s_and_b32 s{sT0}, s{sTile}, 63")
    g(f"s_cmp_eq_u32 s{sT0}, 63")
    g("s_cbranch_scc1 L_notile")
    g(f"s_cmp_lt_u32 s{sWv}, 4")
    g("s_cbranch_scc1 L_startA")

    P = [Stream("P", ph) for ph in range(2)]
    P1, P2, P3, GA, GB = (Direct(n) for n in range(5))
    d1 = opt.get('d1', 1)

    if opt.get("bp"):
        g("s_setprio 3")
    g(f"v_lshrrev_b32 v12, 3, v0")
    g(f"v_and_b32 v13, 7, v0")
    g(f"v_lshrrev_b32 v14, 4, v0")
    g(f"v_xor_b32 v14, v14, v13")
    g(f"s_lshl_b32 s{sT3}, s{sW}, 11")
    g(f"v_lshl_add_u32 v14, v14, 4, s{sT3}")
    g(f"v_lshl_add_u32 v16, v12, 13, v14")
    g(f"v_xor_b32 v17, 0x10040, v16")
    g(f"v_add_u32 v19, 1024, v17")
    g(f"s_cmp_eq_u32 s{sTau}, 0")
    g(f"s_cselect_b32 s{sT3}, 1024, 0")
    g(f"v_cmp_gt_u32 vcc, s{sT3}, v16")
    g(f"v_mov_b32 v15, {OOB}")
    g(f"s_sub_u32 s{sX+2}, {16002 * 1024}, s{sTau}")
    g(f"v_cndmask_b32 v16, v16, v15, vcc")
    g(f"s_mov_b32 s{sX+3}, 0x20000")
    g(f"s_min_u32 s{sX+2}, s{sX+2}, s{sX+3}")
    g(f"v_add_u32 v18, 1024, v16")
    g(f"s_lshl_b32 s{sT3}, s{sW}, 12")
    g("s_waitcnt lgkmcnt(0)")
    g(f"s_add_u32 s{sX}, s{kx}, s2")
    g(f"s_addc_u32 s{sX+1}, s{kx+1}, 0")
    g(f"s_sub_u32 s{sX}, s{sX}, 2048")
    g(f"s_subb_u32 s{sX+1}, s{sX+1}, 0")
    if opt.get("hd") == 1: g.stamp(8)

    def d1_addr():
        g(f"v_lshrrev_b32 v1, 5, v0")
        g(f"v_lshlrev_b32 v1, 1, v1")
        g(f"v_and_b32 v2, 3, v0")
        g(f"v_xor_b32 v1, v1, v2")
        g(f"s_lshl_b32 s{sW64}, s{sW}, 6")
        g(f"v_lshl_add_u32 v1, v1, 4, s{sW64}")
        g(f"v_lshrrev_b32 v3, 2, v0")
        g(f"v_lshl_add_u32 v{vD1}, v3, 11, v1")
        g(f"s_lshl_b32 s{sRing}, s{sW}, 13")
        g(f"s_add_u32 s{sRing}, s{sRing}, 131072")
        g(f"s_add_u32 s{sRing+1}, s{sRing}, 4096")
        for f in set_kconst(g, "P"): f()

    def ct_srd():
        g(f"s_lshl_b32 s{sT0}, s{sW}, 11")
        g(f"s_add_u32 s{sT0}, s{sT0}, {CTOFF}")
        g(f"s_add_u32 s{sDW}, s{sWq}, s{sT0}")
        g(f"s_addc_u32 s{sDW+1}, s{sWq+1}, 0")
        g(f"s_mov_b32 s{sDW+2}, 32768")
        g(f"s_mov_b32 s{sDW+3}, 0x20000")

    def common(role):
        srd(g, sW2, kw2, 524288)
        g(f"s_add_u32 s{sO}, s{kout}, s2")
        g(f"s_addc_u32 s{sO+1}, s{kout+1}, 0")
        g(f"s_sub_u32 s{sO+2}, 16384000, s{sTau}")
        g(f"s_min_u32 s{sO+2}, s{sO+2}, s{sRows}")
        g(f"s_mov_b32 s{sO+3}, 0x20000")
        srd(g, sDBG, kdbg, 256)
        g(f"s_lshl_b32 s{sT0}, s{sTile}, 12")
        g(f"s_add_u32 s{sWS}, s{kws}, s{sT0}")
        g(f"s_addc_u32 s{sWS+1}, s{kws+1}, 0")
        g(f"s_and_b32 s{sT0}, s{sTile}, 63")
        g(f"s_cselect_b32 s{sT0}, 1, 2")
        g(f"s_sub_u32 s{sT1}, s{sTile}, s{sT0}")
        g(f"s_lshl_b32 s{sT0}, s{sT0}, 12")
        g(f"s_sub_u32 s{sWE}, s{sWS}, s{sT0}")
        g(f"s_subb_u32 s{sWE+1}, s{sWS+1}, 0")
        g(f"s_movk_i32 s{sT0}, 4096")
        g(f"s_bitcmp1_b32 s{sT1}, 5")
        g(f"s_cselect_b32 s{sWE+2}, 2048, s{sT0}")
        g(f"s_cmp_eq_u32 s{sTau}, 0")
        g(f"s_cselect_b32 s{sWE+2}, 0, s{sWE+2}")
        g(f"s_bitcmp1_b32 s{sTile}, 5")
        g(f"s_cselect_b32 s{sWS+2}, 2048, s{sT0}")
        g(f"s_cmp_lt_u32 s{sO+2}, s{sRows}")
        g(f"s_cselect_b32 s{sWS+2}, 0, s{sWS+2}")
        g(f"s_mov_b32 s{sWS+3}, 0x20000")
        g(f"s_mov_b32 s{sWE+3}, 0x20000")
        if stamps:
            g(f"s_mov_b64 s[40:41], s[{kws}:{kws+1}]")
        g(f"s_mov_b32 s{sC}, 0xbfb8aa3b")
        g(f"s_mov_b32 s{sCi}, 0xbf317218")
        g(f"s_lshl_b32 s{sW128}, s{sW}, 7")
        g(f"v_lshrrev_b32 v3, 4, v0")
        g(f"v_lshlrev_b32 v4, 1, v3")
        g(f"v_lshlrev_b32 v{vG8}, 4, v3")
        g(f"v_bfe_u32 v5, v0, 2, 2")
        g(f"v_xor_b32 v24, v5, v3")
        g(f"v_lshlrev_b32 v24, 24, v24")
        g(f"v_lshl_add_u32 v24, v5, 8, v24")
        g(f"v_lshl_add_u32 v{vM0}, v2, 4, v24")
        g(f"v_and_b32 v25, 15, v0")
        g(f"s_sub_u32 s{sT0}, s{sWE+2}, 2048")
        g(f"v_lshlrev_b32 v24, 11, v25")
        g(f"v_sub_u32 v24, s{sT0}, v24")
        g(f"v_min_u32 v24, {OOB}, v24")
        g(f"v_add_u32 v{vEX}, v24, v{vG8}")
        g(f"v_add_u32 v25, 1, v25")
        g(f"v_lshrrev_b32 v25, 4, v25")
        g(f"v_xor_b32 v25, 1, v25")
        g(f"v_lshl_add_u32 v{vG8}, v25, 11, v{vG8}")
        g(f"v_mov_b32 v{vM1}, -2")
        g(f"s_lshr_b32 s{sT0}, s{sW}, 1")
        g(f"s_lshl_b32 s{sT0}, s{sT0}, 14")
        g(f"s_and_b32 s{sT1}, s{sW}, 1")
        g(f"s_lshl_b32 s{sT1}, s{sT1}, 10")
        g(f"s_add_u32 s{sSb}, s{sT0}, s{sT1}")
        g(f"s_add_u32 s{sSb}, s{sSb}, {32768 if role == 0 else 98304}")
        g(f"v_lshl_add_u32 v{vS}, v0, 4, s{sSb}")
        g(f"s_add_u32 s{sWq}, s{kws}, {WPOFF}")
        g(f"s_addc_u32 s{sWq+1}, s{kws+1}, 0")
        g(f"s_lshl_b32 s{sT0}, s{sW}, 16")
        g(f"s_add_u32 s{sWP}, s{sWq}, s{sT0}")
        g(f"s_addc_u32 s{sWP+1}, s{sWq+1}, 0")
        g(f"s_sub_u32 s{sWP}, s{sWP}, s{sSb}")
        g(f"s_subb_u32 s{sWP+1}, s{sWP+1}, 0")
        g(f"s_lshr_b32 s{sT1}, s{sW}, 1")
        g(f"s_lshl_b32 s{sT1}, s{sT1}, 16")
        g(f"s_sub_u32 s{sHo}, s{sT1}, s{sT0}")
        g(f"s_and_b32 s{sT1}, s{sW}, 1")
        g(f"s_lshl_b32 s{sT1}, s{sT1}, 12")
        g(f"s_add_u32 s{sHo}, s{sHo}, s{sT1}")
        g(f"s_mov_b32 s{sWP+2}, 0x200000")
        g(f"s_mov_b32 s{sWP+3}, 0x20000")
        g(f"v_bfe_u32 v4, v0, 4, 1")
        g(f"v_bfe_u32 v5, v0, 2, 2")
        g(f"v_lshl_add_u32 v{vW0}, v3, 9, s{sRing}")
        g(f"v_lshl_add_u32 v{vW0}, v5, 6, v{vW0}")
        g(f"v_lshl_add_u32 v{vW0}, v4, 5, v{vW0}")
        g(f"v_lshl_add_u32 v{vW0}, v2, 3, v{vW0}")
        g(f"v_xor_b32 v{vW1}, 32, v{vW0}")
        g(f"v_and_b32 v4, 15, v0")
        g(f"v_lshrrev_b32 v5, 1, v4")
        g(f"v_xor_b32 v5, v5, v3")
        g(f"v_lshlrev_b32 v5, 4, v5")
        g(f"v_lshl_add_u32 v{vX0}, v4, 7, v5")
        g(f"v_xor_b32 v{vX1}, 64, v{vX0}")
        if stamps:
            g("s_mov_b64 s[76:77], s[100:101]")


    sWB = 0
    sub = (0, 64)
    def wbase(key):
        if key < 2 - d1:
            g(f"s_lshl_b32 s{sT2}, s{sSl}, 13")
            g(f"s_add_u32 s{sT2}, s{sT2}, {key * 256}")
            ptr = sW1
        else:
            g(f"s_lshl_b32 s{sT2}, s{sSl}, 11")
            g(f"s_add_u32 s{sT2}, s{sT2}, {(key - 1) * 262144}")
            ptr = sWq
        g(f"s_add_u32 s{sWB}, s{ptr}, s{sT2}")
        g(f"s_addc_u32 s{sWB+1}, s{ptr+1}, 0")
    def wlines(key):
        if key < 2 - d1:
            return [(key, n * 1024 + e * 64) for n in range(8) for e in range(4)]
        return [(key, n * 64) for n in range(32)]
    def swarm(lines):
        cur = None
        for n, (key, of) in enumerate(lines):
            if key != cur:
                wbase(key); cur = key
            if n % 14 == 0:
                g(f"s_waitcnt lgkmcnt({15 - min(14, len(lines) - n)})")
            g(f"s_load_dword s3, s[{sWB}:{sWB+1}], {of}")
    later = wlines(1)
    nb = 8
    def e_warm(key, n0=0):
        if str(key) not in str(opt.get("wk", "5")):
            return []
        def ld(n, of):
            if n + n0 >= 14:
                g("s_waitcnt lgkmcnt(13)")
            g(f"s_load_dword s3, s[{sWB}:{sWB+1}], {of}")
        return [lambda: wbase(key)] + [(lambda n=n, of=of: ld(n, of)) for n, (_, of) in enumerate(wlines(key))]

    def x_issue(kp):
        g(f"s_movk_i32 s{sT0}, {kp*128}")
        for jj in range(2):
            for hh in range(2):
                g(f"s_add_u32 m0, s{sT3}, {kp*16384 + jj*2048 + hh*1024}")
                g("s_nop 0")
                g.vmem(f"buffer_load_dwordx4 v{16+2*jj+hh}, s[{sX}:{sX+3}], s{sT0} offen {xfl} lds".replace("  ", " "), tag=("x", kp))
    x_issue(0)
    if opt.get("hd") == 2:
        g("s_waitcnt vmcnt(0)"); g.stamp(8)
    def l2_warm(tag):
        srd(g, sW1, kw1, 1048576)
        g(f"s_getpc_b64 s[{sCode}:{sCode+1}]")
        g(f"L_pc{tag}:")
        g(f"s_mov_b32 s{sCode+2}, L_code_end-L_pc")
        if tag:
            g(f"s_sub_u32 s{sCode}, s{sCode}, L_pc{tag}-L_pc")
            g(f"s_subb_u32 s{sCode+1}, s{sCode+1}, 0")
        g(f"s_mov_b32 s{sCode+3}, 0x20000")
        g(f"s_lshr_b32 s{sT1}, s{sWg}, 3")
        g(f"s_lshl2_add_u32 s{sSl}, s{sT1}, s{sW}")
        g(f"v_lshrrev_b32 v6, 1, v0")
        g(f"v_lshlrev_b32 v6, 10, v6")
        g(f"v_and_b32 v7, 1, v0")
        g(f"v_lshl_add_u32 v6, v7, 7, v6")
        g(f"v_lshrrev_b32 v7, 4, v0")
        if opt.get("hw", 2) >= 2 and tag:
            for kp in list(range(1, 8)):
                g(f"s_lshl_b32 s{sT2}, s{sW}, 15")
                g(f"s_add_u32 s{sT2}, s{sT2}, {kp * 131072}")
                g(f"buffer_load_dword v{10+kp}, v6, s[{sW1}:{sW1+3}], s{sT2} offen")
                if kp == 1:
                    g(f"s_lshl_b32 s{sT2}, s{sSl}, 7")
                    g(f"v_lshlrev_b32 v7, 14, v0")
                    g(f"buffer_load_dword v9, v7, s[{sCode}:{sCode+3}], s{sT2} offen")
            return
        g(f"v_lshl_add_u32 v6, v7, 28, v6")
        if opt.get("hw", 2) >= 2:
            g(f"s_and_b32 s{sT2}, s{sWg}, 1")
            g(f"s_lshl_b32 s{sT2}, s{sT2}, 30")
            g(f"v_add_u32 v6, s{sT2}, v6")
        def warm_w1(ph, dst):
            g(f"s_lshl_b32 s{sT2}, s{sSl}, 13")
            if ph:
                g(f"s_add_u32 s{sT2}, s{sT2}, {ph * 256}")
            g.vmem(f"buffer_load_dword v{dst}, v6, s[{sW1}:{sW1+3}], s{sT2} offen {opt.get('wfl', '')}", [dst])
        if opt.get("warm0", 1) == 1:
            warm_w1(0, 8)
        if opt.get("cw", 1) == 1:
            g(f"s_lshl_b32 s{sT2}, s{sSl}, 7")
            g(f"v_lshlrev_b32 v7, 14, v0")
            g.vmem(f"buffer_load_dword v9, v7, s[{sCode}:{sCode+3}], s{sT2} offen", [9])
    l2_warm('')
    if opt.get("warm0", 1) == 2:
        swarm(wlines(0)[12 * len(sub):])
    if opt.get("hd") in (2, 3):
        g("s_waitcnt vmcnt(0)"); g.stamp(9)
    d1_addr()
    common(1)
    assert d1 and opt.get("nsw", 1)
    oddp = opt.get("oddp", 1)
    vm0 = list(g.vm)
    if oddp:
        g(f"s_bitcmp1_b32 s{sWg}, 0")
        g("s_cbranch_scc1 L_oddB")
    full = opt.get("tmode", 2) == 2
    sE, sS1, sD1, sS2, sD2, sOff = 64, 65, 42, 43, sSl + 1, 3
    BIG = 0x40000000
    if opt.get("emap", 1):
        g(f"s_lshr_b32 s{sT0}, s{sWg}, 3")
        g(f"s_bfe_u32 s{sT1}, s{sWg}, 0x10001")
        g(f"s_lshl1_add_u32 s{sE}, s{sT0}, s{sT1}")
        g(f"s_bfe_u32 s{sT1}, s{sWg}, 0x10002")
        g(f"s_lshl_b32 s{sT1}, s{sT1}, 6")
        g(f"s_add_u32 s{sE}, s{sE}, s{sT1}")
    else:
        g(f"s_lshr_b32 s{sE}, s{sWg}, 1")
    g(f"s_and_b32 s{sOff}, s{sWg}, 1")
    if opt.get("tpar"):
        g(f"s_xor_b32 s{sOff}, s{sOff}, 1")
    g(f"s_lshl_b32 s{sOff}, s{sOff}, 30")
    g(f"s_and_b32 s{sT0}, s{sE}, 15")
    g(f"s_lshr_b32 s{sT1}, s{sT0}, 1")
    g(f"s_lshl_b32 s{sD1}, s{sT1}, 13")
    g(f"s_and_b32 s{sT1}, s{sT0}, 1")
    g(f"s_lshl_b32 s{sT1}, s{sT1}, 10")
    g(f"s_add_u32 s{sD1}, s{sD1}, s{sT1}")
    g(f"s_lshl_b32 s{sS2}, s{sT0}, 15")
    g(f"s_lshl_b32 s{sT2}, s{sW}, 13")
    g(f"s_add_u32 s{sS2}, s{sS2}, s{sT2}")
    g(f"s_lshl_b32 s{sT2}, s{sW}, 11")
    g(f"s_add_u32 s{sD2}, s{sD1}, s{sT2}")
    g(f"s_lshr_b32 s{sT1}, s{sE}, 4")
    g(f"s_lshl_b32 s{sT2}, s{sT1}, 16")
    g(f"s_add_u32 s{sD2}, s{sD2}, s{sT2}")
    g(f"s_add_u32 s{sD2}, s{sD2}, {3 * 262144}")
    g(f"s_lshl_b32 s{sT2}, s{sT1}, 7")
    g(f"s_add_u32 s{sS2}, s{sS2}, s{sT2}")
    g(f"s_lshl_b32 s{sS1}, s{sT0}, 16")
    g(f"s_and_b32 s{sT1}, s{sW}, 1")
    g(f"s_lshl_b32 s{sT2}, s{sT1}, 15")
    g(f"s_add_u32 s{sS1}, s{sS1}, s{sT2}")
    g(f"s_lshl_b32 s{sT2}, s{sT1}, 11")
    g(f"s_add_u32 s{sD1}, s{sD1}, s{sT2}")
    g(f"s_lshr_b32 s{sT1}, s{sW}, 1")
    g(f"s_lshl_b32 s{sT2}, s{sT1}, 13")
    g(f"s_add_u32 s{sS1}, s{sS1}, s{sT2}")
    g(f"s_lshl_b32 s{sT2}, s{sT1}, 16")
    g(f"s_add_u32 s{sD1}, s{sD1}, s{sT2}")
    g(f"s_bfe_u32 s{sT1}, s{sE}, 0x10004")
    g(f"s_lshl_b32 s{sT2}, s{sT1}, 10")
    g(f"s_add_u32 s{sS1}, s{sS1}, s{sT2}")
    g(f"s_lshl_b32 s{sT2}, s{sT1}, 12")
    g(f"s_add_u32 s{sD1}, s{sD1}, s{sT2}")
    g(f"s_lshr_b32 s{sT1}, s{sE}, 5")
    g(f"s_lshl_b32 s{sT2}, s{sT1}, 7")
    g(f"s_add_u32 s{sS1}, s{sS1}, s{sT2}")
    g(f"s_add_u32 s{sS1}, s{sS1}, 256")
    g(f"s_lshl_b32 s{sT2}, s{sT1}, 17")
    g(f"s_add_u32 s{sD1}, s{sD1}, s{sT2}")
    g(f"s_cmp_lt_u32 s{sE}, 64")
    g(f"s_cselect_b32 s{sT1}, s{sOff}, {BIG}")
    g(f"s_xor_b32 s{sT2}, s{sOff}, {0 if full else BIG}")
    g(f"s_add_u32 s{sT0}, s{sOff}, 256")
    g(f"v_lshlrev_b32 v27, 4, v13")
    g(f"v_lshl_add_u32 v44, v12, 10, v27")
    g(f"v_add_u32 v44, s{sT2}, v44")
    g(f"v_and_b32 v28, 3, v12")
    g(f"v_lshrrev_b32 v26, 2, v12")
    g(f"v_lshl_add_u32 v26, v26, 3, v28")
    g(f"v_lshl_add_u32 v26, v26, 11, v27")
    g(f"v_add_u32 v42, s{sT0}, v26")
    g(f"v_add_u32 v43, s{sT1}, v26")
    g(f"s_add_u32 s{sT0}, s{sOff}, 262144")
    g(f"v_lshl_add_u32 v45, v0, 4, s{sT0}")
    g(f"v_lshl_add_u32 v46, v0, 4, s{sT1}")
    g(f"v_lshl_add_u32 v47, v0, 4, s{sT2}")
    g(f"v_lshrrev_b32 v26, 2, v0")
    g(f"v_lshlrev_b32 v26, 7, v26")
    g(f"s_lshl_b32 s{sT1}, s{sW}, 3")
    g(f"s_add_u32 s{sT1}, s{sT1}, {SCR}")
    g(f"v_lshl_add_u32 v27, v2, 5, v26")
    g(f"v_add_u32 v27, s{sT1}, v27")
    g(f"s_lshl_b32 s{sT1}, s{sW}, 5")
    g(f"s_add_u32 s{sT1}, s{sT1}, {SCR}")
    g(f"v_lshl_add_u32 v26, v2, 3, v26")
    g(f"v_add_u32 v26, s{sT1}, v26")
    srd(g, sDW, kdw, 5120)
    g(f"s_lshl_b32 s{sT1}, s{sW}, 28")
    g(f"s_add_u32 s{sT1}, s{sT1}, s{sOff}")
    g(f"s_lshl3_add_u32 s{sT2}, s{sE}, s{sT1}")
    g(f"v_bfe_u32 v37, v0, 2, 2")
    g(f"v_lshlrev_b32 v38, 1, v2")
    g(f"v_sub_u32 v37, v38, v37")
    g(f"v_lshl_add_u32 v37, v37, 10, s{sT2}")
    g(f"v_lshl_add_u32 v37, v3, 1, v37")
    g(f"v_add_u32 v38, 1024, v37")
    g(f"s_lshl_b32 s{sT2}, s{sE}, 8")
    g(f"s_add_u32 s{sT1}, s{sT1}, s{sT2}")
    g(f"s_add_u32 s{sT1}, s{sT1}, {CTOFF}")
    g(f"v_lshl_add_u32 v41, v0, 2, s{sT1}")
    def task_load():
        g(f"s_lshl_b32 s{sT1}, s{sW}, 10")
        g(f"s_add_u32 m0, s{sT1}, {SCR}")
        g.vmem(f"buffer_load_ushort v48, v37, s[{sDW}:{sDW+3}], 0 offen", [48], tag="task")
        g.vmem(f"buffer_load_dwordx4 v42, s[{sW1}:{sW1+3}], s{sS1} offen nt lds", tag="task")
        g(f"s_add_u32 m0, m0, 4096")
        g.vmem(f"buffer_load_ushort v49, v38, s[{sDW}:{sDW+3}], 0 offen", [49], tag="task")
        g.vmem(f"buffer_load_dwordx4 v43, s[{sW1}:{sW1+3}], s{sS1} offen nt lds", tag="task")
        g(f"s_add_u32 m0, m0, 4096")
        ct_srd()
        g.vmem(f"buffer_load_dwordx4 v44, s[{sW2}:{sW2+3}], s{sS2} offen nt lds", tag="task")
        srd(g, sW2, sWq, 0x148000)
    tk = opt.get("tk", 1)
    if tk == 1:
        task_load()
    assert rbar and win == 2
    def clear():
        g(f"s_and_b32 s{sGrp}, s{sTile}, 0xfc")
        g(f"s_lshl_b32 s{sT1}, s{sW}, 10")
        g(f"v_lshlrev_b32 v21, 4, v0")
        for r in range(4):
            g(f"v_mov_b32 v{52+r}, -1")
        g.vmem(f"buffer_store_dwordx4 v[52:55], v21, s[{sWS}:{sWS+3}], s{sT1} offen sc0 sc1", tag="clr")
    def w_first():
        P[0].advance(g, 0)
        for ab in range(2):
            set_m0(g, ab)
            g("s_nop 0")
            for m in range(4):
                P[0].dma(g, ab, m, ("x", 0))
    wA = opt.get("wA", 2)
    if wA:
        g.barrier("w0")
    else:
        w_first()
    for kp in range(1, win):
        x_issue(kp)
    g.wait(vm=("x", 0))
    g.barrier("x0")
    g("s_branch L_roleB")
    vmB = list(g.vm)
    if oddp:
        assert full and wA and tk == 1 and opt.get("ak", 2) == 2
        g.vm, g.bars = vm0, []
        g("L_oddB:")
        ct_srd()
        g.barrier("w0")
        x_issue(1)
        for kp in range(3):
            g.wait(vm=("x", kp) if kp < 2 else "clr")
            g.barrier(f"x{kp}")
            if kp < 2:
                g.barrier(f"r{kp}")
                x_issue(kp + 2)
            if kp == 0:
                clear()
        odd_state = ([t for _, t in g.vm], list(g.bars))
        g("s_branch L_ann")
    g("L_notile:")
    if opt.get("hw", 2):
        g(f"s_cmp_lt_u32 s{sWv}, 4")
        g("s_cbranch_scc1 L_end")
        g("s_waitcnt lgkmcnt(0)")
        l2_warm("n")
        if opt.get("hw", 2) >= 3:
            srd(g, sDBG, kdbg, 256)
            g(f"s_add_u32 s{sWP}, s{kws}, {WPOFF}")
            g(f"s_addc_u32 s{sWP+1}, s{kws+1}, 0")
            g(f"s_mov_b32 s{sWP+2}, 0x148000")
            g(f"s_mov_b32 s{sWP+3}, 0x20000")
            g(f"v_mov_b32 v24, 15")
            g(f"v_and_b32 v23, 15, v0")
            g(f"v_add_u32 v23, 1, v23")
            g(f"v_lshrrev_b32 v23, 4, v23")
            g(f"v_lshrrev_b32 v23, v23, v24")
            g(f"v_lshlrev_b32 v21, 2, v0")
            g(f"v_lshlrev_b32 v6, 7, v0")
            g(f"s_mov_b32 s{sT2}, {opt.get('spin', 4000000)}")
            g("L_hrdy:")
            g(f"buffer_load_dword v22, v21, s[{sDBG}:{sDBG+3}], 0 offen sc0 sc1")
            g("s_waitcnt vmcnt(0)")
            g(f"v_cmp_lt_u32 vcc, v22, v23")
            g(f"s_sub_u32 s{sT2}, s{sT2}, 1")
            g("s_cbranch_scc1 L_end")
            g("s_cbranch_vccnz L_hrdy")
            g(f"s_lshl_b32 s{sT1}, s{sW}, 16")
            g(f"s_lshl_b32 s{sT2}, s{sW}, 13")
            g(f"s_add_u32 s{sT2}, s{sT2}, {CTOFF}")
            for idx in range(5):
                for kp in range(8):
                    src = kp if idx < 3 else QORD[kp >> 1] * 2 + (kp & 1)
                    g(f"s_add_u32 s{sT0}, s{sT1}, {idx * 262144 + src * 8192}")
                    g(f"buffer_load_dword v{30 + idx*8 + kp}, v6, s[{sWP}:{sWP+3}], s{sT0} offen sc1")
                    if idx == 0 and kp == 1:
                        g(f"buffer_load_dword v29, v6, s[{sWP}:{sWP+3}], s{sT2} offen sc1")
    g("s_endpgm")
    g.vm = []; g.bars = []

    g("L_startA:")
    d1_addr()
    g("s_waitcnt lgkmcnt(0)")
    if opt.get("tlb", 0):
        g(f"s_add_u32 s{sO}, s{kout}, s2")
        g(f"s_addc_u32 s{sO+1}, s{kout+1}, 0")
        for n, (k, off) in enumerate(((kw1, 0), (kdw, 0), (kw2, 0), (kws, 0x80000), (sO, 0))):
            g(f"s_load_dword s3, s[{k}:{k+1}], {off}")
    srd(g, sW1, kw1, 1048576)
    g(f"s_lshr_b32 s{sT1}, s{sWg}, 3")
    g(f"s_lshl2_add_u32 s{sSl}, s{sT1}, s{sW}")
    if opt.get("warm0", 1) == 2:
        swarm(wlines(0)[:12 * len(sub)])
    if opt.get("cw", 1) == 2:
        g(f"s_getpc_b64 s[{sCode}:{sCode+1}]")
        g("L_pc2:")
        g(f"s_mov_b32 s{sCode+2}, L_code_end-L_pc2")
        g(f"s_mov_b32 s{sCode+3}, 0x20000")
        g(f"s_lshl_b32 s{sT2}, s{sSl}, 6")
        for n in range(9):
            g(f"s_buffer_load_dword s3, s[{sCode}:{sCode+3}], s{sT2}")
            g(f"s_add_u32 s{sT2}, s{sT2}, 8192")
    if wA == 2:
        w_first()
    common(0)
    ct_srd()
    if wA == 1:
        w_first()
    if stamps == 4:
        g(f"s_add_u32 s4, s40, {STAMP_OFF}\ns_addc_u32 s5, s41, 0\ns_mov_b32 s6, 0x100000\ns_mov_b32 s7, 0x20000")
        g(f"s_lshl_b32 s42, s{sWg}, 3\ns_add_u32 s42, s42, s{sWv}\ns_lshl_b32 s42, s42, 7")
        g("v_mov_b32 v8, s74\nv_mov_b32 v9, s75\nv_mov_b32 v10, s74\nv_mov_b32 v11, s75\nv_and_b32 v12, 1, v0\nv_lshrrev_b32 v13, 1, v0\nv_lshlrev_b32 v12, 9, v12\nv_lshl_add_u32 v12, v13, 24, v12")
        g.vmem("buffer_store_dwordx4 v[8:11], v12, s[4:7], s42 offen sc0 sc1")
    if wA:
        g.barrier("w0")
        g.drain(vm=True)
        g("s_waitcnt lgkmcnt(0)")
    g.stamp(8)
    g.barrier("x0")
    g.stamp(9)
    it = start_a(g, P[0])
    run(it[:8] + start_x(g, P[0]) + start_b(g, P[0])[:8])
    run(it[8:10]); g("s_nop 0"); run(it[10:] + start_b(g, P[0])[8:])
    ex = {(kp, rbar): (lambda kp=kp: g.barrier(f"r{kp}")) for kp in range(8 - win)} if rbar else {}
    g.stamp(1)
    if d1:
        def h0():
            g.wait(lg=("rb", 7))
            g.barrier("h0")
        ex[(7, opt.get("h0g", 45))] = h0
    mfma_phase(g, P[0], None if d1 else P[1], "h0", xbar=lambda kp: g.barrier(f"x{kp}"), first=True, extra=ex)
    g.stamp(2)
    def sw(reg, off, va=vS):
        return lambda: g.ds(f"ds_write_b128 v{va}, {R(reg)} offset:{off}", tag="sw")
    e_phase(g, 0, VH, pre=P2.start_w(g) + P2.start_x(g), warm=e_warm(2))
    if not d1:
        g.barrier("h1")
    g.stamp(3)
    direct_phase(g, P2)
    g.stamp(4)
    e_phase(g, 2, 0, pre=GA.start_w(g), warm=e_warm(4) + (e_warm(5, 14 if e_warm(4) else 0) if opt.get('w5', 2) == 2 else []))
    g_addr(g)
    outv_addr(g, 64)
    g.barrier("h3")
    nb_ = opt.get("burst", 0)
    if nb_ >= 8:
        run([sw(4 * j, 32768 + j * 2048) for j in range(8)] + GA.start_x(g) + [sw(VH + 4 * j, j * 2048) for j in range(nb_ - 8)])
    else:
        run([sw(0, 32768), sw(4, 32768 + 2048)] + GA.start_x(g) + [sw(8, 32768 + 4096)])
    g.stamp(5)
    yl = [int(v) for v in str(opt.get("yl", "4 6 7")).split()]
    GA.merge = int(len(yl) > 1)
    def xbarA(kp, j):
        if kp == 2 and j == 0:
            g.wait(lg="sw")
            g.barrier("V")
        if kp == 6 and (j == 0 or j - 1 in yl):
            g.barrier(f"Y{min(v for v in yl if v >= j)}")
    ex = {(0, 8 * (j - 3) + 4): sw(4 * j, 32768 + j * 2048) for j in range(3, 8)} if nb_ < 8 else {}
    fr = ((0, 44), (0, 52), (1, 4), (1, 12), (1, 20), (1, 28), (1, 34), (1, 38))
    ex.update({fr[j]: sw(VH + 4 * j, j * 2048) for j in range(max(nb_ - 8, 0), 8)})
    na = opt.get("na", 0) if GA.merge else 0
    pend = out_interleave(g, ex, GA, [int(c) for c in str(opt.get("opera", 2))], na, opt.get("stA", "nt")) if na else []
    split = opt.get("split", 0)
    HB, HA = Half(0), Half(1)
    if split:
        assert GA.merge and not na
        for n, f in enumerate(HA.loads(g, 4) + HA.loads(g, 5)):
            ex[(6, 8 * (n // 2) + 3 + 2 * (n % 2))] = f
    direct_phase(g, GA, xbar=xbarA, extra=ex)
    g.stamp(6)
    g("s_setprio 0")
    g("s_nop 6")
    run(pend)
    zg = [int(v) for v in str(opt.get("zg", "2 2 2 2")).split() if int(v)]
    j = na
    assert na + sum(zg) <= 8
    for n, cnt in enumerate(zg):
        for jj in range(j, j + cnt):
            run(outv_items(g, jj, jj, opt.get("stA", "nt"), 1))
        g.barrier(f"Z{n}")
        for jj in range(j, j + cnt):
            run(outv_items(g, jj, jj, opt.get("stA", "nt"), 3))
        j += cnt
    for jj in range(j, 8):
        if opt.get("outA", 2): run(outv_items(g, jj, jj, opt.get("stA", "nt"), opt.get("outA", 2), None if split else opt.get("infl", 1)))
        if split and jj < 6:
            run(HA.loads(g, (0, 1, 2, 3, 6, 7)[jj]))
    if split:
        g("s_nop 0")
        outv_addr(g, 16, 1)
        run(HA.start_x(g, 0, 5))
        g.stamp(8)
        ex, pend = {}, []
        def f(m):
            if m % 64 == 7 and m > 63:
                j = 2 * (m // 64 - 1)
                pend.extend(outv_items(g, j, j // 2, opt.get("stH", "sc1"), Q=[HA.aq(j + q // 2, q % 2) for q in range(4)]))
            if m % 4 >= 2:
                for _ in range(opt.get("hper", 2)):
                    if pend: pend.pop(0)()
        HA.phase(g, {m: (lambda m=m: f(m)) for m in range(256)})
        assert not pend
        g.stamp(9)
        g("s_nop 7")
        run(outv_items(g, 6, 3, opt.get("stH", "sc1"), Q=[HA.aq(6 + q // 2, q % 2) for q in range(4)]))
    g.stamp(7)
    barsA = g.bars
    g("s_branch L_fin")

    g.lg, g.vm, g.bars = [], vmB, ["w0", "x0"] if wA else ["x0"]
    g("L_roleB:")
    def task_read():
        assert not any(t == "task" for _, t in g.vm)
        for n in range(3):
            g(f"ds_read_b64_tr_b16 v[{28+4*n}:{29+4*n}], v{26 + n // 2} offset:{4096*n}")
            g(f"ds_read_b64_tr_b16 v[{30+4*n}:{31+4*n}], v{26 + n // 2} offset:{4096*n + 2048}")
        g(f"v_lshl_or_b32 v48, v49, 16, v48")
        g("s_waitcnt lgkmcnt(0)")
    def task_store():
        if opt.get("psc", 0):
            g(f"s_bitcmp1_b32 s{sE}, 4")
            g(f"s_cselect_b32 s{sT1}, s{sC}, 1.0")
            for r in range(28, 36):
                g(f"v_lshlrev_b32 v50, 16, v{r}")
                g(f"v_and_b32 v51, 0xffff0000, v{r}")
                g(f"v_mul_f32 v50, s{sT1}, v50")
                g(f"v_mul_f32 v51, s{sT1}, v51")
                g(f"v_cvt_pk_bf16_f32 v{r}, v50, v51")
        g.vmem(f"buffer_store_dword v48, v41, s[{sW2}:{sW2+3}], 0 offen sc0 sc1", tag="clr")
        for n in range(3):
            g.vmem(f"buffer_store_dwordx4 {R(28+4*n)}, v{45+n}, s[{sW2}:{sW2+3}], s{(sD1, sD1, sD2)[n]} offen sc0 sc1", tag="clr")
    if tk == 2 and opt.get("tpre", 1):
        task_load()
    g.barrier("r0")
    if tk == 2 and not opt.get("tpre", 1):
        task_load()
    x_issue(win)
    clear()
    g.stamp(1)
    def ready():
        g(f"s_mov_b32 s{sT2}, {opt.get('spin', 4000000)}")
        g.wait(regs=[22])
        g.point("rdy_")
        if opt.get("p1", 1):
            assert pk < 7 and "1" not in str(opt.get("wk", "5"))
            g(f"s_cmp_lg_u32 s{sW}, 0")
            g("s_cbranch_scc1 L_rdy_ok")
        g("L_rdy:")
        g(f"v_cmp_lt_u32 vcc, v22, v23")
        g(f"s_sub_u32 s{sT2}, s{sT2}, 1")
        g("s_cbranch_scc1 L_rdy_ok")
        g("s_cbranch_vccz L_rdy_ok")
        g(f"buffer_load_dword v22, v21, s[{sDBG}:{sDBG+3}], 0 offen sc0 sc1")
        g("s_waitcnt vmcnt(0)")
        g("s_branch L_rdy")
        g("L_rdy_ok:")
        g.point("rdy")
    pk = opt.get("pk", 6) if d1 else 7
    ak = opt.get("ak", 2)
    for kp in range(1, 8):
        g.wait(vm=("x", kp))
        if kp == ak:
            g.wait(vm="clr")
        g.barrier(f"x{kp}")
        if kp in (3, 7) and not opt.get("hd"):
            g.stamp({0: 1, 3: 8, 7: 9}[kp])
        if kp == tk:
            task_read()
            task_store()
        if kp == ak:
            assert not any(t == "clr" for _, t in g.vm)
            g("L_ann:")
            g(f"s_cmp_lg_u32 s{sW}, 0")
            g("s_cbranch_scc1 L_noann")
            g(f"s_and_b32 s{sT1}, s{sTile}, 3")
            g(f"s_lshl_b32 s{sT1}, 1, s{sT1}")
            if "a" not in str(opt.get("abl", "")):
                g(f"s_atomic_or s{sT1}, s[{sDBG}:{sDBG+1}], s{sGrp}")
            g("L_noann:")
            if oddp:
                assert odd_state == ([t for _, t in g.vm], g.bars), (odd_state, g.vm, g.bars)
        if kp + win < 8:
            g.barrier(f"r{kp}")
        if kp == pk - 1:
            g(f"v_mov_b32 v24, 15")
            g(f"v_and_b32 v23, 15, v0")
            g(f"v_add_u32 v23, 1, v23")
            g(f"v_lshrrev_b32 v23, 4, v23")
            g(f"v_lshrrev_b32 v23, v23, v24")
            g(f"s_lshl_b32 s{sT2}, s{sW}, {20 if opt.get('p1', 1) else 32}")
            g(f"v_lshlrev_b32 v21, 2, v0") if not opt.get("p1", 1) else g(f"v_lshl_add_u32 v21, v0, 2, s{sT2}")
            g.vmem(f"buffer_load_dword v22, v21, s[{sDBG}:{sDBG+3}], 0 offen sc0 sc1", [22])
        if kp + win < 8:
            x_issue(kp + win)
        if kp == pk:
            ready()
        if "1" in str(opt.get("wk", "5")) or not d1:
            if d1:
                nb = -(-32 // (8 - pk))
                if kp >= pk: swarm(later[(kp - pk) * nb:(kp - pk + 1) * nb])
            elif 2 <= kp < 6:
                swarm(later[(kp - 2) * nb:(kp - 1) * nb])
    g.drain(vm=True)
    def idle_start(name, own):
        run(start_x(g, own))
        g.barrier(name + "a")
        run(start_a(g, own))
        g.barrier(name + "b")
        g("s_setprio 1")
        run(start_b(g, own))
    if d1:
        run(P1.start_w(g))
        g("s_waitcnt lgkmcnt(0)")
        run(P1.start_x(g))
        g.barrier("h0")
        g.stamp(2)
        direct_phase(g, P1, reset=True)
    else:
        g("s_waitcnt lgkmcnt(0)")
        idle_start("h0", P[1])
        g.stamp(2)
        def h1():
            g.wait(lg=("rb", 7))
            g.barrier("h1")
        mfma_phase(g, P[1], None, None, extra={(7, opt.get("h1g", 20)): h1})
    g.stamp(3)
    e_phase(g, 1, 0, pre=P3.start_w(g) + P3.start_x(g), warm=e_warm(3), after_tile=lambda e, j: e.q2.append(sw(4 * j, 32768 + j * 2048)))
    g.wait(lg="sw")
    g.stamp(4)
    def h3():
        assert not any(t == "sw" for _, t in g.lg)
        g.barrier("h3")
    ex = {(7, opt.get("h3g", 30)): h3}
    if split:
        for n, f in enumerate(HB.loads(g, 0) + HB.loads(g, 1)):
            ex[(7, 8 * (n // 2) + 3 + 2 * (n % 2))] = f
    direct_phase(g, P3, extra=ex)
    g.stamp(5)
    def vB(e, j):
        if j == opt.get("vtile", 4):
            g.barrier("V")
            g_addr(g)
    def yB(e, j):
        e.q2.append(sw(4 * j, j * 2048))
        if j in yl:
            def f():
                g.wait(lg="sw")
                g.barrier(f"Y{j}")
            e.q2 += [lambda: None] * opt.get("ydel", 2) + [f]
    if split:
        np4 = opt.get("np4", 2)
        pre4 = [f for kp in range(2, 2 + np4) for f in HB.loads(g, kp)] + HB.start_x(g, 0, 3)
        e_phase(g, 3, 0, pre4=pre4, glu_tile=vB, after_tile=yB, tw=0)
        run(HB.start_x(g, 3, 5) + [f for kp in range(2 + np4, 8) for f in HB.loads(g, kp)])
        outv_addr(g, 88, 0)
        g.stamp(6)
        HB.phase(g, {opt.get("hbp", 66): lambda: g("s_setprio 2")})
        g.stamp(7)
        g("s_setprio 0")
        g("s_nop 6")
        for jp in range(4):
            run(outv_items(g, 2 * jp, jp, opt.get("stH", "sc1"), inflight=opt.get("inflB"), Q=[HB.aq(2 * jp + q // 2, q % 2) for q in range(4)]))
    else:
        e_phase(g, 3, 0, pre=GB.start_w(g) + GB.start_x(g), glu_tile=vB,
                warm=e_warm(5) if opt.get('w5', 2) == 3 else [], after_tile=yB, tw=0)
        outv_addr(g)
        GB.merge = opt.get("merge", 3)
        if GB.merge and opt.get("early7", 1):
            GB.early7 = True
            GB.soff(g, 7, 0); GB.soff(g, 7, 1)
            for f in range(8): GB.load(g, 7, f)
            GB.soff(g, 1, 0); GB.soff(g, 1, 1)
        g.stamp(6)
        ex = {}
        for n in range(len(zg)):
            ex[(n, opt.get("zat", 30))] = (lambda n=n: g.barrier(f"Z{n}"))
        pend = out_interleave(g, ex, GB, [int(c) for c in str(opt.get("oper", 2 if GB.merge else 4))], 7, opt.get("stB", "nt"), opt.get("outB", 2))
        direct_phase(g, GB, extra=ex)
        g.stamp(7)
        if len(pend) < 8:
            g("s_nop 7")
        run(pend)
        run(outv_items(g, 7, 7, opt.get("stB", "nt"), opt.get("outB", 2)))
    assert g.bars == barsA, (g.bars, barsA)
    g("L_fin:")
    if stamps and stamps != 4:
        g("s_waitcnt vmcnt(0)")
        g("s_memrealtime s[98:99]")
        g(f"s_mem{'real' if stamps == 3 else ''}time s[100:101]")
        g(f"s_add_u32 s4, s40, {STAMP_OFF}\ns_addc_u32 s5, s41, 0\ns_mov_b32 s6, 0x100000\ns_mov_b32 s7, 0x20000")
        g(f"s_lshl_b32 s8, s{sWg}, 3\ns_add_u32 s8, s8, s{sWv}\ns_lshl_b32 s8, s8, 7")
        g("s_waitcnt lgkmcnt(0)")
        g("s_mov_b64 exec, 1")
        g("v_mov_b32 v4, 0")
        g("s_getreg_b32 s10, hwreg(HW_REG_XCC_ID)\ns_mov_b32 s11, 0")
        order = [74, 98, 76, 100] + [76 + 2 * n for n in range(1, 10)] + [10]
        for n, s in enumerate(order):
            g(f"v_mov_b32 v0, s{s}\nv_mov_b32 v1, s{s+1}")
            g(f"buffer_store_dwordx2 v[0:1], v4, s[4:7], s8 offen offset:{8*n}")
            g("s_nop 1")
    g("L_end:")
    g("s_endpgm")
    g("L_code_end:")
    g('.section .rodata,"a"')
    g(".p2align 6")
    g(f".amdhsa_kernel {KN}_kernel")
    g.l += ["  .amdhsa_next_free_vgpr 256", "  .amdhsa_next_free_sgpr 102", "  .amdhsa_accum_offset 256",
            "  .amdhsa_group_segment_fixed_size 0", "  .amdhsa_kernarg_size 56", "  .amdhsa_user_sgpr_count 2",
            "  .amdhsa_user_sgpr_kernarg_segment_ptr 1", "  .amdhsa_system_sgpr_workgroup_id_x 1",
            f"  .amdhsa_float_denorm_mode_32 {opt.get('dn', 3)}"]
    g(".end_amdhsa_kernel")
    t = g.text()
    if stamps and opt.get("probe", 1):
        t = t.replace("; @launch grid=(256,1,1) block=(512,1,1) lds=163840",
                      f"; @launch kernel={KN}_kernel grid=(256,1,1) block=(512,1,1) lds=163840\n; @launch kernel=probe_kernel grid=(1,1,1) block=(64,1,1) lds=0")
        a = [".p2align 8", ".globl probe_kernel", ".type probe_kernel,@function", "probe_kernel:",
             "s_memrealtime s[8:9]", "s_load_dwordx2 s[4:5], s[0:1], 48", "s_waitcnt lgkmcnt(0)",
             f"s_add_u32 s4, s4, {STAMP_OFF}", "s_addc_u32 s5, s5, 0", "s_mov_b32 s6, 0x100000", "s_mov_b32 s7, 0x20000",
             "v_mov_b32 v2, s8", "v_mov_b32 v3, s9", "v_mov_b32 v1, 120", "buffer_store_dwordx2 v[2:3], v1, s[4:7], 0 offen", "s_endpgm"]
        t = t.replace('.section .rodata,"a"', "\n".join(a) + '\n.section .rodata,"a"')
        t += ".p2align 6\n.amdhsa_kernel probe_kernel\n  .amdhsa_next_free_vgpr 16\n  .amdhsa_next_free_sgpr 32\n  .amdhsa_accum_offset 16\n" \
             "  .amdhsa_group_segment_fixed_size 0\n  .amdhsa_kernarg_size 56\n  .amdhsa_user_sgpr_count 2\n" \
             "  .amdhsa_user_sgpr_kernarg_segment_ptr 1\n  .amdhsa_system_sgpr_workgroup_id_x 1\n.end_amdhsa_kernel\n"
    return t


def parse(args):
    opt = {}
    for a in args:
        k, v = a.split("=", 1)
        try:
            v = int(v)
        except ValueError:
            v = v.replace("+", " ")
        opt[k] = v
    return opt


if __name__ == "__main__":
    open(sys.argv[1], "w").write(build(parse(sys.argv[2:])))
```

```python
import sys

KN = "standalone__conformer_conv_module__speech"
STAMP_OFF = 255 * 1024 * 1024

HEAD = """; Kernarg layout for this problem (56 bytes, ptrs only, base s[0:1]):
;   offset   0: d_in[0] x  shape=(2, 16000, 512) dtype=bfloat16 strides=(16384000, 1024, 2) contiguous=True
;   offset   8: d_in[1] w_pw1  shape=(512, 1024) dtype=bfloat16 strides=(2048, 2) contiguous=True
;   offset  16: d_in[2] dw  shape=(5, 512) dtype=bfloat16 strides=(1024, 2) contiguous=True
;   offset  24: d_in[3] w_pw2  shape=(512, 512) dtype=bfloat16 strides=(1024, 2) contiguous=True
; Override launch geometry by editing the next line (default: block=256,
"""

DOC = """
;
; Fused  out = silu(dwconv5(glu(x @ W1))) @ W2.   One workgroup per CU, 126 or 124 output rows (128-row tile, row u = 8*lane15 + tile).
;   phase   0          1          2          3          4           5
; x lives in LDS (128 KB, LDS-DMA, swizzled); silu output fragments replace it for GEMM2.
; Phase 0 transposes W1 through a small LDS ring (ds_read_b64_tr_b16).  Meanwhile every even workgroup re-lays a slice of the
; The depthwise conv is one MFMA per 4 outputs (banded weights x time-packed GLU output).  The two GLU rows a 126-row tile lacks
; come from the next tile's workgroup through a mailbox in d_ws that is emptied at the start of each launch.
"""

def ACC(i, j): return 4 * (i * 8 + j)
VH = 128
VWX, VWY, VWZ = 160, 176, 192
VXR = 208
vDc, vW0, vW1, vD1 = 240, 242, 243, 244
def DW(i, h, p): return 160 + 32 * (p % 2) + 8 * i + 4 * h
def DX(n, h): return 224 + 8 * (n % 3) + 4 * h
vX0, vX1, vS = 248, 249, 250
vG8, vM0, vM1, vEX = 251, 252, 253, 254
def AF(ct, r): return 192 + 16 * ct + 4 * r
def TP(ct, r, q):
    n = 4 * ct + r
    return (160 + 6 * n if n < 5 else 224 + 6 * (n - 5)) + q + 1
def YY(ct, r, j): return 64 + 32 * ct + 8 * r + j
VEXP = 192
VTMP, VIMP = 32, 40
CTOFF = 0x140000
sX, sW1, sW2, sO, sDW, sWS, sDBG, sWE = 4, 8, 12, 16, 20, 24, 28, 32
sW64, sHo, sW128, sSb = 36, 37, 38, 39
sRows = 50
sRing = 44
sT0, sT1, sT2, sT3 = 46, 47, 48, 49
sC, sCi = 50, 51
sWv, sW, sTile, sTau, sWg, sGrp = 52, 53, 54, 55, 56, 57
sWP = 60
sWq = 58
sK = 66
sSl = 96
sCode = 16
KA = 76
QORD = (1, 2, 0, 3)
WPOFF = 1 << 20

OOB = 0x7f000000
SCR = 7 * 16384


class Gen:
    def __init__(self, opt):
        self.l = []
        self.opt = opt
        self.lg = []
        self.vm = []
        self.bars = []

    def __call__(self, s=""):
        for line in s.split("\n"):
            self.l.append(line if line.endswith(":") or line.startswith(".") or line.startswith(";") else "    " + line)

    def text(self):
        return "\n".join(self.l) + "\n"

    def ds(self, text, regs=(), tag=None):
        if self.opt.get("nosw") and tag == "sw":
            return
        if len(self.lg) >= 15:
            self("s_waitcnt lgkmcnt(11)"); self.lg = self.lg[-11:]
        self(text); self.lg.append((set(regs), tag))

    def vmem(self, text, regs=(), tag=None):
        abl = str(self.opt.get("abl", ""))
        if ("s" in abl and tag == "clr" and "dwordx4" in text) or ("c" in abl and tag == "clr" and "dwordx2" in text) or \
           ("p" in abl and regs == [22]) or ("d" in abl and regs == [10]) or ("t" in abl and tag == "task"):
            return
        self(text); self.vm.append((set(regs), tag))

    def _idx(self, q, regs, tag):
        idx = -1
        for n, (r, t) in enumerate(q):
            if (regs and (r & set(regs))) or (tag is not None and t == tag):
                idx = n
        return idx

    def wait(self, regs=(), lg=None, vm=None):
        parts = []
        i = self._idx(self.vm, regs, vm)
        if i >= 0:
            n = min(len(self.vm) - 1 - i, 63)
            parts.append(f"vmcnt({n})"); self.vm = self.vm[len(self.vm) - n:] if n else []
        i = self._idx(self.lg, regs, lg)
        if i >= 0:
            n = min(len(self.lg) - 1 - i, 15)
            parts.append(f"lgkmcnt({n})"); self.lg = self.lg[len(self.lg) - n:] if n else []
        if parts:
            self("s_waitcnt " + " ".join(parts))

    def drain(self, vm=False, lg=False):
        parts = []
        if vm and self.vm:
            parts.append("vmcnt(0)"); self.vm = []
        if lg and self.lg:
            parts.append("lgkmcnt(0)"); self.lg = []
        if parts:
            self("s_waitcnt " + " ".join(parts))

    def barrier(self, name):
        self.point(name + "_")
        self(f"s_barrier"); self.bars.append(name)
        self.point(name)

    def point(self, name):
        pts = self.opt.get("pts")
        if pts and name in pts.split():
            n = pts.split().index(name) + 1
            self(f"s_mem{'real' if self.opt['stamps'] == 3 else ''}time s[{76+2*n}:{77+2*n}]")

    def stamp(self, n):
        if self.opt.get("pts"):
            return self.point(f"s{n}")
        if self.opt.get("stamps") in (1, 3):
            self(f"s_mem{'real' if self.opt['stamps'] == 3 else ''}time s[{76+2*n}:{77+2*n}]")
            self("s_waitcnt lgkmcnt(0)")
            self.lg = []


def R(a, n=4): return f"v[{a}:{a+n-1}]"
def rs(a, n=4): return list(range(a, a + n))


def wreg(i, h, p, kind="P"):
    if i < 2:
        return (VWX if p % 2 == 0 else VWY) + 8 * i + 4 * h
    return VWZ + 8 * (i - 2) + 4 * h


def xreg(j, h): return VXR + 8 * (j % 4) + 4 * h


def kconst(kind, ab, m):
    return 16 * m * 2048 + ab * 1024 - m * 1024


def set_kconst(g, kind):
    return [lambda ab=ab, m=m: g(f"s_mov_b32 s{sK + 4*ab + m}, {kconst(kind, ab, m)}") for ab in range(2) for m in range(4)]


class Stream:
    def __init__(self, kind, arg):
        self.kind, self.arg = kind, arg

    def advance(self, g, kp, fresh=False):
        g(f"v_add_u32 v{vDc}, {kp * 131072 + self.arg * 256}, v{vD1}")

    def dma(self, g, ab, m, tag, fl=""):
        if g.opt.get("nodma"):
            return
        srd = sW1
        g.vmem(f"buffer_load_dwordx4 v{vDc}, s[{srd}:{srd+3}], s{sK + 4*ab + m} offen offset:{m*1024} {fl} lds", tag=tag)


def set_m0(g, ab):
    g(f"s_mov_b32 m0, s{sRing + ab}")


def tr_read(g, i, h, q, p, tag, kind="P"):
    d = wreg(i, h, p, kind) + 2 * q
    off, base = (i >> 1) * 4096 + h * 2048 + q * 256, vW0 + (i & 1)
    g.ds(f"ds_read_b64_tr_b16 {R(d, 2)}, v{base} offset:{off}", rs(d, 2), tag)


def part_reads(kind, ab):
    return [(i, h, q) for i in ((0, 1) if ab == 0 else (3, 2)) for h in range(2) for q in range(2)]


def x_read(g, kind, kp, j, h, d=None):
    if d is None:
        d = xreg(j, h)
    if kind == "P":
        off, base = (kp * 8 + j) * 2048 % 65536, vX0 + h
    else:
        off = (1 - (kp >> 2)) * 32768 + (kp & 1) * 16384 + j * 2048 + h * 1024
        base = vX0 + (0, 1, 1, 0)[kp >> 1]
    g.ds(f"ds_read_b128 {R(d)}, v{base} offset:{off}", rs(d))


def chain_order(jp):
    j0, j1 = 2 * jp, 2 * jp + 1
    if jp % 2 == 0:
        return [(j0, 0), (j0, 1), (j1, 1), (j1, 0), (j1, 2), (j1, 3), (j0, 3), (j0, 2)]
    return [(j0, 2), (j0, 3), (j1, 3), (j1, 2), (j1, 0), (j1, 1), (j0, 1), (j0, 0)]


def mfma(g, acc, A, B, first):
    g.wait(regs=rs(A) + rs(B))
    c = "0" if first else R(acc)
    if g.opt.get("al", 0) & 1:
        g(".p2align 3")
    if g.opt.get("al", 0) & 4 and not g.l[-1].lstrip().startswith(("v_mfma", "ds_", "buffer_")):
        g(".p2align 3"); g("s_nop 0")
    g(f"v_mfma_f32_16x16x32_bf16 {R(acc)}, {R(A)}, {R(B)}, {c}")


def start_a(g, own):
    it = [lambda i=i, h=h, q=q: tr_read(g, i, h, q, 0, ("ra", 0), own.kind) for i, h, q in part_reads(own.kind, 0)]
    it.append(lambda: own.advance(g, 1, fresh=True))
    it.append(lambda: set_m0(g, 0))
    it += [None] * g.opt.get("sgap", 3)
    it.append(lambda: g.wait(lg=("ra", 0)))
    for m in range(4):
        it.append(lambda m=m: own.dma(g, 0, m, ("a", 1)))
        it += [None] * (g.opt.get("sgap", 3) - 1)
    return it


def start_x(g, own):
    return [lambda j=j, h=h: x_read(g, own.kind, 0, j, h) for j in range(2) for h in range(2)]


def start_b(g, own):
    return [lambda i=i, h=h, q=q: tr_read(g, i, h, q, 0, ("rb", 0), own.kind) for i, h, q in part_reads(own.kind, 1)] + \
           [lambda: set_m0(g, 1)]


def run(items):
    for f in items:
        if f: f()


def mfma_phase(g, own, nxt, hname, xbar=None, first=False, extra=None):
    o = g.opt
    kind = own.kind
    extra = extra or {}

    def st(p):
        return (own, p) if p < 8 else ((nxt, 0) if (nxt and p == 8) else (None, 0))

    for kp in range(8):
        gaps = {m: [] for m in range(64)}
        late = (first and o.get("late0", 1))
        for jp in range(4):
            nkp, njp = (kp, jp + 1) if jp < 3 else (kp + 1, 0)
            if nkp > 7:
                continue
            slots = [16 * jp + n for n in ((0, 1, 2, 3) if (jp % 2 or (late and jp)) else (0, 1, 4, 5))]
            for n in range(4):
                j, h = 2 * njp + n // 2, n % 2
                def f(nkp=nkp, j=j, h=h, n=n, jp=jp):
                    if n == 0 and jp == 3 and xbar:
                        xbar(nkp)
                    x_read(g, kind, nkp, j, h)
                gaps[slots[n]].append(f)
            gaps[16 * jp + 15].append(lambda njp=njp: g.wait(regs=rs(xreg(2 * njp, 0), 16)))
        if kind == "P" and kp in (3, 7):
            k = "0x10000" if kp == 3 else "0xffff0000"
            gaps[40].append(lambda k=k: g(f"v_add_u32 v{vX0}, {k}, v{vX0}"))
            gaps[41].append(lambda k=k: g(f"v_add_u32 v{vX1}, {k}, v{vX1}"))
        s_, p_ = st(kp + 1)
        if s_:
            gaps[2].append(lambda kp=kp: g.wait(lg=("rb", kp)))
            for m, at in enumerate((3, 7, 11, 14)):
                gaps[at].append(lambda m=m, s_=s_, kp=kp: s_.dma(g, 1, m, ("b", kp + 1)))
        if kp < 7:
            a0 = 37 if late else 21
            adv, am0, aw, ad = (45, 46, 49, (50, 54, 58, 61)) if late else (29, 30, 34, (35, 39, 43, 46))
            if not o.get("novm"):
                gaps[a0 - 1].append(lambda kp=kp: g.wait(vm=("a", kp + 1)))
            for n, (i, h, q) in enumerate(part_reads(kind, 0)):
                gaps[a0 + n].append(lambda i=i, h=h, q=q, kp=kp: tr_read(g, i, h, q, kp + 1, ("ra", kp + 1), kind))
            s_, p_ = st(kp + 2)
            if s_:
                gaps[adv].append(lambda s_=s_, p_=p_: s_.advance(g, p_))
                gaps[am0].append(lambda: set_m0(g, 0))
                gaps[aw].append(lambda kp=kp: g.wait(lg=("ra", kp + 1)))
                for m in range(4):
                    gaps[ad[m]].append(lambda m=m, s_=s_, kp=kp: s_.dma(g, 0, m, ("a", kp + 2)))
                gaps[62].append(lambda: set_m0(g, 1))
            if not o.get("novm"):
                gaps[52].insert(0, lambda kp=kp: g.wait(vm=("b", kp + 1)))
            for n, (i, h, q) in enumerate(part_reads(kind, 1)):
                gaps[53 + n].insert(0, lambda i=i, h=h, q=q, kp=kp: tr_read(g, i, h, q, kp + 1, ("rb", kp + 1), kind))
        if kp == 7 and nxt:
            def fa():
                g.wait(vm=("a", 8), lg="sw")
                g.barrier(hname + "a")
            gaps[o.get("handa", 20) if not late else 36].append(fa)
            def fb():
                g.drain(vm=True, lg=True)
                g.barrier(hname + "b")
            gaps[o.get("handb", 50)].append(fb)
        if kp == 0 and o.get("prio", 1):
            gaps[o.get("prioat", 13)].append(lambda: g("s_setprio 2"))
        m = 0
        for jp in range(4):
            for (j, i) in chain_order(jp):
                for h in range(2):
                    mfma(g, ACC(i, j), wreg(i, h, kp, kind), xreg(j, h), kp == 0 and h == 0)
                    g.point(f"k{kp}g{m}")
                    for f in gaps[m]:
                        f()
                    if (kp, m) in extra:
                        extra[(kp, m)]()
                    m += 1


class Direct:
    def __init__(self, idx):
        self.idx, self.kind = idx, "PPPGG"[idx]

    def soff(self, g, kp, half):
        src = kp if self.kind == "P" else QORD[kp >> 1] * 2 + (kp & 1)
        g(f"s_mov_b32 s{sT0 + half}, {self.idx * 262144 + src * 8192 + half * 4096}")

    early7 = False
    merge = False

    def seq(self):
        seq = [(n // 8, n % 8) for n in range(64)]
        if self.merge == 1:
            seq = seq[:48] + [(6 + n % 2, n // 2) for n in range(16)]
        if self.merge == 2:
            seq = seq[:40] + [(5 + 2 * (n % 2), n // 2) for n in range(8)] + [(6, j) for j in range(4)] + \
                  [(5 + n % 3, 4 + n // 3) for n in range(12)]
        if self.merge == 3:
            seq = seq[:40] + [(5 + 2 * (n % 2), n // 2) for n in range(6)] + [(6, j) for j in range(3)] + \
                  [(5 + n % 3, 3 + n // 3) for n in range(15)]
        assert sorted(seq) == [(n // 8, n % 8) for n in range(64)]
        return seq

    def wr(self, i, h, kp):
        return VH + 8 * i + 4 * h if (self.merge and kp == 7) else DW(i, h, kp)

    def load(self, g, kp, f):
        if g.opt.get("nodma"):
            return
        d = self.wr(f >> 1, f & 1, kp)
        if g.opt.get("wskip") and 2 <= kp < 7 and (f % 2 or g.opt["wskip"] == 2):
            return
        g.vmem(f"buffer_load_dwordx4 {R(d)}, v{vS}, s[{sWP}:{sWP+3}], s{sT0 + (f >> 2)} offen offset:{(f & 3) * 1024} {g.opt.get('wpfl', 'sc1')}".rstrip(), rs(d))

    def start_w(self, g):
        it = [lambda: self.soff(g, 0, 0), lambda: self.soff(g, 0, 1)]
        for f in range(8):
            it += [lambda f=f: self.load(g, 0, f), None, None]
        return it + [lambda: self.soff(g, 1, 0), lambda: self.soff(g, 1, 1)]

    def start_x(self, g):
        return [lambda j=j, h=h: x_read(g, self.kind, 0, j, h, DX(j, h)) for j in range(2) for h in range(2)]


def direct_phase(g, own, xbar=None, extra=None, reset=False):
    g(f"; ---- phase {own.idx + 1}: matrix phase, weights straight into registers")
    o = g.opt
    kind = own.kind
    extra = extra or {}
    wat = [int(v) for v in str(o.get("wat", "2 5 10 13 18 21 26 29")).split()]
    g("s_setprio 1")
    seq = own.seq()
    for blk in range(8):
        gaps = {m: [] for m in range(64)}
        for t in range(8):
            n = blk * 8 + t + 2
            if n < 64:
                for h in range(2):
                    def f(n=n, h=h):
                        if h == 0 and xbar:
                            xbar(*seq[n])
                        if o.get("xskip") and n >= 6 and (n % 2 == 1 or o["xskip"] == 2):
                            return
                        x_read(g, kind, seq[n][0], seq[n][1], h, DX(n, h))
                    gaps[8 * t + int(str(o.get('xg', 'x01'))[1 + h])].append(f)
            if n - 1 < 64:
                r = rs(DX(n - 1, 0), 8)
                if seq[n - 1][1] == 0 and not o.get("novm"):
                    r = r + rs(own.wr(0, 0, seq[n - 1][0]), 16 if t == 7 else 32)
                gaps[8 * t + 7].append(lambda r=r: g.wait(regs=r))
        if not o.get("novm"):
            gaps[3].append(lambda blk=blk: g.wait(regs=rs(own.wr(2, 0, seq[8 * blk][0]), 16)))
        if kind == "P" and blk == 3:
            gaps[43].append(lambda: g(f"v_add_u32 v{vX0}, 0x10000, v{vX0}"))
            gaps[44].append(lambda: g(f"v_add_u32 v{vX1}, 0x10000, v{vX1}"))
        if reset and blk == 7:
            gaps[43].append(lambda: g(f"v_add_u32 v{vX0}, 0xffff0000, v{vX0}"))
            gaps[44].append(lambda: g(f"v_add_u32 v{vX1}, 0xffff0000, v{vX1}"))
        if blk < (6 if own.merge else 7):
            for f in range(8):
                at = wat[f] if not (own.merge == 3 and blk == 5) else (2, 3, 4, 5, 6, 10, 11, 12)[f]
                gaps[at].append(lambda f=f, blk=blk: own.load(g, blk + 1, f))
        if own.merge and blk == 4 and not own.early7:
            gaps[30].append(lambda: own.soff(g, 7, 0))
            gaps[31].append(lambda: own.soff(g, 7, 1))
            for f in range(8):
                gaps[min(wat[f] + 32, 58)].append(lambda f=f: own.load(g, 7, f))
        if blk < (5 if own.merge else 6):
            gaps[59].append(lambda blk=blk: own.soff(g, blk + 2, 0))
            gaps[60].append(lambda blk=blk: own.soff(g, blk + 2, 1))
        if blk == o.get("p2b", 3):
            gaps[36].append(lambda: g("s_setprio 2"))
        m = 0
        g.point(f"b{own.idx}{blk}")
        for t in range(8):
            kp, j = seq[blk * 8 + t]
            for i in (range(4) if t % 2 == 0 else range(3, -1, -1)):
                for h in range(2):
                    if o.get("novm"):
                        g.vm = [(set(), tg) for _, tg in g.vm]
                    mfma(g, ACC(i, j), own.wr(i, h, kp), DX(blk * 8 + t, h), kp == 0 and h == 0)
                    for f in gaps[m]:
                        f()
                    if (blk, m) in extra:
                        extra[(blk, m)]()
                    m += 1


class Half:
    def __init__(self, half):
        self.half = half

    def wr(self, kp, i, h):
        base = 128 + 16 * kp if kp < 6 else ((96, 112), (0, 32))[self.half][kp - 6]
        return base + 8 * i + 4 * h

    def aq(self, j, i):
        return ((0, 16, 32, 48), (16, 48, 64, 80))[self.half][j >> 1] + 8 * (j & 1) + 4 * i

    def xr(self, n, h):
        n %= 6
        return (224 + 8 * n if n < 3 else (64, 96)[self.half] + 8 * (n - 3)) + 4 * h

    def loads(self, g, kp):
        src = QORD[kp >> 1] * 2 + (kp & 1)
        it = [lambda: g(f"s_add_u32 s{sT0}, s{sHo}, {4 * 262144 + self.half * 131072 + src * 8192}")]
        for f in range(4):
            d = self.wr(kp, f >> 1, f & 1)
            if not g.opt.get("nodma"):
                it.append(lambda d=d, f=f: g.vmem(f"buffer_load_dwordx4 {R(d)}, v{vS}, s[{sWP}:{sWP+3}], s{sT0} offen offset:{f * 1024} sc1", rs(d)))
        return it

    def seq(self):
        return [(kp, j) for kp in range(8) for j in range(8)] if self.half == 0 else [(kp, j) for j in range(8) for kp in range(8)]

    def xread(self, g, n, h):
        kp, j = self.seq()[n]
        x_read(g, "G", kp, j, h, self.xr(n, h))

    def start_x(self, g, lo, hi):
        return [lambda n=n, h=h: self.xread(g, n, h) for n in range(lo, hi) for h in range(2)]

    def phase(self, g, extra):
        seq = self.seq()
        g("s_setprio 1")
        m = 0
        for n, (kp, j) in enumerate(seq):
            if n % 16 == 0:
                g.point(f"H{self.half}{n // 16}")
            for t, i in enumerate((0, 1) if n % 2 == 0 else (1, 0)):
                for h in range(2):
                    mfma(g, self.aq(j, i), self.wr(kp, i, h), self.xr(n, h), kp == 0 and h == 0)
                    gp = 2 * t + h
                    if gp < 2 and n + 5 < 64:
                        self.xread(g, n + 5, gp)
                    if gp == 3 and n % 2 == 1 and n + 1 < 64:
                        r = rs(self.xr(n + 1, 0), 8) + rs(self.xr(n + 2, 0), 8)
                        for nn in (n + 1, n + 2):
                            r += rs(self.wr(seq[nn][0], 0, 0), 16)
                        g.wait(regs=r)
                    if m in extra:
                        extra[m]()
                    m += 1


def lane(g, v):
    g(f"v_mbcnt_lo_u32_b32 v{v}, -1, 0")
    g(f"v_mbcnt_hi_u32_b32 v{v}, -1, v{v}")


class Mixer:
    def __init__(self, g):
        self.g, self.q, self.every, self.n = g, [], 2, 0
        self.q2, self.n2 = [], 0
        self.q3, self.n3 = [], 0

    def __call__(self, s):
        if self.g.opt.get("al", 0) & 2 and s.startswith(("v_fma", "v_cvt_pk", "v_mov_b32_dpp", "v_cndmask_b32_dpp")):
            self.g(".p2align 3")
        self.g(s)
        self.n += 1
        self.n3 += 1
        if self.q3 and self.n3 % self.ev3 == 4:
            self.q3.pop(0)()
        if self.q2:
            self.n2 += 1
            if self.n2 >= self.g.opt.get("wdelay", 8):
                self.q2.pop(0)(); self.n2 = 0
        if self.q and self.n % self.every == 0:
            f = self.q.pop(0)
            if f: f()

    def flush(self):
        while self.q2:
            self.q2.pop(0)()
        self.n2 = 0
        while self.q:
            f = self.q.pop(0)
            if f: f()


def glu(e, pairs, scaled=False):
    if e.g.opt.get("noE"): return
    if not scaled:
        for a, b in pairs: e(f"v_mul_f32 v{b}, s{sC}, v{b}")
    for a, b in pairs: e(f"v_exp_f32 v{b}, v{b}")
    for a, b in pairs: e(f"v_fma_f32 v{b}, v{b}, s{sCi}, s{sCi}")
    for a, b in pairs: e(f"v_rcp_f32 v{b}, v{b}")
    for a, b in pairs: e(f"v_mul_f32 v{a}, v{a}, v{b}")


HFL = ["sc0 sc1"]
def halo_loads(ph):
    return [f"buffer_load_dwordx4 {R(VIMP + 4*ct)}, v{vG8}, s[{sWS}:{sWS+3}], s{sW128} offen offset:{ph*512 + ct*64} {HFL[0]}" for ct in range(2)]


def halo_check(g, ph):
    lab = f"L_poll{ph}"
    g(f"s_mov_b32 s{sT2}, {g.opt.get('spin', 4000000)}")
    g.wait(regs=rs(VIMP, 8))
    g(f"{lab}:")
    g(f"v_max3_u32 v{VTMP}, v{VIMP}, v{VIMP+1}, v{VIMP+2}")
    g(f"v_max3_u32 v{VTMP+1}, v{VIMP+3}, v{VIMP+4}, v{VIMP+5}")
    g(f"v_max3_u32 v{VTMP}, v{VTMP}, v{VIMP+6}, v{VIMP+7}")
    g(f"v_max_u32 v{VTMP}, v{VTMP}, v{VTMP+1}")
    g(f"v_cmp_eq_u32 vcc, -1, v{VTMP}")
    g(f"s_sub_u32 s{sT2}, s{sT2}, 1")
    g(f"s_cbranch_scc1 {lab}_ok")
    g(f"s_cbranch_vccz {lab}_ok")
    for t in halo_loads(ph):
        g(t)
    g("s_waitcnt vmcnt(0)")
    g(f"s_branch {lab}")
    g(f"{lab}_ok:")


def conv_mfma(ct, r, half):
    return f"v_mfma_f32_16x16x32_bf16 {R(YY(ct, r, 4*half))}, {R(AF(ct, r))}, {R(TP(ct, r, 2*half - 1))}, 0"


def e_phase(g, ph, dst, pre=(), after_tile=None, glu_tile=None, silu_tile=None, warm=(), tw=3, pre4=()):
    o = g.opt
    halo = o.get("halo", 1)
    noE = o.get("noE")
    skip = o.get("skip", 1)
    e = Mixer(g)
    prio = 0
    g("s_setprio 0")
    g(f"s_movk_i32 s{sT3}, {ph * 8192}")
    g("s_nop 5")
    el = [(ct, r) for ct in range(2) for r in range(4)]
    for ct, r in el:
        e.q.append(lambda ct=ct, r=r: g.vmem(
            f"buffer_load_dwordx4 {R(AF(ct, r))}, v{vM0}, s[{sDW}:{sDW+3}], s{sT3} offen offset:{ct*1024 + r*64} sc1", rs(AF(ct, r))))
    q0 = e.q; e.q = []
    e.q3 = list(warm); e.ev3 = 12 if len(e.q3) < 40 else 6
    e.every = o.get('afev', 8)
    def pack(q): return [f"v_cvt_pk_bf16_f32 v{TP(ct, r, q)}, v{ACC(ct, 2*q)+r}, v{ACC(ct, 2*q+1)+r}" for ct, r in el]
    for n_, j in enumerate((2, 3, 0, 1, 4, 5, 6, 7)):
        glu(e, [(ACC(ct, j) + r, ACC(2 + ct, j) + r) for ct in range(2) for r in range(4)], ph > 0 and o.get('psc', 0))
        if n_ == 1:
            for t in pack(1): e(t)
            if halo:
                assert not any(r for r, _ in g.vm)
                if skip:
                    g(f"s_cmp_eq_u32 s{sWE+2}, 0")
                    g(f"s_cbranch_scc1 L_noexp{ph}")
                for n, (ct, r) in enumerate(el):
                    g(f"v_min_u32 v{VEXP+n}, -2, v{TP(ct, r, 1)}")
                for ct in range(2):
                    g.vmem(f"buffer_store_dwordx4 {R(VEXP+4*ct)}, v{vEX}, s[{sWE}:{sWE+3}], s{sW128} offen offset:{ph*512 + ct*64} {HFL[0]}")
                g(f"L_noexp{ph}:")
            e.n = 0
            e.q = q0
        if glu_tile:
            glu_tile(e, n_)
    e.flush()
    if not noE:
        for t in pack(3): e(t)
        for ct, r in el:
            e(f"v_mov_b32_dpp v{TP(ct, r, -1)}, v{TP(ct, r, 3)} row_shr:1 row_mask:0xf bank_mask:0xf bound_ctrl:1")
        p1, p2 = pack(0), pack(2)
        fill = [t for n in range(8) for t in (p1[n], p2[n])]
        for t in fill[:4]: e(t)
        g.wait(regs=rs(192, 32))
        g(f"s_setprio {o.get('cprio', 3)}")
        for n, (ct, r) in enumerate(el):
            g(conv_mfma(ct, r, 0))
            for t in fill[2*n + 4:2*n + 6]: e(t)
            if n == 5: g("s_nop 0")
        g("s_setprio 0")
    if halo and o.get("ti", -1) < 0:
        assert not any(r for r, _ in g.vm)
        if skip:
            g(f"s_cmp_eq_u32 s{sWS+2}, 0")
            g(f"s_cbranch_scc1 L_noimp{ph}")
        for ct, t in enumerate(halo_loads(ph)):
            g.vmem(t, rs(VIMP + 4 * ct))
        g(f"L_noimp{ph}:")
    while e.q3:
        e.q3.pop(0)()
    ta = o.get("ta", 6)
    ti, tc = o.get("ti", -1), o.get("tc", 3)
    for j in range(8):
        if silu_tile:
            silu_tile(e, j)
        if j == tw and warm:
            g("s_waitcnt lgkmcnt(0)"); g.lg = []
        if j == ti:
            if halo:
                for ct, t in enumerate(halo_loads(ph)):
                    g.vmem(t, rs(VIMP + 4 * ct))
        if j == 4 and pre4:
            assert tc < 4
            e.q += list(pre4); e.every = o.get("p4ev", 8); e.n = 0
        if j == ta and pre4:
            g("s_setprio 1"); prio = 1
        elif j == ta:
            g("s_setprio 1"); prio = 1
            e.q += list(pre); e.every = 2; e.n = 0
        ys = [YY(ct, r, j) for ct, r in el]
        mm = []
        if j == tc and not noE:
            if halo and skip:
                g(f"s_mov_b64 vcc, 0")
                g(f"s_cmp_eq_u32 s{sWS+2}, 0")
                g(f"s_cbranch_scc1 L_nochk{ph}")
            if halo:
                halo_check(g, ph)
            g(f"s_mov_b32 vcc_lo, {0x80008000 if halo else 0}")
            g(f"s_mov_b32 vcc_hi, {0x80008000 if halo else 0}")
            g(f"L_nochk{ph}:")
            for n, (ct, r) in enumerate(el):
                e(f"v_cndmask_b32_dpp v{TP(ct, r, 4)}, v{TP(ct, r, 0)}, v{VIMP+n}, vcc row_shl:1 row_mask:0xf bank_mask:0xf bound_ctrl:1")
            mm = [conv_mfma(ct, r, 1) for ct, r in el]
            g(f"s_setprio {o.get('cprio', 3)}")
        if not noE:
            for n, y in enumerate(ys):
                if mm: g(mm[n])
                e(f"v_exp_f32 v{VTMP+n}, v{y}")
            if mm: g(f"s_setprio {prio}")
            for n, y in enumerate(ys): e(f"v_fma_f32 v{VTMP+n}, v{VTMP+n}, s{sC}, s{sC}")
            for n, y in enumerate(ys): e(f"v_rcp_f32 v{VTMP+n}, v{VTMP+n}")
            for n, y in enumerate(ys): e(f"v_mul_f32 v{y}, v{y}, v{VTMP+n}")
        for n in range(4): e(f"v_cvt_pk_bf16_f32 v{dst+4*j+n}, v{ys[2*n]}, v{ys[2*n+1]}")
        if after_tile:
            after_tile(e, j)
    e.flush()


vG0, vG1, vG2 = vM0, vM1, vEX


def outv_addr(g, t=144, half=None):
    lane(g, t)
    if half is None:
        g(f"s_lshl_b32 s{sT2}, s{sWv}, 7")
    else:
        g(f"s_add_u32 s{sT2}, s{sW64}, {512 + 256 * half}")
    g(f"v_bfe_u32 v{t+1}, v{t}, 1, 3")
    g(f"v_lshl_add_u32 v{vG0}, v{t+1}, 14, s{sT2}")
    g(f"v_bfe_u32 v{t+2}, v{t}, 4, 1")
    g(f"v_lshl_add_u32 v{vG0}, v{t+2}, 5, v{vG0}")
    g(f"v_lshrrev_b32 v{t+2}, 5, v{t}")
    g(f"v_lshl_add_u32 v{vG0}, v{t+2}, {6 if half is None else 10}, v{vG0}")
    g(f"v_and_b32 v{t+2}, 1, v{t}")
    g(f"v_lshl_add_u32 v{vG0}, v{t+2}, 4, v{vG0}")
    g(f"v_cmp_eq_u32 vcc, 0, v{t+1}")
    g(f"v_mov_b32 v{vG2}, {OOB}")
    g(f"v_add_u32 v{vG1}, 8192, v{vG0}")
    g(f"v_cndmask_b32 v{vG2}, v{vG0}, v{vG2}, vcc")
    g(f"s_movk_i32 s{sT3}, 4096")
    g(f"s_mov_b32 vcc_lo, 0x55555555")
    g(f"s_mov_b32 vcc_hi, 0x55555555")


def outv_items(g, j, n, fl, mode=2, inflight=None, Q=None):
    Q = Q or [ACC(i, j) for i in range(4)]
    def T(i, d): return Q[i >> 1] + 2 * (i & 1) + d
    it = []
    for i in range(4):
        for d in range(2):
            a = Q[i] + 2 * d
            it.append(f"v_cvt_pk_bf16_f32 v{T(i, d)}, v{a}, v{a+1}")
    if not g.opt.get("nsw", 1):
        for d in range(2):
            for i in (0, 2):
                it.append(f"v_permlane16_swap_b32 v{T(i, d)}, v{T(i+1, d)}")
        for d in range(2):
            for i in (0, 1):
                it.append(f"v_permlane32_swap_b32 v{T(i, d)}, v{T(i+2, d)}")
    dpp = "quad_perm:[1,0,3,2] row_mask:0xf bank_mask:0xf"
    so = "0" if j < 4 else f"s{sT3}"
    for hb in ((0, 1) if n % 2 == 0 else (1, 0)):
        S = Q[2 + hb]
        for k in ((0, 1, 2, 3) if g.opt.get('nsw', 1) else (0, 2, 1, 3)):
            it.append(f"v_cndmask_b32_dpp v{S+k}, v{Q[1-hb]+k}, v{Q[hb]+k}, vcc {dpp}")
        if hb == n % 2:
            it.append("s_not_b64 vcc, vcc")
        va = vG1 if hb else (vG2 if j < 2 else vG0)
        if inflight is not None:
            it.append(f"s_waitcnt vmcnt({inflight})")
        it.append(f"buffer_store_dwordx4 {R(S)}, v{va}, s[{sO}:{sO+3}], {so} offen offset:{(j % 4)*1024} {fl}".rstrip())
    if mode == 1: it = [t for t in it if not t.startswith("buffer")]
    if mode == 3: it = [t for t in it if t.startswith("buffer")]
    return [(lambda t=t: g.vmem(t) if t.startswith("buffer") else g(t)) for t in it]


def out_interleave(g, ex, own, per, ntiles, fl, mode=2):
    pend = []
    seq = own.seq()
    done = {8 * max(n for n in range(64) if seq[n][1] == j) + 15: j for j in range(ntiles)}
    def f(m):
        if m in done:
            pend.extend(outv_items(g, done[m], done[m], fl, mode))
        for _ in range(per[m % len(per)]):
            if pend: pend.pop(0)()
    for m in range(min(done), 512):
        assert (m // 64, m % 64) not in ex
        ex[(m // 64, m % 64)] = (lambda m=m: f(m))
    return pend


def srd(g, d, lo, size):
    g(f"s_mov_b32 s{d}, s{lo}")
    g(f"s_mov_b32 s{d+1}, s{lo+1}")
    g(f"s_mov_b32 s{d+2}, {size}")
    g(f"s_mov_b32 s{d+3}, 0x20000")


def g_addr(g):
    g(f"v_subrev_u32 v{vX1}, s{sSb}, v{vS}")
    g(f"v_add_u32 v{vX0}, 98304, v{vX1}")
    g(f"v_add_u32 v{vX1}, 32768, v{vX1}")


def build(opt):
    g = Gen(opt)
    HFL[0] = opt.get("hfl", "sc0 sc1")
    halo = opt.get("halo", 1)
    xfl = opt.get("xflag", "nt")
    win = opt.get("win", 2)
    rbar = opt.get("rbar", 15)
    stamps = opt.get("stamps")
    kx, kw1, kdw, kw2, kout, kdbg, kws = KA, KA + 2, KA + 4, KA + 6, KA + 8, KA + 10, KA + 12
    g.l.append(HEAD.rstrip("\n"))
    g("; @launch grid=(256,1,1) block=(512,1,1) lds=163840")
    g.l.append(DOC.strip("\n"))
    g('.amdgcn_target "amdgcn-amd-amdhsa--gfx950"')
    g(".text")
    g(f".globl {KN}_kernel")
    g(".p2align 8")
    g(f".type {KN}_kernel,@function")
    g(f"{KN}_kernel:")
    g("s_cmp_ge_u32 s2, 256")
    g("s_cbranch_scc1 L_end")
    for wgi in str(opt.get("idle", "")).split():
        g(f"s_cmp_eq_u32 s2, {wgi}")
        g("s_cbranch_scc1 L_end")
    g(f"s_load_dwordx8 s[{KA}:{KA+7}], s[0:1], 0")
    g(f"s_load_dwordx4 s[{KA+8}:{KA+11}], s[0:1], 32")
    g(f"s_load_dwordx2 s[{KA+12}:{KA+13}], s[0:1], 48")
    if stamps:
        g("s_memrealtime s[74:75]")
        g(f"s_mem{'real' if stamps == 3 else ''}time s[100:101]")
    g(f"v_readfirstlane_b32 s{sWv}, v0")
    g(f"s_mov_b32 s{sWg}, s2")
    g(f"s_and_b32 s3, s2, 7")
    g(f"s_lshr_b32 s{sT0}, s2, 3")
    g(f"s_lshl_b32 s{sT1}, s3, 5")
    g(f"s_add_u32 s{sTile}, s{sT0}, s{sT1}")
    g(f"s_mul_i32 s3, s3, {4000 * 1024}")
    g(f"s_bitcmp1_b32 s2, 0")
    g(f"s_cselect_b32 s{sT2}, 32768, 0")
    g(f"s_add_u32 s3, s3, s{sT2}")
    g(f"s_lshr_b32 s{sT2}, s{sT2}, 4")
    g(f"s_sub_u32 s{sRows}, {126 * 1024}, s{sT2}")
    g(f"s_mul_i32 s2, s{sT0}, s{sRows}")
    g(f"s_add_u32 s2, s2, s3")
    g(f"s_and_b32 s{sTau}, s{sTile}, 127")
    g(f"s_lshr_b32 s{sWv}, s{sWv}, 6")
    if opt.get("swap", 1):
        g(f"s_xor_b32 s{sWv}, s{sWv}, 4")
    g(f"s_and_b32 s{sW}, s{sWv}, 3")
    g("v_and_b32 v0, 63, v0")
    if opt.get("stag"):
        g(f"s_bfe_u32 s{sT0}, s{sWg}, {0x10000 * opt.get('stagb', 1) + 3}")
        g("L_stag:")
        g(f"s_sub_u32 s{sT0}, s{sT0}, 1")
        g("s_cbranch_scc1 L_stag_e")
        g(f"s_sleep {opt['stag']}")
        g("s_branch L_stag")
        g("L_stag_e:")
    g(f"s_cmp_lt_u32 s{sWv}, 4")
    g("s_cbranch_scc1 L_startA")

    P = [Stream("P", ph) for ph in range(2)]
    P1, P2, P3, GA, GB = (Direct(n) for n in range(5))
    d1 = opt.get('d1', 1)

    if opt.get("bp"):
        g("s_setprio 3")
    g(f"v_lshrrev_b32 v12, 3, v0")
    g(f"v_and_b32 v13, 7, v0")
    g(f"v_lshrrev_b32 v14, 4, v0")
    g(f"v_xor_b32 v14, v14, v13")
    g(f"s_lshl_b32 s{sT3}, s{sW}, 11")
    g(f"v_lshl_add_u32 v14, v14, 4, s{sT3}")
    g(f"v_lshl_add_u32 v16, v12, 13, v14")
    g(f"v_xor_b32 v17, 0x10040, v16")
    g(f"v_add_u32 v19, 1024, v17")
    g(f"s_cmp_eq_u32 s{sTau}, 0")
    g(f"s_cselect_b32 s{sT3}, 1024, 0")
    g(f"v_cmp_gt_u32 vcc, s{sT3}, v16")
    g(f"v_mov_b32 v15, {OOB}")
    g(f"s_cmp_eq_u32 s{sTau}, 127")
    g(f"v_cndmask_b32 v16, v16, v15, vcc")
    g(f"s_mov_b32 s{sX+3}, 0x20000")
    g(f"s_cselect_b32 s{sX+2}, {126*1024}, s{sX+3}")
    g(f"v_add_u32 v18, 1024, v16")
    g(f"s_lshl_b32 s{sT3}, s{sW}, 12")
    g("s_waitcnt lgkmcnt(0)")
    g(f"s_add_u32 s{sX}, s{kx}, s2")
    g(f"s_addc_u32 s{sX+1}, s{kx+1}, 0")
    g(f"s_sub_u32 s{sX}, s{sX}, 2048")
    g(f"s_subb_u32 s{sX+1}, s{sX+1}, 0")
    if opt.get("hd") == 1: g.stamp(8)

    def d1_addr():
        g(f"v_lshrrev_b32 v1, 5, v0")
        g(f"v_lshlrev_b32 v1, 1, v1")
        g(f"v_and_b32 v2, 3, v0")
        g(f"v_xor_b32 v1, v1, v2")
        g(f"s_lshl_b32 s{sW64}, s{sW}, 6")
        g(f"v_lshl_add_u32 v1, v1, 4, s{sW64}")
        g(f"v_lshrrev_b32 v3, 2, v0")
        g(f"v_lshl_add_u32 v{vD1}, v3, 11, v1")
        g(f"s_lshl_b32 s{sRing}, s{sW}, 13")
        g(f"s_add_u32 s{sRing}, s{sRing}, 131072")
        g(f"s_add_u32 s{sRing+1}, s{sRing}, 4096")
        for f in set_kconst(g, "P"): f()

    def ct_srd():
        g(f"s_lshl_b32 s{sT0}, s{sW}, 11")
        g(f"s_add_u32 s{sT0}, s{sT0}, {CTOFF}")
        g(f"s_add_u32 s{sDW}, s{sWq}, s{sT0}")
        g(f"s_addc_u32 s{sDW+1}, s{sWq+1}, 0")
        g(f"s_mov_b32 s{sDW+2}, 32768")
        g(f"s_mov_b32 s{sDW+3}, 0x20000")

    def common(role):
        srd(g, sW2, kw2, 524288)
        g(f"s_add_u32 s{sO}, s{kout}, s2")
        g(f"s_addc_u32 s{sO+1}, s{kout+1}, 0")
        g(f"s_sub_u32 s{sO}, s{sO}, 2048")
        g(f"s_subb_u32 s{sO+1}, s{sO+1}, 0")
        g(f"s_add_u32 s{sO+2}, s{sRows}, 2048")
        g(f"s_mov_b32 s{sO+3}, 0x20000")
        srd(g, sDBG, kdbg, 256)
        g(f"s_lshl_b32 s{sT0}, s{sTile}, 11")
        g(f"s_add_u32 s{sWS}, s{kws}, s{sT0}")
        g(f"s_addc_u32 s{sWS+1}, s{kws+1}, 0")
        g(f"s_sub_u32 s{sWE}, s{sWS}, 2048")
        g(f"s_subb_u32 s{sWE+1}, s{sWS+1}, 0")
        g(f"s_bitcmp1_b32 s{sTile}, 5")
        g(f"s_cselect_b32 s{sWS+2}, 0, 2048")
        g(f"s_sub_u32 s{sT0}, s{sTile}, 1")
        g(f"s_bitcmp1_b32 s{sT0}, 5")
        g(f"s_cselect_b32 s{sWE+2}, 0, 2048")
        g(f"s_mov_b32 s{sWS+3}, 0x20000")
        g(f"s_mov_b32 s{sWE+3}, 0x20000")
        if stamps:
            g(f"s_mov_b64 s[40:41], s[{kws}:{kws+1}]")
        g(f"s_mov_b32 s{sC}, 0xbfb8aa3b")
        g(f"s_mov_b32 s{sCi}, 0xbf317218")
        g(f"s_lshl_b32 s{sW128}, s{sW}, 7")
        g(f"v_lshrrev_b32 v3, 4, v0")
        g(f"v_lshlrev_b32 v4, 1, v3")
        g(f"v_lshlrev_b32 v{vG8}, 4, v3")
        g(f"v_bfe_u32 v5, v0, 2, 2")
        g(f"v_xor_b32 v24, v5, v3")
        g(f"v_lshlrev_b32 v24, 24, v24")
        g(f"v_lshl_add_u32 v24, v5, 8, v24")
        g(f"v_lshl_add_u32 v{vM0}, v2, 4, v24")
        g(f"v_and_b32 v25, 15, v0")
        g(f"v_lshl_add_u32 v{vEX}, v25, 24, v{vG8}")
        g(f"s_lshr_b32 s{sT0}, s{sW}, 1")
        g(f"s_lshl_b32 s{sT0}, s{sT0}, 14")
        g(f"s_and_b32 s{sT1}, s{sW}, 1")
        g(f"s_lshl_b32 s{sT1}, s{sT1}, 10")
        g(f"s_add_u32 s{sSb}, s{sT0}, s{sT1}")
        g(f"s_add_u32 s{sSb}, s{sSb}, {32768 if role == 0 else 98304}")
        g(f"v_lshl_add_u32 v{vS}, v0, 4, s{sSb}")
        g(f"s_add_u32 s{sWq}, s{kws}, {WPOFF}")
        g(f"s_addc_u32 s{sWq+1}, s{kws+1}, 0")
        g(f"s_lshl_b32 s{sT0}, s{sW}, 16")
        g(f"s_add_u32 s{sWP}, s{sWq}, s{sT0}")
        g(f"s_addc_u32 s{sWP+1}, s{sWq+1}, 0")
        g(f"s_sub_u32 s{sWP}, s{sWP}, s{sSb}")
        g(f"s_subb_u32 s{sWP+1}, s{sWP+1}, 0")
        g(f"s_lshr_b32 s{sT1}, s{sW}, 1")
        g(f"s_lshl_b32 s{sT1}, s{sT1}, 16")
        g(f"s_sub_u32 s{sHo}, s{sT1}, s{sT0}")
        g(f"s_and_b32 s{sT1}, s{sW}, 1")
        g(f"s_lshl_b32 s{sT1}, s{sT1}, 12")
        g(f"s_add_u32 s{sHo}, s{sHo}, s{sT1}")
        g(f"s_mov_b32 s{sWP+2}, 0x200000")
        g(f"s_mov_b32 s{sWP+3}, 0x20000")
        g(f"v_bfe_u32 v4, v0, 4, 1")
        g(f"v_bfe_u32 v5, v0, 2, 2")
        g(f"v_lshl_add_u32 v{vW0}, v3, 9, s{sRing}")
        g(f"v_lshl_add_u32 v{vW0}, v5, 6, v{vW0}")
        g(f"v_lshl_add_u32 v{vW0}, v4, 5, v{vW0}")
        g(f"v_lshl_add_u32 v{vW0}, v2, 3, v{vW0}")
        g(f"v_xor_b32 v{vW1}, 32, v{vW0}")
        g(f"v_and_b32 v4, 15, v0")
        g(f"v_lshrrev_b32 v5, 1, v4")
        g(f"v_xor_b32 v5, v5, v3")
        g(f"v_lshlrev_b32 v5, 4, v5")
        g(f"v_lshl_add_u32 v{vX0}, v4, 7, v5")
        g(f"v_xor_b32 v{vX1}, 64, v{vX0}")
        if stamps:
            g("s_mov_b64 s[76:77], s[100:101]")


    sWB = 0
    sub = (0, 64)
    def wbase(key):
        if key < 2 - d1:
            g(f"s_lshl_b32 s{sT2}, s{sSl}, 13")
            g(f"s_add_u32 s{sT2}, s{sT2}, {key * 256}")
            ptr = sW1
        else:
            g(f"s_lshl_b32 s{sT2}, s{sSl}, 11")
            g(f"s_add_u32 s{sT2}, s{sT2}, {(key - 1) * 262144}")
            ptr = sWq
        g(f"s_add_u32 s{sWB}, s{ptr}, s{sT2}")
        g(f"s_addc_u32 s{sWB+1}, s{ptr+1}, 0")
    def wlines(key):
        if key < 2 - d1:
            return [(key, n * 1024 + e * 64) for n in range(8) for e in range(4)]
        return [(key, n * 64) for n in range(32)]
    def swarm(lines):
        cur = None
        for n, (key, of) in enumerate(lines):
            if key != cur:
                wbase(key); cur = key
            if n % 14 == 0:
                g(f"s_waitcnt lgkmcnt({15 - min(14, len(lines) - n)})")
            g(f"s_load_dword s3, s[{sWB}:{sWB+1}], {of}")
    later = wlines(1)
    nb = 8
    def e_warm(key, n0=0):
        if str(key) not in str(opt.get("wk", "5")):
            return []
        def ld(n, of):
            if n + n0 >= 14:
                g("s_waitcnt lgkmcnt(13)")
            g(f"s_load_dword s3, s[{sWB}:{sWB+1}], {of}")
        return [lambda: wbase(key)] + [(lambda n=n, of=of: ld(n, of)) for n, (_, of) in enumerate(wlines(key))]

    def x_issue(kp):
        g(f"s_movk_i32 s{sT0}, {kp*128}")
        for jj in range(2):
            for hh in range(2):
                g(f"s_add_u32 m0, s{sT3}, {kp*16384 + jj*2048 + hh*1024}")
                g("s_nop 0")
                g.vmem(f"buffer_load_dwordx4 v{16+2*jj+hh}, s[{sX}:{sX+3}], s{sT0} offen {xfl} lds".replace("  ", " "), tag=("x", kp))
    x_issue(0)
    if opt.get("hd") == 2:
        g("s_waitcnt vmcnt(0)"); g.stamp(8)
    srd(g, sW1, kw1, 1048576)
    g(f"s_getpc_b64 s[{sCode}:{sCode+1}]")
    g("L_pc:")
    g(f"s_mov_b32 s{sCode+2}, L_code_end-L_pc")
    g(f"s_mov_b32 s{sCode+3}, 0x20000")
    g(f"s_lshr_b32 s{sT1}, s{sWg}, 3")
    g(f"s_lshl2_add_u32 s{sSl}, s{sT1}, s{sW}")
    g(f"v_lshrrev_b32 v6, 1, v0")
    g(f"v_lshlrev_b32 v6, 10, v6")
    g(f"v_and_b32 v7, 1, v0")
    g(f"v_lshl_add_u32 v6, v7, 7, v6")
    g(f"v_lshrrev_b32 v7, 4, v0")
    g(f"v_lshl_add_u32 v6, v7, 28, v6")
    def warm_w1(ph, dst):
        g(f"s_lshl_b32 s{sT2}, s{sSl}, 13")
        if ph:
            g(f"s_add_u32 s{sT2}, s{sT2}, {ph * 256}")
        g.vmem(f"buffer_load_dword v{dst}, v6, s[{sW1}:{sW1+3}], s{sT2} offen {opt.get('wfl', '')}", [dst])
    if opt.get("warm0", 1) == 1:
        warm_w1(0, 8)
    if opt.get("cw", 1) == 1:
        g(f"s_lshl_b32 s{sT2}, s{sSl}, 7")
        g(f"v_lshlrev_b32 v7, 14, v0")
        g.vmem(f"buffer_load_dword v9, v7, s[{sCode}:{sCode+3}], s{sT2} offen", [9])
    if opt.get("warm0", 1) == 2:
        swarm(wlines(0)[12 * len(sub):])
    if opt.get("hd") in (2, 3):
        g("s_waitcnt vmcnt(0)"); g.stamp(9)
    d1_addr()
    common(1)
    assert d1 and opt.get("nsw", 1)
    oddp = opt.get("oddp", 1)
    vm0 = list(g.vm)
    if oddp:
        g(f"s_bitcmp1_b32 s{sWg}, 0")
        g("s_cbranch_scc1 L_oddB")
    full = opt.get("tmode", 2) == 2
    sE, sS1, sD1, sS2, sD2, sOff = 64, 65, 42, 43, sSl + 1, 3
    BIG = 0x40000000
    if opt.get("emap", 0):
        g(f"s_lshr_b32 s{sT0}, s{sWg}, 3")
        g(f"s_bfe_u32 s{sT1}, s{sWg}, 0x10001")
        g(f"s_lshl1_add_u32 s{sE}, s{sT0}, s{sT1}")
        g(f"s_bfe_u32 s{sT1}, s{sWg}, 0x10002")
        g(f"s_lshl_b32 s{sT1}, s{sT1}, 6")
        g(f"s_add_u32 s{sE}, s{sE}, s{sT1}")
    else:
        g(f"s_lshr_b32 s{sE}, s{sWg}, 1")
    g(f"s_and_b32 s{sOff}, s{sWg}, 1")
    if opt.get("tpar"):
        g(f"s_xor_b32 s{sOff}, s{sOff}, 1")
    g(f"s_lshl_b32 s{sOff}, s{sOff}, 30")
    g(f"s_and_b32 s{sT0}, s{sE}, 15")
    g(f"s_lshr_b32 s{sT1}, s{sT0}, 1")
    g(f"s_lshl_b32 s{sD1}, s{sT1}, 13")
    g(f"s_and_b32 s{sT1}, s{sT0}, 1")
    g(f"s_lshl_b32 s{sT1}, s{sT1}, 10")
    g(f"s_add_u32 s{sD1}, s{sD1}, s{sT1}")
    g(f"s_lshl_b32 s{sS2}, s{sT0}, 15")
    g(f"s_lshl_b32 s{sT2}, s{sW}, 13")
    g(f"s_add_u32 s{sS2}, s{sS2}, s{sT2}")
    g(f"s_lshl_b32 s{sT2}, s{sW}, 11")
    g(f"s_add_u32 s{sD2}, s{sD1}, s{sT2}")
    g(f"s_lshr_b32 s{sT1}, s{sE}, 4")
    g(f"s_lshl_b32 s{sT2}, s{sT1}, 16")
    g(f"s_add_u32 s{sD2}, s{sD2}, s{sT2}")
    g(f"s_add_u32 s{sD2}, s{sD2}, {3 * 262144}")
    g(f"s_lshl_b32 s{sT2}, s{sT1}, 7")
    g(f"s_add_u32 s{sS2}, s{sS2}, s{sT2}")
    g(f"s_lshl_b32 s{sS1}, s{sT0}, 16")
    g(f"s_and_b32 s{sT1}, s{sW}, 1")
    g(f"s_lshl_b32 s{sT2}, s{sT1}, 15")
    g(f"s_add_u32 s{sS1}, s{sS1}, s{sT2}")
    g(f"s_lshl_b32 s{sT2}, s{sT1}, 11")
    g(f"s_add_u32 s{sD1}, s{sD1}, s{sT2}")
    g(f"s_lshr_b32 s{sT1}, s{sW}, 1")
    g(f"s_lshl_b32 s{sT2}, s{sT1}, 13")
    g(f"s_add_u32 s{sS1}, s{sS1}, s{sT2}")
    g(f"s_lshl_b32 s{sT2}, s{sT1}, 16")
    g(f"s_add_u32 s{sD1}, s{sD1}, s{sT2}")
    g(f"s_bfe_u32 s{sT1}, s{sE}, 0x10004")
    g(f"s_lshl_b32 s{sT2}, s{sT1}, 10")
    g(f"s_add_u32 s{sS1}, s{sS1}, s{sT2}")
    g(f"s_lshl_b32 s{sT2}, s{sT1}, 12")
    g(f"s_add_u32 s{sD1}, s{sD1}, s{sT2}")
    g(f"s_lshr_b32 s{sT1}, s{sE}, 5")
    g(f"s_lshl_b32 s{sT2}, s{sT1}, 7")
    g(f"s_add_u32 s{sS1}, s{sS1}, s{sT2}")
    g(f"s_add_u32 s{sS1}, s{sS1}, 256")
    g(f"s_lshl_b32 s{sT2}, s{sT1}, 17")
    g(f"s_add_u32 s{sD1}, s{sD1}, s{sT2}")
    g(f"s_cmp_lt_u32 s{sE}, 64")
    g(f"s_cselect_b32 s{sT1}, s{sOff}, {BIG}")
    g(f"s_xor_b32 s{sT2}, s{sOff}, {0 if full else BIG}")
    g(f"s_add_u32 s{sT0}, s{sOff}, 256")
    g(f"v_lshlrev_b32 v27, 4, v13")
    g(f"v_lshl_add_u32 v44, v12, 10, v27")
    g(f"v_add_u32 v44, s{sT2}, v44")
    g(f"v_and_b32 v28, 3, v12")
    g(f"v_lshrrev_b32 v26, 2, v12")
    g(f"v_lshl_add_u32 v26, v26, 3, v28")
    g(f"v_lshl_add_u32 v26, v26, 11, v27")
    g(f"v_add_u32 v42, s{sT0}, v26")
    g(f"v_add_u32 v43, s{sT1}, v26")
    g(f"s_add_u32 s{sT0}, s{sOff}, 262144")
    g(f"v_lshl_add_u32 v45, v0, 4, s{sT0}")
    g(f"v_lshl_add_u32 v46, v0, 4, s{sT1}")
    g(f"v_lshl_add_u32 v47, v0, 4, s{sT2}")
    g(f"v_lshrrev_b32 v26, 2, v0")
    g(f"v_lshlrev_b32 v26, 7, v26")
    g(f"s_lshl_b32 s{sT1}, s{sW}, 3")
    g(f"s_add_u32 s{sT1}, s{sT1}, {SCR}")
    g(f"v_lshl_add_u32 v27, v2, 5, v26")
    g(f"v_add_u32 v27, s{sT1}, v27")
    g(f"s_lshl_b32 s{sT1}, s{sW}, 5")
    g(f"s_add_u32 s{sT1}, s{sT1}, {SCR}")
    g(f"v_lshl_add_u32 v26, v2, 3, v26")
    g(f"v_add_u32 v26, s{sT1}, v26")
    srd(g, sDW, kdw, 5120)
    g(f"s_lshl_b32 s{sT1}, s{sW}, 28")
    g(f"s_add_u32 s{sT1}, s{sT1}, s{sOff}")
    g(f"s_lshl3_add_u32 s{sT2}, s{sE}, s{sT1}")
    g(f"v_bfe_u32 v37, v0, 2, 2")
    g(f"v_lshlrev_b32 v38, 1, v2")
    g(f"v_sub_u32 v37, v38, v37")
    g(f"v_lshl_add_u32 v37, v37, 10, s{sT2}")
    g(f"v_lshl_add_u32 v37, v3, 1, v37")
    g(f"v_add_u32 v38, 1024, v37")
    g(f"s_lshl_b32 s{sT2}, s{sE}, 8")
    g(f"s_add_u32 s{sT1}, s{sT1}, s{sT2}")
    g(f"s_add_u32 s{sT1}, s{sT1}, {CTOFF}")
    g(f"v_lshl_add_u32 v41, v0, 2, s{sT1}")
    def task_load():
        g(f"s_lshl_b32 s{sT1}, s{sW}, 10")
        g(f"s_add_u32 m0, s{sT1}, {SCR}")
        g.vmem(f"buffer_load_ushort v48, v37, s[{sDW}:{sDW+3}], 0 offen", [48], tag="task")
        g.vmem(f"buffer_load_dwordx4 v42, s[{sW1}:{sW1+3}], s{sS1} offen nt lds", tag="task")
        g(f"s_add_u32 m0, m0, 4096")
        g.vmem(f"buffer_load_ushort v49, v38, s[{sDW}:{sDW+3}], 0 offen", [49], tag="task")
        g.vmem(f"buffer_load_dwordx4 v43, s[{sW1}:{sW1+3}], s{sS1} offen nt lds", tag="task")
        g(f"s_add_u32 m0, m0, 4096")
        ct_srd()
        g.vmem(f"buffer_load_dwordx4 v44, s[{sW2}:{sW2+3}], s{sS2} offen nt lds", tag="task")
        srd(g, sW2, sWq, 0x148000)
    tk = opt.get("tk", 1)
    if tk == 1:
        task_load()
    assert rbar and win == 2
    def w_first():
        P[0].advance(g, 0)
        for ab in range(2):
            set_m0(g, ab)
            g("s_nop 0")
            for m in range(4):
                P[0].dma(g, ab, m, ("x", 0))
    wA = opt.get("wA", 2)
    if wA:
        g.barrier("w0")
    else:
        w_first()
    for kp in range(1, win):
        x_issue(kp)
    g.wait(vm=("x", 0))
    g.barrier("x0")
    g("s_branch L_roleB")
    vmB = list(g.vm)
    if oddp:
        assert full and wA and tk == 1 and opt.get("ak", 2) == 2
        g.vm, g.bars = vm0, []
        g("L_oddB:")
        ct_srd()
        g.barrier("w0")
        x_issue(1)
        for kp in range(3):
            g.wait(vm=("x", kp))
            g.barrier(f"x{kp}")
            if kp < 2:
                g.barrier(f"r{kp}")
                x_issue(kp + 2)
        odd_state = ([t for _, t in g.vm], list(g.bars))
        g("s_branch L_noann")
    g.vm = []; g.bars = []

    g("L_startA:")
    d1_addr()
    g("s_waitcnt lgkmcnt(0)")
    if opt.get("tlb", 0):
        g(f"s_add_u32 s{sO}, s{kout}, s2")
        g(f"s_addc_u32 s{sO+1}, s{kout+1}, 0")
        for n, (k, off) in enumerate(((kw1, 0), (kdw, 0), (kw2, 0), (kws, 0x80000), (sO, 0))):
            g(f"s_load_dword s3, s[{k}:{k+1}], {off}")
    srd(g, sW1, kw1, 1048576)
    g(f"s_lshr_b32 s{sT1}, s{sWg}, 3")
    g(f"s_lshl2_add_u32 s{sSl}, s{sT1}, s{sW}")
    if opt.get("warm0", 1) == 2:
        swarm(wlines(0)[:12 * len(sub)])
    if opt.get("cw", 1) == 2:
        g(f"s_getpc_b64 s[{sCode}:{sCode+1}]")
        g("L_pc2:")
        g(f"s_mov_b32 s{sCode+2}, L_code_end-L_pc2")
        g(f"s_mov_b32 s{sCode+3}, 0x20000")
        g(f"s_lshl_b32 s{sT2}, s{sSl}, 6")
        for n in range(9):
            g(f"s_buffer_load_dword s3, s[{sCode}:{sCode+3}], s{sT2}")
            g(f"s_add_u32 s{sT2}, s{sT2}, 8192")
    if wA == 2:
        w_first()
    common(0)
    ct_srd()
    if wA == 1:
        w_first()
    if stamps == 4:
        g(f"s_add_u32 s4, s40, {STAMP_OFF}\ns_addc_u32 s5, s41, 0\ns_mov_b32 s6, 0x100000\ns_mov_b32 s7, 0x20000")
        g(f"s_lshl_b32 s42, s{sWg}, 3\ns_add_u32 s42, s42, s{sWv}\ns_lshl_b32 s42, s42, 7")
        g("v_mov_b32 v8, s74\nv_mov_b32 v9, s75\nv_mov_b32 v10, s74\nv_mov_b32 v11, s75\nv_and_b32 v12, 1, v0\nv_lshrrev_b32 v13, 1, v0\nv_lshlrev_b32 v12, 9, v12\nv_lshl_add_u32 v12, v13, 24, v12")
        g.vmem("buffer_store_dwordx4 v[8:11], v12, s[4:7], s42 offen sc0 sc1")
    if wA:
        g.barrier("w0")
        g.drain(vm=True)
        g("s_waitcnt lgkmcnt(0)")
    g.stamp(8)
    g.barrier("x0")
    g.stamp(9)
    it = start_a(g, P[0])
    run(it[:8] + start_x(g, P[0]) + start_b(g, P[0])[:8])
    run(it[8:10]); g("s_nop 0"); run(it[10:] + start_b(g, P[0])[8:])
    ex = {(kp, rbar): (lambda kp=kp: g.barrier(f"r{kp}")) for kp in range(8 - win)} if rbar else {}
    g.stamp(1)
    if d1:
        def h0():
            g.wait(lg=("rb", 7))
            g.barrier("h0")
        ex[(7, opt.get("h0g", 45))] = h0
    mfma_phase(g, P[0], None if d1 else P[1], "h0", xbar=lambda kp: g.barrier(f"x{kp}"), first=True, extra=ex)
    g.stamp(2)
    def sw(reg, off, va=vS):
        return lambda: g.ds(f"ds_write_b128 v{va}, {R(reg)} offset:{off}", tag="sw")
    e_phase(g, 0, VH, pre=P2.start_w(g) + P2.start_x(g), warm=e_warm(2))
    if not d1:
        g.barrier("h1")
    g.stamp(3)
    direct_phase(g, P2)
    g.stamp(4)
    e_phase(g, 2, 0, pre=GA.start_w(g), warm=e_warm(4) + (e_warm(5, 14 if e_warm(4) else 0) if opt.get('w5', 2) == 2 else []))
    g_addr(g)
    outv_addr(g, 64)
    g.barrier("h3")
    nb_ = opt.get("burst", 0)
    if nb_ >= 8:
        run([sw(4 * j, 32768 + j * 2048) for j in range(8)] + GA.start_x(g) + [sw(VH + 4 * j, j * 2048) for j in range(nb_ - 8)])
    else:
        run([sw(0, 32768), sw(4, 32768 + 2048)] + GA.start_x(g) + [sw(8, 32768 + 4096)])
    g.stamp(5)
    yl = [int(v) for v in str(opt.get("yl", "4 6 7")).split()]
    GA.merge = int(len(yl) > 1)
    def xbarA(kp, j):
        if kp == 2 and j == 0:
            g.wait(lg="sw")
            g.barrier("V")
        if kp == 6 and (j == 0 or j - 1 in yl):
            g.barrier(f"Y{min(v for v in yl if v >= j)}")
    ex = {(0, 8 * (j - 3) + 4): sw(4 * j, 32768 + j * 2048) for j in range(3, 8)} if nb_ < 8 else {}
    fr = ((0, 44), (0, 52), (1, 4), (1, 12), (1, 20), (1, 28), (1, 34), (1, 38))
    ex.update({fr[j]: sw(VH + 4 * j, j * 2048) for j in range(max(nb_ - 8, 0), 8)})
    na = opt.get("na", 0) if GA.merge else 0
    pend = out_interleave(g, ex, GA, [int(c) for c in str(opt.get("opera", 2))], na, opt.get("stA", "nt")) if na else []
    split = opt.get("split", 0)
    HB, HA = Half(0), Half(1)
    if split:
        assert GA.merge and not na
        for n, f in enumerate(HA.loads(g, 4) + HA.loads(g, 5)):
            ex[(6, 8 * (n // 2) + 3 + 2 * (n % 2))] = f
    direct_phase(g, GA, xbar=xbarA, extra=ex)
    g.stamp(6)
    g("s_setprio 0")
    g("s_nop 6")
    run(pend)
    zg = [int(v) for v in str(opt.get("zg", "2 2 2 2")).split() if int(v)]
    j = na
    assert na + sum(zg) <= 8
    for n, cnt in enumerate(zg):
        for jj in range(j, j + cnt):
            run(outv_items(g, jj, jj, opt.get("stA", "nt"), 1))
        g.barrier(f"Z{n}")
        for jj in range(j, j + cnt):
            run(outv_items(g, jj, jj, opt.get("stA", "nt"), 3))
        j += cnt
    for jj in range(j, 8):
        if opt.get("outA", 2): run(outv_items(g, jj, jj, opt.get("stA", "nt"), opt.get("outA", 2), None if split else opt.get("infl", 1)))
        if split and jj < 6:
            run(HA.loads(g, (0, 1, 2, 3, 6, 7)[jj]))
    if split:
        g("s_nop 0")
        outv_addr(g, 16, 1)
        run(HA.start_x(g, 0, 5))
        g.stamp(8)
        ex, pend = {}, []
        def f(m):
            if m % 64 == 7 and m > 63:
                j = 2 * (m // 64 - 1)
                pend.extend(outv_items(g, j, j // 2, opt.get("stH", "sc1"), Q=[HA.aq(j + q // 2, q % 2) for q in range(4)]))
            if m % 4 >= 2:
                for _ in range(opt.get("hper", 2)):
                    if pend: pend.pop(0)()
        HA.phase(g, {m: (lambda m=m: f(m)) for m in range(256)})
        assert not pend
        g.stamp(9)
        g("s_nop 7")
        run(outv_items(g, 6, 3, opt.get("stH", "sc1"), Q=[HA.aq(6 + q // 2, q % 2) for q in range(4)]))
    g.stamp(7)
    barsA = g.bars
    g("s_branch L_fin")

    g.lg, g.vm, g.bars = [], vmB, ["w0", "x0"] if wA else ["x0"]
    g("L_roleB:")
    def task_read():
        assert not any(t == "task" for _, t in g.vm)
        for n in range(3):
            g(f"ds_read_b64_tr_b16 v[{28+4*n}:{29+4*n}], v{26 + n // 2} offset:{4096*n}")
            g(f"ds_read_b64_tr_b16 v[{30+4*n}:{31+4*n}], v{26 + n // 2} offset:{4096*n + 2048}")
        g(f"v_lshl_or_b32 v48, v49, 16, v48")
        g("s_waitcnt lgkmcnt(0)")
    def task_store():
        if opt.get("psc", 0):
            g(f"s_bitcmp1_b32 s{sE}, 4")
            g(f"s_cselect_b32 s{sT1}, s{sC}, 1.0")
            for r in range(28, 36):
                g(f"v_lshlrev_b32 v50, 16, v{r}")
                g(f"v_and_b32 v51, 0xffff0000, v{r}")
                g(f"v_mul_f32 v50, s{sT1}, v50")
                g(f"v_mul_f32 v51, s{sT1}, v51")
                g(f"v_cvt_pk_bf16_f32 v{r}, v50, v51")
        g.vmem(f"buffer_store_dword v48, v41, s[{sW2}:{sW2+3}], 0 offen sc0 sc1", tag="clr")
        for n in range(3):
            g.vmem(f"buffer_store_dwordx4 {R(28+4*n)}, v{45+n}, s[{sW2}:{sW2+3}], s{(sD1, sD1, sD2)[n]} offen sc0 sc1", tag="clr")
    if tk == 2 and opt.get("tpre", 1):
        task_load()
    g.barrier("r0")
    if tk == 2 and not opt.get("tpre", 1):
        task_load()
    x_issue(win)
    g(f"s_and_b32 s{sGrp}, s{sTile}, 0xfc")
    g(f"s_lshl_b32 s{sT1}, s{sW}, 9")
    g(f"v_lshlrev_b32 v21, 3, v0")
    g(f"v_mov_b32 v22, -1")
    g(f"v_mov_b32 v23, -1")
    g.vmem(f"buffer_store_dwordx2 v[22:23], v21, s[{sWS}:{sWS+3}], s{sT1} offen {opt.get('tfl', 'sc0 sc1')}", tag="clr")
    g.stamp(1)
    def ready():
        g(f"s_mov_b32 s{sT2}, {opt.get('spin', 4000000)}")
        g.wait(regs=[22])
        g.point("rdy_")
        if opt.get("p1", 1):
            assert pk < 7 and "1" not in str(opt.get("wk", "5"))
            g(f"s_cmp_lg_u32 s{sW}, 0")
            g("s_cbranch_scc1 L_rdy_ok")
        g("L_rdy:")
        g(f"v_cmp_lt_u32 vcc, v22, v23")
        g(f"s_sub_u32 s{sT2}, s{sT2}, 1")
        g("s_cbranch_scc1 L_rdy_ok")
        g("s_cbranch_vccz L_rdy_ok")
        g(f"buffer_load_dword v22, v21, s[{sDBG}:{sDBG+3}], 0 offen sc0 sc1")
        g("s_waitcnt vmcnt(0)")
        g("s_branch L_rdy")
        g("L_rdy_ok:")
        g.point("rdy")
    pk = opt.get("pk", 6) if d1 else 7
    ak = opt.get("ak", 2)
    for kp in range(1, 8):
        g.wait(vm=("x", kp))
        if kp == ak:
            g.wait(vm="clr")
        g.barrier(f"x{kp}")
        if kp in (3, 7) and not opt.get("hd"):
            g.stamp({0: 1, 3: 8, 7: 9}[kp])
        if kp == tk:
            task_read()
            task_store()
        if kp == ak:
            assert not any(t == "clr" for _, t in g.vm)
            assert full
            g(f"s_and_b32 s{sT1}, s{sWg}, 1")
            g(f"s_or_b32 s{sT1}, s{sT1}, s{sW}")
            g("s_cbranch_scc1 L_noann")
            g(f"s_and_b32 s{sT1}, s{sTile}, 3")
            g(f"s_lshl_b32 s{sT1}, 1, s{sT1}")
            if "a" not in str(opt.get("abl", "")):
                g(f"s_atomic_or s{sT1}, s[{sDBG}:{sDBG+1}], s{sGrp}")
            g("L_noann:")
            if oddp:
                assert odd_state == ([t for _, t in g.vm], g.bars), (odd_state, g.vm, g.bars)
        if kp + win < 8:
            g.barrier(f"r{kp}")
        if kp == pk - 1:
            g(f"v_bfe_u32 v23, v0, 3, 1")
            g(f"v_add_u32 v23, -1, v23")
            g(f"v_and_b32 v23, 15, v23")
            g(f"s_lshl_b32 s{sT2}, s{sW}, {20 if opt.get('p1', 1) else 32}")
            g(f"v_lshlrev_b32 v21, 2, v0") if not opt.get("p1", 1) else g(f"v_lshl_add_u32 v21, v0, 2, s{sT2}")
            g.vmem(f"buffer_load_dword v22, v21, s[{sDBG}:{sDBG+3}], 0 offen sc0 sc1", [22])
        if kp + win < 8:
            x_issue(kp + win)
        if kp == pk:
            ready()
        if "1" in str(opt.get("wk", "5")) or not d1:
            if d1:
                nb = -(-32 // (8 - pk))
                if kp >= pk: swarm(later[(kp - pk) * nb:(kp - pk + 1) * nb])
            elif 2 <= kp < 6:
                swarm(later[(kp - 2) * nb:(kp - 1) * nb])
    g.drain(vm=True)
    def idle_start(name, own):
        run(start_x(g, own))
        g.barrier(name + "a")
        run(start_a(g, own))
        g.barrier(name + "b")
        g("s_setprio 1")
        run(start_b(g, own))
    if d1:
        run(P1.start_w(g))
        g("s_waitcnt lgkmcnt(0)")
        run(P1.start_x(g))
        g.barrier("h0")
        g.stamp(2)
        direct_phase(g, P1, reset=True)
    else:
        g("s_waitcnt lgkmcnt(0)")
        idle_start("h0", P[1])
        g.stamp(2)
        def h1():
            g.wait(lg=("rb", 7))
            g.barrier("h1")
        mfma_phase(g, P[1], None, None, extra={(7, opt.get("h1g", 20)): h1})
    g.stamp(3)
    e_phase(g, 1, 0, pre=P3.start_w(g) + P3.start_x(g), warm=e_warm(3), after_tile=lambda e, j: e.q2.append(sw(4 * j, 32768 + j * 2048)))
    g.wait(lg="sw")
    g.stamp(4)
    def h3():
        assert not any(t == "sw" for _, t in g.lg)
        g.barrier("h3")
    ex = {(7, opt.get("h3g", 30)): h3}
    if split:
        for n, f in enumerate(HB.loads(g, 0) + HB.loads(g, 1)):
            ex[(7, 8 * (n // 2) + 3 + 2 * (n % 2))] = f
    direct_phase(g, P3, extra=ex)
    g.stamp(5)
    def vB(e, j):
        if j == opt.get("vtile", 4):
            g.barrier("V")
            g_addr(g)
    def yB(e, j):
        e.q2.append(sw(4 * j, j * 2048))
        if j in yl:
            def f():
                g.wait(lg="sw")
                g.barrier(f"Y{j}")
            e.q2 += [lambda: None] * opt.get("ydel", 2) + [f]
    if split:
        np4 = opt.get("np4", 2)
        pre4 = [f for kp in range(2, 2 + np4) for f in HB.loads(g, kp)] + HB.start_x(g, 0, 3)
        e_phase(g, 3, 0, pre4=pre4, glu_tile=vB, after_tile=yB, tw=0)
        run(HB.start_x(g, 3, 5) + [f for kp in range(2 + np4, 8) for f in HB.loads(g, kp)])
        outv_addr(g, 88, 0)
        g.stamp(6)
        HB.phase(g, {opt.get("hbp", 66): lambda: g("s_setprio 2")})
        g.stamp(7)
        g("s_setprio 0")
        g("s_nop 6")
        for jp in range(4):
            run(outv_items(g, 2 * jp, jp, opt.get("stH", "sc1"), inflight=opt.get("inflB"), Q=[HB.aq(2 * jp + q // 2, q % 2) for q in range(4)]))
    else:
        e_phase(g, 3, 0, pre=GB.start_w(g) + GB.start_x(g), glu_tile=vB,
                warm=e_warm(5) if opt.get('w5', 2) == 3 else [], after_tile=yB, tw=0)
        outv_addr(g)
        GB.merge = opt.get("merge", 3)
        if GB.merge and opt.get("early7", 1):
            GB.early7 = True
            GB.soff(g, 7, 0); GB.soff(g, 7, 1)
            for f in range(8): GB.load(g, 7, f)
            GB.soff(g, 1, 0); GB.soff(g, 1, 1)
        g.stamp(6)
        ex = {}
        for n in range(len(zg)):
            ex[(n, opt.get("zat", 30))] = (lambda n=n: g.barrier(f"Z{n}"))
        pend = out_interleave(g, ex, GB, [int(c) for c in str(opt.get("oper", 2 if GB.merge else 4))], 7, opt.get("stB", "nt"), opt.get("outB", 2))
        direct_phase(g, GB, extra=ex)
        g.stamp(7)
        if len(pend) < 8:
            g("s_nop 7")
        run(pend)
        run(outv_items(g, 7, 7, opt.get("stB", "nt"), opt.get("outB", 2)))
    assert g.bars == barsA, (g.bars, barsA)
    g("L_fin:")
    if stamps and stamps != 4:
        g("s_waitcnt vmcnt(0)")
        g("s_memrealtime s[98:99]")
        g(f"s_mem{'real' if stamps == 3 else ''}time s[100:101]")
        g(f"s_add_u32 s4, s40, {STAMP_OFF}\ns_addc_u32 s5, s41, 0\ns_mov_b32 s6, 0x100000\ns_mov_b32 s7, 0x20000")
        g(f"s_lshl_b32 s8, s{sWg}, 3\ns_add_u32 s8, s8, s{sWv}\ns_lshl_b32 s8, s8, 7")
        g("s_waitcnt lgkmcnt(0)")
        g("s_mov_b64 exec, 1")
        g("v_mov_b32 v4, 0")
        g("s_getreg_b32 s10, hwreg(HW_REG_XCC_ID)\ns_mov_b32 s11, 0")
        order = [74, 98, 76, 100] + [76 + 2 * n for n in range(1, 10)] + [10]
        for n, s in enumerate(order):
            g(f"v_mov_b32 v0, s{s}\nv_mov_b32 v1, s{s+1}")
            g(f"buffer_store_dwordx2 v[0:1], v4, s[4:7], s8 offen offset:{8*n}")
            g("s_nop 1")
    g("L_end:")
    g("s_endpgm")
    g("L_code_end:")
    g('.section .rodata,"a"')
    g(".p2align 6")
    g(f".amdhsa_kernel {KN}_kernel")
    g.l += ["  .amdhsa_next_free_vgpr 256", "  .amdhsa_next_free_sgpr 102", "  .amdhsa_accum_offset 256",
            "  .amdhsa_group_segment_fixed_size 0", "  .amdhsa_kernarg_size 56", "  .amdhsa_user_sgpr_count 2",
            "  .amdhsa_user_sgpr_kernarg_segment_ptr 1", "  .amdhsa_system_sgpr_workgroup_id_x 1",
            f"  .amdhsa_float_denorm_mode_32 {opt.get('dn', 3)}"]
    g(".end_amdhsa_kernel")
    t = g.text()
    if stamps and opt.get("probe", 1):
        t = t.replace("; @launch grid=(256,1,1) block=(512,1,1) lds=163840",
                      f"; @launch kernel={KN}_kernel grid=(256,1,1) block=(512,1,1) lds=163840\n; @launch kernel=probe_kernel grid=(1,1,1) block=(64,1,1) lds=0")
        a = [".p2align 8", ".globl probe_kernel", ".type probe_kernel,@function", "probe_kernel:",
             "s_memrealtime s[8:9]", "s_load_dwordx2 s[4:5], s[0:1], 48", "s_waitcnt lgkmcnt(0)",
             f"s_add_u32 s4, s4, {STAMP_OFF}", "s_addc_u32 s5, s5, 0", "s_mov_b32 s6, 0x100000", "s_mov_b32 s7, 0x20000",
             "v_mov_b32 v2, s8", "v_mov_b32 v3, s9", "v_mov_b32 v1, 120", "buffer_store_dwordx2 v[2:3], v1, s[4:7], 0 offen", "s_endpgm"]
        t = t.replace('.section .rodata,"a"', "\n".join(a) + '\n.section .rodata,"a"')
        t += ".p2align 6\n.amdhsa_kernel probe_kernel\n  .amdhsa_next_free_vgpr 16\n  .amdhsa_next_free_sgpr 32\n  .amdhsa_accum_offset 16\n" \
             "  .amdhsa_group_segment_fixed_size 0\n  .amdhsa_kernarg_size 56\n  .amdhsa_user_sgpr_count 2\n" \
             "  .amdhsa_user_sgpr_kernarg_segment_ptr 1\n  .amdhsa_system_sgpr_workgroup_id_x 1\n.end_amdhsa_kernel\n"
    return t


def parse(args):
    opt = {}
    for a in args:
        k, v = a.split("=", 1)
        try:
            v = int(v)
        except ValueError:
            v = v.replace("+", " ")
        opt[k] = v
    return opt


if __name__ == "__main__":
    open(sys.argv[1], "w").write(build(parse(sys.argv[2:])))
```

```python
import sys
from gen import build, parse, KN, STAMP_OFF
def make(fn, mode, opt):
    opt = dict(opt); opt["stamps"] = 1; opt["probe"] = 0
    t = build(opt)
    t = t.replace("; @launch grid=(256,1,1) block=(512,1,1) lds=163840",
                  f"; @launch kernel={KN}_kernel grid=(256,1,1) block=(512,1,1) lds=163840\n; @launch kernel=amp_kernel grid=(1,1,1) block=(64,1,1) lds=0")
    a = [".p2align 8", ".globl amp_kernel", ".type amp_kernel,@function", "amp_kernel:",
         "s_cmp_ge_u32 s2, 1", "s_cbranch_scc1 L_amp_end",
         "s_load_dwordx2 s[4:5], s[0:1], 48", "s_waitcnt lgkmcnt(0)",
         f"s_add_u32 s4, s4, {STAMP_OFF}", "s_addc_u32 s5, s5, 0", "s_mov_b32 s6, 0x100000", "s_mov_b32 s7, 0x20000"]
    if mode[0] == "span":
        _, hi, lo, mul = mode
        a += ["s_load_dword s10, s[4:5], 0", "v_lshlrev_b32 v1, 7, v0", "v_mov_b32 v4, 0x80000000", "v_mov_b32 v5, 0x7fffffff", "s_mov_b32 s8, 0", "s_waitcnt lgkmcnt(0)",
              "L_amp_l:", f"buffer_load_dword v2, v1, s[4:7], s8 offen offset:{8*hi}", f"buffer_load_dword v3, v1, s[4:7], s8 offen offset:{8*lo}", "s_waitcnt vmcnt(0)",
              "v_subrev_u32 v2, s10, v2", "v_subrev_u32 v3, s10, v3", "v_max_i32 v4, v4, v2", "v_min_i32 v5, v5, v3",
              "s_add_u32 s8, s8, 8192", "s_cmp_lt_u32 s8, 262144", "s_cbranch_scc1 L_amp_l",
              "s_mov_b32 s12, 0x80000000", "s_mov_b32 s13, 0x7fffffff", "s_nop 4"]
        for l in range(64):
            a += [f"v_readlane_b32 s14, v4, {l}", f"v_readlane_b32 s15, v5, {l}", "s_nop 3", "s_max_i32 s12, s12, s14", "s_min_i32 s13, s13, s15"]
        a += ["s_sub_u32 s12, s12, s13", f"s_mul_i32 s12, s12, {mul}"]
    elif mode[0] == "val":
        _, rec, w, mul = mode
        a += [f"s_load_dword s12, s[4:5], {rec*128 + 8*w}", "s_waitcnt lgkmcnt(0)", "s_and_b32 s12, s12, 15", f"s_mul_i32 s12, s12, {mul}"]
    else:
        _, rec, hi, lo, mul, sh = mode
        a += [f"s_load_dword s12, s[4:5], {rec*128 + 8*hi}", f"s_load_dword s13, s[4:5], {rec*128 + 8*lo}", "s_waitcnt lgkmcnt(0)",
              "s_sub_u32 s12, s12, s13", f"s_mul_i32 s12, s12, {mul}", f"s_lshr_b32 s12, s12, {sh}"]
    a += ["s_min_u32 s12, s12, 200000",
          "s_memrealtime s[16:17]", "s_waitcnt lgkmcnt(0)",
          "L_amp_s:", "s_memrealtime s[18:19]", "s_waitcnt lgkmcnt(0)", "s_sub_u32 s20, s18, s16", "s_cmp_lt_u32 s20, s12", "s_cbranch_scc1 L_amp_s",
          "L_amp_end:", "s_endpgm"]
    t = t.replace('.section .rodata,"a"', "\n".join(a) + '\n.section .rodata,"a"')
    t += """.p2align 6
.amdhsa_kernel amp_kernel
  .amdhsa_next_free_vgpr 16
  .amdhsa_next_free_sgpr 32
  .amdhsa_accum_offset 16
  .amdhsa_group_segment_fixed_size 0
  .amdhsa_kernarg_size 56
  .amdhsa_user_sgpr_count 2
  .amdhsa_user_sgpr_kernarg_segment_ptr 1
  .amdhsa_system_sgpr_workgroup_id_x 1
.end_amdhsa_kernel
"""
    open(fn, "w").write(t)
if __name__ == "__main__":
    opt = parse(sys.argv[1:])
    opt["pts"] = "s1"
    make("h/ampx0.s", ("val", 0, 13, 2000), opt)
    make("h/ampx1.s", ("val", 8, 13, 2000), opt)
    make("h/ampx5.s", ("val", 5*8, 13, 2000), opt)
```

```python
import sys

KN = "standalone__conformer_conv_module__speech"
STAMP_OFF = 255 * 1024 * 1024

HEAD = """; Kernarg layout for this problem (56 bytes, ptrs only, base s[0:1]):
;   offset   0: d_in[0] x  shape=(2, 16000, 512) dtype=bfloat16 strides=(16384000, 1024, 2) contiguous=True
;   offset   8: d_in[1] w_pw1  shape=(512, 1024) dtype=bfloat16 strides=(2048, 2) contiguous=True
;   offset  16: d_in[2] dw  shape=(5, 512) dtype=bfloat16 strides=(1024, 2) contiguous=True
;   offset  24: d_in[3] w_pw2  shape=(512, 512) dtype=bfloat16 strides=(1024, 2) contiguous=True
; Override launch geometry by editing the next line (default: block=256,
"""

DOC = """
;
; Fused  out = silu(dwconv5(glu(x @ W1))) @ W2.   One workgroup per CU, 128 or 126 output rows on 252 of them (128-row tile, row u = 8*lane15 + tile).
;   phase   0          1          2          3          4           5
; x lives in LDS (128 KB, LDS-DMA, swizzled); silu output fragments replace it for GEMM2.
; Phase 0 transposes W1 through a small LDS ring (ds_read_b64_tr_b16).  Meanwhile every even workgroup re-lays a slice of the
; The depthwise conv is one MFMA per 4 outputs (banded weights x time-packed GLU output).  The four (two) GLU rows a tile lacks
; come from the next tile's workgroup through a mailbox in d_ws that is emptied at the start of each launch.
"""

def ACC(i, j): return 4 * (i * 8 + j)
VH = 128
VWX, VWY, VWZ = 160, 176, 192
VXR = 208
vDc, vW0, vW1, vD1 = 240, 242, 243, 244
def DW(i, h, p): return 160 + 32 * (p % 2) + 8 * i + 4 * h
def DX(n, h): return 224 + 8 * (n % 3) + 4 * h
vX0, vX1, vS = 248, 249, 250
vG8, vM0, vM1, vEX = 251, 252, 253, 254
def AF(ct, r): return 192 + 16 * ct + 4 * r
def TP(ct, r, q):
    n = 4 * ct + r
    return (160 + 6 * n if n < 5 else 224 + 6 * (n - 5)) + q
def YY(ct, r, j): return 64 + 32 * ct + 8 * r + j
VEXP = 192
VTMP, VIMP = 32, 40
CTOFF = 0x140000
sX, sW1, sW2, sO, sDW, sWS, sDBG, sWE = 4, 8, 12, 16, 20, 24, 28, 32
sW64, sHo, sW128, sSb = 36, 37, 38, 39
sRows = 50
sRing = 44
sT0, sT1, sT2, sT3 = 46, 47, 48, 49
sC, sCi = 50, 51
sWv, sW, sTile, sTau, sWg, sGrp = 52, 53, 54, 55, 56, 57
sWP = 60
sWq = 58
sK = 66
sSl = 96
sCode = 16
KA = 76
QORD = (1, 2, 0, 3)
WPOFF = 1 << 20

OOB = 0x7f000000
SCR = 7 * 16384


class Gen:
    def __init__(self, opt):
        self.l = []
        self.opt = opt
        self.lg = []
        self.vm = []
        self.bars = []

    def __call__(self, s=""):
        for line in s.split("\n"):
            self.l.append(line if line.endswith(":") or line.startswith(".") or line.startswith(";") else "    " + line)

    def text(self):
        return "\n".join(self.l) + "\n"

    def ds(self, text, regs=(), tag=None):
        if self.opt.get("nosw") and tag == "sw":
            return
        if len(self.lg) >= 15:
            self("s_waitcnt lgkmcnt(11)"); self.lg = self.lg[-11:]
        self(text); self.lg.append((set(regs), tag))

    def vmem(self, text, regs=(), tag=None):
        abl = str(self.opt.get("abl", ""))
        if ("s" in abl and tag == "clr" and "dwordx4" in text) or ("c" in abl and tag == "clr" and "dwordx2" in text) or \
           ("p" in abl and regs == [22]) or ("d" in abl and regs == [10]) or ("t" in abl and tag == "task"):
            return
        self(text); self.vm.append((set(regs), tag))

    def _idx(self, q, regs, tag):
        idx = -1
        for n, (r, t) in enumerate(q):
            if (regs and (r & set(regs))) or (tag is not None and t == tag):
                idx = n
        return idx

    def wait(self, regs=(), lg=None, vm=None):
        parts = []
        i = self._idx(self.vm, regs, vm)
        if i >= 0:
            n = min(len(self.vm) - 1 - i, 63)
            parts.append(f"vmcnt({n})"); self.vm = self.vm[len(self.vm) - n:] if n else []
        i = self._idx(self.lg, regs, lg)
        if i >= 0:
            n = min(len(self.lg) - 1 - i, 15)
            parts.append(f"lgkmcnt({n})"); self.lg = self.lg[len(self.lg) - n:] if n else []
        if parts:
            self("s_waitcnt " + " ".join(parts))

    def drain(self, vm=False, lg=False):
        parts = []
        if vm and self.vm:
            parts.append("vmcnt(0)"); self.vm = []
        if lg and self.lg:
            parts.append("lgkmcnt(0)"); self.lg = []
        if parts:
            self("s_waitcnt " + " ".join(parts))

    def barrier(self, name):
        if name in str(self.opt.get("nobar", "")).split():
            self.bars.append(name); return
        self.point(name + "_")
        self(f"s_barrier"); self.bars.append(name)
        self.point(name)

    def point(self, name):
        pts = self.opt.get("pts")
        if pts and name in pts.split():
            n = pts.split().index(name) + 1
            self(f"s_mem{'real' if self.opt['stamps'] == 3 else ''}time s[{76+2*n}:{77+2*n}]")

    def stamp(self, n):
        if self.opt.get("pts"):
            return self.point(f"s{n}")
        if self.opt.get("stamps") in (1, 3):
            self(f"s_mem{'real' if self.opt['stamps'] == 3 else ''}time s[{76+2*n}:{77+2*n}]")
            self("s_waitcnt lgkmcnt(0)")
            self.lg = []


def R(a, n=4): return f"v[{a}:{a+n-1}]"
def rs(a, n=4): return list(range(a, a + n))


def wreg(i, h, p, kind="P"):
    if i < 2:
        return (VWX if p % 2 == 0 else VWY) + 8 * i + 4 * h
    return VWZ + 8 * (i - 2) + 4 * h


def xreg(j, h): return VXR + 8 * (j % 4) + 4 * h


def kconst(kind, ab, m):
    return 16 * m * 2048 + ab * 1024 - m * 1024


def set_kconst(g, kind):
    return [lambda ab=ab, m=m: g(f"s_mov_b32 s{sK + 4*ab + m}, {kconst(kind, ab, m)}") for ab in range(2) for m in range(4)]


class Stream:
    def __init__(self, kind, arg):
        self.kind, self.arg = kind, arg

    def advance(self, g, kp, fresh=False):
        g(f"v_add_u32 v{vDc}, {kp * 131072 + self.arg * 256}, v{vD1}")

    def dma(self, g, ab, m, tag, fl=""):
        if g.opt.get("nodma"):
            return
        srd = sW1
        g.vmem(f"buffer_load_dwordx4 v{vDc}, s[{srd}:{srd+3}], s{sK + 4*ab + m} offen offset:{m*1024} {fl} lds", tag=tag)


def set_m0(g, ab):
    g(f"s_mov_b32 m0, s{sRing + ab}")


def tr_read(g, i, h, q, p, tag, kind="P"):
    d = wreg(i, h, p, kind) + 2 * q
    off, base = (i >> 1) * 4096 + h * 2048 + q * 256, vW0 + (i & 1)
    g.ds(f"ds_read_b64_tr_b16 {R(d, 2)}, v{base} offset:{off}", rs(d, 2), tag)


def part_reads(kind, ab):
    return [(i, h, q) for i in ((0, 1) if ab == 0 else (3, 2)) for h in range(2) for q in range(2)]


def x_read(g, kind, kp, j, h, d=None):
    if d is None:
        d = xreg(j, h)
    if kind == "P":
        off, base = (kp * 8 + j) * 2048 % 65536, vX0 + h
    else:
        off = (1 - (kp >> 2)) * 32768 + (kp & 1) * 16384 + j * 2048 + h * 1024
        base = vX0 + (0, 1, 1, 0)[kp >> 1]
    g.ds(f"ds_read_b128 {R(d)}, v{base} offset:{off}", rs(d))


def chain_order(jp):
    j0, j1 = 2 * jp, 2 * jp + 1
    if jp % 2 == 0:
        return [(j0, 0), (j0, 1), (j1, 1), (j1, 0), (j1, 2), (j1, 3), (j0, 3), (j0, 2)]
    return [(j0, 2), (j0, 3), (j1, 3), (j1, 2), (j1, 0), (j1, 1), (j0, 1), (j0, 0)]


def mfma(g, acc, A, B, first):
    g.wait(regs=rs(A) + rs(B))
    c = "0" if first else R(acc)
    if g.opt.get("al", 0) & 1:
        g(".p2align 3")
    if g.opt.get("al", 0) & 4 and not g.l[-1].lstrip().startswith(("v_mfma", "ds_", "buffer_")):
        g(".p2align 3"); g("s_nop 0")
    g(f"v_mfma_f32_16x16x32_bf16 {R(acc)}, {R(A)}, {R(B)}, {c}")


def start_a(g, own):
    it = [lambda i=i, h=h, q=q: tr_read(g, i, h, q, 0, ("ra", 0), own.kind) for i, h, q in part_reads(own.kind, 0)]
    it.append(lambda: own.advance(g, 1, fresh=True))
    it.append(lambda: set_m0(g, 0))
    it += [None] * g.opt.get("sgap", 3)
    it.append(lambda: g.wait(lg=("ra", 0)))
    for m in range(4):
        it.append(lambda m=m: own.dma(g, 0, m, ("a", 1)))
        it += [None] * (g.opt.get("sgap", 3) - 1)
    return it


def start_x(g, own):
    return [lambda j=j, h=h: x_read(g, own.kind, 0, j, h) for j in range(2) for h in range(2)]


def start_b(g, own):
    return [lambda i=i, h=h, q=q: tr_read(g, i, h, q, 0, ("rb", 0), own.kind) for i, h, q in part_reads(own.kind, 1)] + \
           [lambda: set_m0(g, 1)]


def run(items):
    for f in items:
        if f: f()


def mfma_phase(g, own, nxt, hname, xbar=None, first=False, extra=None):
    o = g.opt
    kind = own.kind
    extra = extra or {}

    def st(p):
        return (own, p) if p < 8 else ((nxt, 0) if (nxt and p == 8) else (None, 0))

    for kp in range(8):
        gaps = {m: [] for m in range(64)}
        late = (first and o.get("late0", 1))
        for jp in range(4):
            nkp, njp = (kp, jp + 1) if jp < 3 else (kp + 1, 0)
            if nkp > 7:
                continue
            slots = [16 * jp + n for n in ((0, 1, 2, 3) if (jp % 2 or (late and jp)) else (0, 1, 4, 5))]
            for n in range(4):
                j, h = 2 * njp + n // 2, n % 2
                def f(nkp=nkp, j=j, h=h, n=n, jp=jp):
                    if n == 0 and jp == 3 and xbar:
                        xbar(nkp)
                    x_read(g, kind, nkp, j, h)
                gaps[slots[n]].append(f)
            gaps[16 * jp + 15].append(lambda njp=njp: g.wait(regs=rs(xreg(2 * njp, 0), 16)))
        if kind == "P" and kp in (3, 7):
            k = "0x10000" if kp == 3 else "0xffff0000"
            gaps[40].append(lambda k=k: g(f"v_add_u32 v{vX0}, {k}, v{vX0}"))
            gaps[41].append(lambda k=k: g(f"v_add_u32 v{vX1}, {k}, v{vX1}"))
        s_, p_ = st(kp + 1)
        if s_:
            gaps[2].append(lambda kp=kp: g.wait(lg=("rb", kp)))
            for m, at in enumerate((3, 7, 11, 14)):
                gaps[at].append(lambda m=m, s_=s_, kp=kp: s_.dma(g, 1, m, ("b", kp + 1)))
        if kp < 7:
            a0 = 37 if late else 21
            adv, am0, aw, ad = (45, 46, 49, (50, 54, 58, 61)) if late else (29, 30, 34, (35, 39, 43, 46))
            if not o.get("novm"):
                gaps[a0 - 1].append(lambda kp=kp: g.wait(vm=("a", kp + 1)))
            for n, (i, h, q) in enumerate(part_reads(kind, 0)):
                gaps[a0 + n].append(lambda i=i, h=h, q=q, kp=kp: tr_read(g, i, h, q, kp + 1, ("ra", kp + 1), kind))
            s_, p_ = st(kp + 2)
            if s_:
                gaps[adv].append(lambda s_=s_, p_=p_: s_.advance(g, p_))
                gaps[am0].append(lambda: set_m0(g, 0))
                gaps[aw].append(lambda kp=kp: g.wait(lg=("ra", kp + 1)))
                for m in range(4):
                    gaps[ad[m]].append(lambda m=m, s_=s_, kp=kp: s_.dma(g, 0, m, ("a", kp + 2)))
                gaps[62].append(lambda: set_m0(g, 1))
            if not o.get("novm"):
                gaps[52].insert(0, lambda kp=kp: g.wait(vm=("b", kp + 1)))
            for n, (i, h, q) in enumerate(part_reads(kind, 1)):
                gaps[53 + n].insert(0, lambda i=i, h=h, q=q, kp=kp: tr_read(g, i, h, q, kp + 1, ("rb", kp + 1), kind))
        if kp == 7 and nxt:
            def fa():
                g.wait(vm=("a", 8), lg="sw")
                g.barrier(hname + "a")
            gaps[o.get("handa", 20) if not late else 36].append(fa)
            def fb():
                g.drain(vm=True, lg=True)
                g.barrier(hname + "b")
            gaps[o.get("handb", 50)].append(fb)
        if kp == 0 and o.get("prio", 1):
            gaps[o.get("prioat", 13)].append(lambda: g("s_setprio 2"))
        m = 0
        for jp in range(4):
            for (j, i) in chain_order(jp):
                for h in range(2):
                    mfma(g, ACC(i, j), wreg(i, h, kp, kind), xreg(j, h), kp == 0 and h == 0)
                    g.point(f"k{kp}g{m}")
                    for f in gaps[m]:
                        f()
                    if (kp, m) in extra:
                        extra[(kp, m)]()
                    m += 1


class Direct:
    def __init__(self, idx):
        self.idx, self.kind = idx, "PPPGG"[idx]

    def soff(self, g, kp, half):
        src = kp if self.kind == "P" else QORD[kp >> 1] * 2 + (kp & 1)
        g(f"s_mov_b32 s{sT0 + half}, {self.idx * 262144 + src * 8192 + half * 4096}")

    early7 = False
    merge = False

    def seq(self):
        seq = [(n // 8, n % 8) for n in range(64)]
        if self.merge == 1:
            seq = seq[:48] + [(6 + n % 2, n // 2) for n in range(16)]
        if self.merge == 2:
            seq = seq[:40] + [(5 + 2 * (n % 2), n // 2) for n in range(8)] + [(6, j) for j in range(4)] + \
                  [(5 + n % 3, 4 + n // 3) for n in range(12)]
        if self.merge == 3:
            seq = seq[:40] + [(5 + 2 * (n % 2), n // 2) for n in range(6)] + [(6, j) for j in range(3)] + \
                  [(5 + n % 3, 3 + n // 3) for n in range(15)]
        assert sorted(seq) == [(n // 8, n % 8) for n in range(64)]
        return seq

    def wr(self, i, h, kp):
        return VH + 8 * i + 4 * h if (self.merge and kp == 7) else DW(i, h, kp)

    def load(self, g, kp, f):
        if g.opt.get("nodma"):
            return
        d = self.wr(f >> 1, f & 1, kp)
        if g.opt.get("wskip") and 2 <= kp < 7 and (f % 2 or g.opt["wskip"] == 2):
            return
        g.vmem(f"buffer_load_dwordx4 {R(d)}, v{vS}, s[{sWP}:{sWP+3}], s{sT0 + (f >> 2)} offen offset:{(f & 3) * 1024} {g.opt.get('wpfl', 'sc1')}".rstrip(), rs(d))

    def start_w(self, g):
        it = [lambda: self.soff(g, 0, 0), lambda: self.soff(g, 0, 1)]
        for f in range(8):
            it += [lambda f=f: self.load(g, 0, f), None, None]
        return it + [lambda: self.soff(g, 1, 0), lambda: self.soff(g, 1, 1)]

    def start_x(self, g):
        return [lambda j=j, h=h: x_read(g, self.kind, 0, j, h, DX(j, h)) for j in range(2) for h in range(2)]


def direct_phase(g, own, xbar=None, extra=None, reset=False):
    g(f"; ---- phase {own.idx + 1}: matrix phase, weights straight into registers")
    o = g.opt
    kind = own.kind
    extra = extra or {}
    wat = [int(v) for v in str(o.get("wat", "2 5 10 13 18 21 26 29")).split()]
    g("s_setprio 1")
    seq = own.seq()
    for blk in range(8):
        gaps = {m: [] for m in range(64)}
        for t in range(8):
            n = blk * 8 + t + 2
            if n < 64:
                for h in range(2):
                    def f(n=n, h=h):
                        if h == 0 and xbar:
                            xbar(*seq[n])
                        if o.get("xskip") and n >= 6 and (n % 2 == 1 or o["xskip"] == 2):
                            return
                        x_read(g, kind, seq[n][0], seq[n][1], h, DX(n, h))
                    gaps[8 * t + int(str(o.get('xg', 'x01'))[1 + h])].append(f)
            if n - 1 < 64:
                r = rs(DX(n - 1, 0), 8)
                if seq[n - 1][1] == 0 and not o.get("novm"):
                    r = r + rs(own.wr(0, 0, seq[n - 1][0]), 16 if t == 7 else 32)
                gaps[8 * t + 7].append(lambda r=r: g.wait(regs=r))
        if not o.get("novm"):
            gaps[3].append(lambda blk=blk: g.wait(regs=rs(own.wr(2, 0, seq[8 * blk][0]), 16)))
        if kind == "P" and blk == 3:
            gaps[43].append(lambda: g(f"v_add_u32 v{vX0}, 0x10000, v{vX0}"))
            gaps[44].append(lambda: g(f"v_add_u32 v{vX1}, 0x10000, v{vX1}"))
        if reset and blk == 7:
            gaps[43].append(lambda: g(f"v_add_u32 v{vX0}, 0xffff0000, v{vX0}"))
            gaps[44].append(lambda: g(f"v_add_u32 v{vX1}, 0xffff0000, v{vX1}"))
        if blk < (6 if own.merge else 7):
            for f in range(8):
                at = wat[f] if not (own.merge == 3 and blk == 5) else (2, 3, 4, 5, 6, 10, 11, 12)[f]
                gaps[at].append(lambda f=f, blk=blk: own.load(g, blk + 1, f))
        if own.merge and blk == 4 and not own.early7:
            gaps[30].append(lambda: own.soff(g, 7, 0))
            gaps[31].append(lambda: own.soff(g, 7, 1))
            for f in range(8):
                gaps[min(wat[f] + 32, 58)].append(lambda f=f: own.load(g, 7, f))
        if blk < (5 if own.merge else 6):
            gaps[59].append(lambda blk=blk: own.soff(g, blk + 2, 0))
            gaps[60].append(lambda blk=blk: own.soff(g, blk + 2, 1))
        if blk == o.get("p2b", 3):
            gaps[36].append(lambda: g("s_setprio 2"))
        m = 0
        g.point(f"b{own.idx}{blk}")
        for t in range(8):
            kp, j = seq[blk * 8 + t]
            for i in (range(4) if t % 2 == 0 else range(3, -1, -1)):
                for h in range(2):
                    if o.get("novm"):
                        g.vm = [(set(), tg) for _, tg in g.vm]
                    mfma(g, ACC(i, j), own.wr(i, h, kp), DX(blk * 8 + t, h), kp == 0 and h == 0)
                    for f in gaps[m]:
                        f()
                    if (blk, m) in extra:
                        extra[(blk, m)]()
                    m += 1


class Half:
    def __init__(self, half):
        self.half = half

    def wr(self, kp, i, h):
        base = 128 + 16 * kp if kp < 6 else ((96, 112), (0, 32))[self.half][kp - 6]
        return base + 8 * i + 4 * h

    def aq(self, j, i):
        return ((0, 16, 32, 48), (16, 48, 64, 80))[self.half][j >> 1] + 8 * (j & 1) + 4 * i

    def xr(self, n, h):
        n %= 6
        return (224 + 8 * n if n < 3 else (64, 96)[self.half] + 8 * (n - 3)) + 4 * h

    def loads(self, g, kp):
        src = QORD[kp >> 1] * 2 + (kp & 1)
        it = [lambda: g(f"s_add_u32 s{sT0}, s{sHo}, {4 * 262144 + self.half * 131072 + src * 8192}")]
        for f in range(4):
            d = self.wr(kp, f >> 1, f & 1)
            if not g.opt.get("nodma"):
                it.append(lambda d=d, f=f: g.vmem(f"buffer_load_dwordx4 {R(d)}, v{vS}, s[{sWP}:{sWP+3}], s{sT0} offen offset:{f * 1024} sc1", rs(d)))
        return it

    def seq(self):
        return [(kp, j) for kp in range(8) for j in range(8)] if self.half == 0 else [(kp, j) for j in range(8) for kp in range(8)]

    def xread(self, g, n, h):
        kp, j = self.seq()[n]
        x_read(g, "G", kp, j, h, self.xr(n, h))

    def start_x(self, g, lo, hi):
        return [lambda n=n, h=h: self.xread(g, n, h) for n in range(lo, hi) for h in range(2)]

    def phase(self, g, extra):
        seq = self.seq()
        g("s_setprio 1")
        m = 0
        for n, (kp, j) in enumerate(seq):
            if n % 16 == 0:
                g.point(f"H{self.half}{n // 16}")
            for t, i in enumerate((0, 1) if n % 2 == 0 else (1, 0)):
                for h in range(2):
                    mfma(g, self.aq(j, i), self.wr(kp, i, h), self.xr(n, h), kp == 0 and h == 0)
                    gp = 2 * t + h
                    if gp < 2 and n + 5 < 64:
                        self.xread(g, n + 5, gp)
                    if gp == 3 and n % 2 == 1 and n + 1 < 64:
                        r = rs(self.xr(n + 1, 0), 8) + rs(self.xr(n + 2, 0), 8)
                        for nn in (n + 1, n + 2):
                            r += rs(self.wr(seq[nn][0], 0, 0), 16)
                        g.wait(regs=r)
                    if m in extra:
                        extra[m]()
                    m += 1


def lane(g, v):
    g(f"v_mbcnt_lo_u32_b32 v{v}, -1, 0")
    g(f"v_mbcnt_hi_u32_b32 v{v}, -1, v{v}")


class Mixer:
    def __init__(self, g):
        self.g, self.q, self.every, self.n = g, [], 2, 0
        self.q2, self.n2 = [], 0
        self.q3, self.n3 = [], 0

    def __call__(self, s):
        if self.g.opt.get("al", 0) & 2 and s.startswith(("v_fma", "v_cvt_pk", "v_mov_b32_dpp", "v_cndmask_b32_dpp")):
            self.g(".p2align 3")
        self.g(s)
        self.n += 1
        self.n3 += 1
        if self.q3 and self.n3 % self.ev3 == 4:
            self.q3.pop(0)()
        if self.q2:
            self.n2 += 1
            if self.n2 >= self.g.opt.get("wdelay", 8):
                self.q2.pop(0)(); self.n2 = 0
        if self.q and self.n % self.every == 0:
            f = self.q.pop(0)
            if f: f()

    def flush(self):
        while self.q2:
            self.q2.pop(0)()
        self.n2 = 0
        while self.q:
            f = self.q.pop(0)
            if f: f()


def glu(e, pairs, scaled=False):
    if e.g.opt.get("noE"): return
    if not scaled:
        for a, b in pairs: e(f"v_mul_f32 v{b}, s{sC}, v{b}")
    for a, b in pairs: e(f"v_exp_f32 v{b}, v{b}")
    for a, b in pairs: e(f"v_fma_f32 v{b}, v{b}, s{sCi}, s{sCi}")
    for a, b in pairs: e(f"v_rcp_f32 v{b}, v{b}")
    for a, b in pairs: e(f"v_mul_f32 v{a}, v{a}, v{b}")


HFL = ["sc0 sc1"]
def halo_loads(ph):
    return [f"buffer_load_dwordx4 {R(VIMP + 4*ct)}, v{vG8}, s[{sWS}:{sWS+3}], s{sW128} offen offset:{ph*512 + ct*64} {HFL[0]}" for ct in range(2)]


def halo_check(g, ph):
    lab = f"L_poll{ph}"
    g(f"s_mov_b32 s{sT2}, {g.opt.get('spin', 4000000)}")
    g.wait(regs=rs(VIMP, 8))
    g(f"{lab}:")
    g(f"v_max3_u32 v{VTMP}, v{VIMP}, v{VIMP+1}, v{VIMP+2}")
    g(f"v_max3_u32 v{VTMP+1}, v{VIMP+3}, v{VIMP+4}, v{VIMP+5}")
    g(f"v_max3_u32 v{VTMP}, v{VTMP}, v{VIMP+6}, v{VIMP+7}")
    g(f"v_max_u32 v{VTMP}, v{VTMP}, v{VTMP+1}")
    g(f"v_cmp_eq_u32 vcc, -1, v{VTMP}")
    g(f"s_sub_u32 s{sT2}, s{sT2}, 1")
    g(f"s_cbranch_scc1 {lab}_ok")
    g(f"s_cbranch_vccz {lab}_ok")
    for t in halo_loads(ph):
        g(t)
    g("s_waitcnt vmcnt(0)")
    g(f"s_branch {lab}")
    g(f"{lab}_ok:")


def conv_mfma(ct, r, half):
    return f"v_mfma_f32_16x16x32_bf16 {R(YY(ct, r, 4*half))}, {R(AF(ct, r))}, {R(TP(ct, r, 2*half))}, 0"


def e_phase(g, ph, dst, pre=(), after_tile=None, glu_tile=None, silu_tile=None, warm=(), tw=3, pre4=()):
    o = g.opt
    halo = o.get("halo", 1)
    noE = o.get("noE")
    skip = o.get("skip", 1)
    e = Mixer(g)
    prio = 0
    g("s_setprio 0")
    g(f"s_movk_i32 s{sT3}, {ph * 8192}")
    g("s_nop 5")
    el = [(ct, r) for ct in range(2) for r in range(4)]
    for ct, r in el:
        e.q.append(lambda ct=ct, r=r: g.vmem(
            f"buffer_load_dwordx4 {R(AF(ct, r))}, v{vM0}, s[{sDW}:{sDW+3}], s{sT3} offen offset:{ct*1024 + r*64} sc1", rs(AF(ct, r))))
    e.q = [None] * 2 + e.q
    e.q3 = list(warm); e.ev3 = 12 if len(e.q3) < 40 else 6
    e.every = o.get('afev', 8)
    def pack(q): return [f"v_cvt_pk_bf16_f32 v{TP(ct, r, q)}, v{ACC(ct, 2*q)+r}, v{ACC(ct, 2*q+1)+r}" for ct, r in el]
    for n_, j in enumerate((2, 3, 0, 1, 4, 5, 6, 7)):
        glu(e, [(ACC(ct, j) + r, ACC(2 + ct, j) + r) for ct in range(2) for r in range(4)], ph > 0 and o.get('psc', 0))
        if n_ == 3:
            for t in pack(1) + pack(0): e(t)
            if halo:
                for ct, r in el:
                    e(f"v_min_u32 v{ACC(2+ct, 2)+r}, -2, v{TP(ct, r, 1)}")
                g(f"s_cmp_lg_u32 s{sWE+2}, 4096")
                g(f"s_cbranch_scc1 L_exp2{ph}")
                for ct, r in el:
                    g(f"v_min_u32_dpp v{ACC(2+ct, 2)+r}, v{TP(ct, r, 0)}, v{vM1} row_shr:1 row_mask:0xf bank_mask:0xf")
                g(f"L_exp2{ph}:")
                def ex_():
                    for ct in range(2):
                        g.vmem(f"buffer_store_dwordx4 {R(ACC(2+ct, 2))}, v{vEX}, s[{sWE}:{sWE+3}], s{sW128} offen offset:{ph*512 + ct*64} {HFL[0]}")
                assert not e.q2
                if o.get("exd", 5):
                    e.q2 += [lambda: None] * (o.get("exd", 5) - 1) + [ex_]
                else:
                    ex_()
        if glu_tile:
            glu_tile(e, n_)
    e.flush()
    if not noE:
        p1, p2 = pack(2), pack(3)
        fill = [t for n in range(8) for t in (p1[n], p2[n])]
        for t in fill[:4]: e(t)
        g.wait(regs=rs(192, 32))
        g(f"s_setprio {o.get('cprio', 3)}")
        for n, (ct, r) in enumerate(el):
            g(conv_mfma(ct, r, 0))
            for t in fill[2*n + 4:2*n + 6]: e(t)
            if n == 5: g("s_nop 0")
        g("s_setprio 0")
    if halo and o.get("ti", 1) < 0:
        for ct, t in enumerate(halo_loads(ph)):
            g.vmem(t, rs(VIMP + 4 * ct))
    while e.q3:
        e.q3.pop(0)()
    ta = o.get("ta", 6)
    ti, tc = o.get("ti", 1), o.get("tc", 3)
    for j in range(8):
        if silu_tile:
            silu_tile(e, j)
        if j == tw and warm:
            g("s_waitcnt lgkmcnt(0)"); g.lg = []
        if j == ti:
            if halo:
                for ct, t in enumerate(halo_loads(ph)):
                    g.vmem(t, rs(VIMP + 4 * ct))
        if j == 4 and pre4:
            assert tc < 4
            e.q += list(pre4); e.every = o.get("p4ev", 8); e.n = 0
        if j == ta and pre4:
            g("s_setprio 1"); prio = 1
        elif j == ta:
            g("s_setprio 1"); prio = 1
            e.q += list(pre); e.every = 2; e.n = 0
        ys = [YY(ct, r, j) for ct, r in el]
        mm = []
        if j == tc and not noE:
            for ct, r in el:
                e(f"v_mov_b32_dpp v{TP(ct, r, 5)}, v{TP(ct, r, 1)} row_shl:1 row_mask:0xf bank_mask:0xf bound_ctrl:1")
            if halo:
                halo_check(g, ph)
            g(f"s_mov_b32 vcc_lo, {0x80008000 if halo else 0}")
            g(f"s_mov_b32 vcc_hi, {0x80008000 if halo else 0}")
            if halo:
                g(f"s_cmp_lg_u32 s{sWS+2}, 4096")
                g(f"s_cbranch_scc1 L_imp2{ph}")
                for n, (ct, r) in enumerate(el):
                    g(f"v_mov_b32_dpp v{TP(ct, r, 5)}, v{VIMP+n} row_shr:15 row_mask:0xf bank_mask:0xf")
                g(f"L_imp2{ph}:")
            for n, (ct, r) in enumerate(el):
                e(f"v_cndmask_b32_dpp v{TP(ct, r, 4)}, v{TP(ct, r, 0)}, v{VIMP+n}, vcc row_shl:1 row_mask:0xf bank_mask:0xf bound_ctrl:1")
            mm = [conv_mfma(ct, r, 1) for ct, r in el]
            g(f"s_setprio {o.get('cprio', 3)}")
        if not noE:
            for n, y in enumerate(ys):
                if mm: g(mm[n])
                e(f"v_exp_f32 v{VTMP+n}, v{y}")
            if mm: g(f"s_setprio {prio}")
            for n, y in enumerate(ys): e(f"v_fma_f32 v{VTMP+n}, v{VTMP+n}, s{sC}, s{sC}")
            for n, y in enumerate(ys): e(f"v_rcp_f32 v{VTMP+n}, v{VTMP+n}")
            for n, y in enumerate(ys): e(f"v_mul_f32 v{y}, v{y}, v{VTMP+n}")
        for n in range(4): e(f"v_cvt_pk_bf16_f32 v{dst+4*j+n}, v{ys[2*n]}, v{ys[2*n+1]}")
        if after_tile:
            after_tile(e, j)
    e.flush()


vG0, vG1, vG2 = vM0, vM1, vEX


def outv_addr(g, t=144, half=None):
    lane(g, t)
    if half is None:
        g(f"s_lshl_b32 s{sT2}, s{sWv}, 7")
    else:
        g(f"s_add_u32 s{sT2}, s{sW64}, {512 + 256 * half}")
    g(f"v_bfe_u32 v{t+1}, v{t}, 1, 3")
    g(f"v_lshl_add_u32 v{vG0}, v{t+1}, 14, s{sT2}")
    g(f"v_bfe_u32 v{t+2}, v{t}, 4, 1")
    g(f"v_lshl_add_u32 v{vG0}, v{t+2}, 5, v{vG0}")
    g(f"v_lshrrev_b32 v{t+2}, 5, v{t}")
    g(f"v_lshl_add_u32 v{vG0}, v{t+2}, {6 if half is None else 10}, v{vG0}")
    g(f"v_and_b32 v{t+2}, 1, v{t}")
    g(f"v_lshl_add_u32 v{vG0}, v{t+2}, 4, v{vG0}")
    g(f"v_add_u32 v{vG1}, 8192, v{vG0}")
    g(f"s_movk_i32 s{sT3}, 4096")
    g(f"s_mov_b32 vcc_lo, 0x55555555")
    g(f"s_mov_b32 vcc_hi, 0x55555555")


def outv_items(g, j, n, fl, mode=2, inflight=None, Q=None):
    Q = Q or [ACC(i, j) for i in range(4)]
    def T(i, d): return Q[i >> 1] + 2 * (i & 1) + d
    it = []
    for i in range(4):
        for d in range(2):
            a = Q[i] + 2 * d
            it.append(f"v_cvt_pk_bf16_f32 v{T(i, d)}, v{a}, v{a+1}")
    if not g.opt.get("nsw", 1):
        for d in range(2):
            for i in (0, 2):
                it.append(f"v_permlane16_swap_b32 v{T(i, d)}, v{T(i+1, d)}")
        for d in range(2):
            for i in (0, 1):
                it.append(f"v_permlane32_swap_b32 v{T(i, d)}, v{T(i+2, d)}")
    dpp = "quad_perm:[1,0,3,2] row_mask:0xf bank_mask:0xf"
    so = "0" if j < 4 else f"s{sT3}"
    for hb in ((0, 1) if n % 2 == 0 else (1, 0)):
        S = Q[2 + hb]
        for k in ((0, 1, 2, 3) if g.opt.get('nsw', 1) else (0, 2, 1, 3)):
            it.append(f"v_cndmask_b32_dpp v{S+k}, v{Q[1-hb]+k}, v{Q[hb]+k}, vcc {dpp}")
        if hb == n % 2:
            it.append("s_not_b64 vcc, vcc")
        va = vG1 if hb else vG0
        if inflight is not None:
            it.append(f"s_waitcnt vmcnt({inflight})")
        it.append(f"buffer_store_dwordx4 {R(S)}, v{va}, s[{sO}:{sO+3}], {so} offen offset:{(j % 4)*1024} {fl}".rstrip())
    if mode == 1: it = [t for t in it if not t.startswith("buffer")]
    if mode == 3: it = [t for t in it if t.startswith("buffer")]
    return [(lambda t=t: g.vmem(t) if t.startswith("buffer") else g(t)) for t in it]


def out_interleave(g, ex, own, per, ntiles, fl, mode=2):
    pend = []
    seq = own.seq()
    done = {8 * max(n for n in range(64) if seq[n][1] == j) + 15: j for j in range(ntiles)}
    def f(m):
        if m in done:
            pend.extend(outv_items(g, done[m], done[m], fl, mode))
        for _ in range(per[m % len(per)]):
            if pend: pend.pop(0)()
    for m in range(min(done), 512):
        assert (m // 64, m % 64) not in ex
        ex[(m // 64, m % 64)] = (lambda m=m: f(m))
    return pend


def srd(g, d, lo, size):
    g(f"s_mov_b32 s{d}, s{lo}")
    g(f"s_mov_b32 s{d+1}, s{lo+1}")
    g(f"s_mov_b32 s{d+2}, {size}")
    g(f"s_mov_b32 s{d+3}, 0x20000")


def g_addr(g):
    g(f"v_subrev_u32 v{vX1}, s{sSb}, v{vS}")
    g(f"v_add_u32 v{vX0}, 98304, v{vX1}")
    g(f"v_add_u32 v{vX1}, 32768, v{vX1}")


def build(opt):
    g = Gen(opt)
    HFL[0] = opt.get("hfl", "sc0 sc1")
    halo = opt.get("halo", 1)
    xfl = opt.get("xflag", "nt")
    win = opt.get("win", 2)
    rbar = opt.get("rbar", 15)
    stamps = opt.get("stamps")
    kx, kw1, kdw, kw2, kout, kdbg, kws = KA, KA + 2, KA + 4, KA + 6, KA + 8, KA + 10, KA + 12
    g.l.append(HEAD.rstrip("\n"))
    g("; @launch grid=(256,1,1) block=(512,1,1) lds=163840")
    g.l.append(DOC.strip("\n"))
    g('.amdgcn_target "amdgcn-amd-amdhsa--gfx950"')
    g(".text")
    g(f".globl {KN}_kernel")
    g(".p2align 8")
    g(f".type {KN}_kernel,@function")
    g(f"{KN}_kernel:")
    g("s_cmp_ge_u32 s2, 256")
    g("s_cbranch_scc1 L_end")
    for wgi in str(opt.get("idle", "")).split():
        g(f"s_cmp_eq_u32 s2, {wgi}")
        g("s_cbranch_scc1 L_end")
    g(f"s_load_dwordx8 s[{KA}:{KA+7}], s[0:1], 0")
    g(f"s_load_dwordx4 s[{KA+8}:{KA+11}], s[0:1], 32")
    g(f"s_load_dwordx2 s[{KA+12}:{KA+13}], s[0:1], 48")
    if stamps:
        g("s_memrealtime s[74:75]")
        g(f"s_mem{'real' if stamps == 3 else ''}time s[100:101]")
    g(f"v_readfirstlane_b32 s{sWv}, v0")
    g(f"s_mov_b32 s{sWg}, s2")
    g(f"s_and_b32 s3, s2, 7")
    g(f"s_lshr_b32 s{sT0}, s2, 3")
    g(f"s_lshl_b32 s{sT1}, s3, 5")
    g(f"s_add_u32 s{sTile}, s{sT0}, s{sT1}")
    g(f"s_and_b32 s{sT1}, s2, 1")
    g(f"s_lshl_b32 s{sT2}, s{sT1}, 11")
    g(f"s_sub_u32 s{sRows}, 0x20000, s{sT2}")
    g(f"s_mul_i32 s{sTau}, s{sT0}, s{sRows}")
    g(f"s_lshl_b32 s{sT1}, s{sT1}, 22")
    g(f"s_add_u32 s{sTau}, s{sTau}, s{sT1}")
    g(f"s_bitcmp1_b32 s2, 1")
    g(f"s_cselect_b32 s{sT1}, {8002 * 1024}, 0")
    g(f"s_add_u32 s{sTau}, s{sTau}, s{sT1}")
    g(f"s_bitcmp1_b32 s2, 2")
    g(f"s_cselect_b32 s{sT1}, 16384000, 0")
    g(f"s_add_u32 s2, s{sTau}, s{sT1}")
    g(f"s_lshr_b32 s{sWv}, s{sWv}, 6")
    if opt.get("swap", 1):
        g(f"s_xor_b32 s{sWv}, s{sWv}, 4")
    g(f"s_and_b32 s{sW}, s{sWv}, 3")
    g("v_and_b32 v0, 63, v0")
    if opt.get("stag"):
        g(f"s_bfe_u32 s{sT0}, s{sWg}, {0x10000 * opt.get('stagb', 1) + 3}")
        g("L_stag:")
        g(f"s_sub_u32 s{sT0}, s{sT0}, 1")
        g("s_cbranch_scc1 L_stag_e")
        g(f"s_sleep {opt['stag']}")
        g("s_branch L_stag")
        g("L_stag_e:")
    g(f"s_and_b32 s{sT0}, s{sTile}, 63")
    g(f"s_cmp_eq_u32 s{sT0}, 63")
    g("s_cbranch_scc1 L_notile")
    g(f"s_cmp_lt_u32 s{sWv}, 4")
    g("s_cbranch_scc1 L_startA")

    P = [Stream("P", ph) for ph in range(2)]
    P1, P2, P3, GA, GB = (Direct(n) for n in range(5))
    d1 = opt.get('d1', 1)

    if opt.get("bp"):
        g("s_setprio 3")
    g(f"v_lshrrev_b32 v12, 3, v0")
    g(f"v_and_b32 v13, 7, v0")
    g(f"v_lshrrev_b32 v14, 4, v0")
    g(f"v_xor_b32 v14, v14, v13")
    g(f"s_lshl_b32 s{sT3}, s{sW}, 11")
    g(f"v_lshl_add_u32 v14, v14, 4, s{sT3}")
    g(f"v_lshl_add_u32 v16, v12, 13, v14")
    g(f"v_xor_b32 v17, 0x10040, v16")
    g(f"v_add_u32 v19, 1024, v17")
    g(f"s_cmp_eq_u32 s{sTau}, 0")
    g(f"s_cselect_b32 s{sT3}, 1024, 0")
    g(f"v_cmp_gt_u32 vcc, s{sT3}, v16")
    g(f"v_mov_b32 v15, {OOB}")
    g(f"s_sub_u32 s{sX+2}, {16002 * 1024}, s{sTau}")
    g(f"v_cndmask_b32 v16, v16, v15, vcc")
    g(f"s_mov_b32 s{sX+3}, 0x20000")
    g(f"s_min_u32 s{sX+2}, s{sX+2}, s{sX+3}")
    g(f"v_add_u32 v18, 1024, v16")
    g(f"s_lshl_b32 s{sT3}, s{sW}, 12")
    g("s_waitcnt lgkmcnt(0)")
    g(f"s_add_u32 s{sX}, s{kx}, s2")
    g(f"s_addc_u32 s{sX+1}, s{kx+1}, 0")
    g(f"s_sub_u32 s{sX}, s{sX}, 2048")
    g(f"s_subb_u32 s{sX+1}, s{sX+1}, 0")
    if opt.get("hd") == 1: g.stamp(8)

    def d1_addr():
        g(f"v_lshrrev_b32 v1, 5, v0")
        g(f"v_lshlrev_b32 v1, 1, v1")
        g(f"v_and_b32 v2, 3, v0")
        g(f"v_xor_b32 v1, v1, v2")
        g(f"s_lshl_b32 s{sW64}, s{sW}, 6")
        g(f"v_lshl_add_u32 v1, v1, 4, s{sW64}")
        g(f"v_lshrrev_b32 v3, 2, v0")
        g(f"v_lshl_add_u32 v{vD1}, v3, 11, v1")
        g(f"s_lshl_b32 s{sRing}, s{sW}, 13")
        g(f"s_add_u32 s{sRing}, s{sRing}, 131072")
        g(f"s_add_u32 s{sRing+1}, s{sRing}, 4096")
        for f in set_kconst(g, "P"): f()

    def ct_srd():
        g(f"s_lshl_b32 s{sT0}, s{sW}, 11")
        g(f"s_add_u32 s{sT0}, s{sT0}, {CTOFF}")
        g(f"s_add_u32 s{sDW}, s{sWq}, s{sT0}")
        g(f"s_addc_u32 s{sDW+1}, s{sWq+1}, 0")
        g(f"s_mov_b32 s{sDW+2}, 32768")
        g(f"s_mov_b32 s{sDW+3}, 0x20000")

    def common(role):
        if role == 1 or not opt.get("trim", 1):
            srd(g, sW2, kw2, 524288)
            srd(g, sDBG, kdbg, 256)
        g(f"s_add_u32 s{sO}, s{kout}, s2")
        g(f"s_addc_u32 s{sO+1}, s{kout+1}, 0")
        g(f"s_sub_u32 s{sO+2}, 16384000, s{sTau}")
        g(f"s_min_u32 s{sO+2}, s{sO+2}, s{sRows}")
        g(f"s_mov_b32 s{sO+3}, 0x20000")
        g(f"s_lshl_b32 s{sT0}, s{sTile}, 12")
        g(f"s_add_u32 s{sWS}, s{kws}, s{sT0}")
        g(f"s_addc_u32 s{sWS+1}, s{kws+1}, 0")
        g(f"s_and_b32 s{sT0}, s{sTile}, 63")
        g(f"s_cselect_b32 s{sT0}, 1, 2")
        g(f"s_sub_u32 s{sT1}, s{sTile}, s{sT0}")
        g(f"s_lshl_b32 s{sT0}, s{sT0}, 12")
        g(f"s_sub_u32 s{sWE}, s{sWS}, s{sT0}")
        g(f"s_subb_u32 s{sWE+1}, s{sWS+1}, 0")
        g(f"s_movk_i32 s{sT0}, 4096")
        g(f"s_bitcmp1_b32 s{sT1}, 5")
        g(f"s_cselect_b32 s{sWE+2}, 2048, s{sT0}")
        g(f"s_cmp_eq_u32 s{sTau}, 0")
        g(f"s_cselect_b32 s{sWE+2}, 0, s{sWE+2}")
        g(f"s_bitcmp1_b32 s{sTile}, 5")
        g(f"s_cselect_b32 s{sWS+2}, 2048, s{sT0}")
        g(f"s_cmp_lt_u32 s{sO+2}, s{sRows}")
        g(f"s_cselect_b32 s{sWS+2}, 0, s{sWS+2}")
        g(f"s_mov_b32 s{sWS+3}, 0x20000")
        g(f"s_mov_b32 s{sWE+3}, 0x20000")
        if stamps:
            g(f"s_mov_b64 s[40:41], s[{kws}:{kws+1}]")
        g(f"s_mov_b32 s{sC}, 0xbfb8aa3b")
        g(f"s_mov_b32 s{sCi}, 0xbf317218")
        g(f"s_lshl_b32 s{sW128}, s{sW}, 7")
        g(f"v_lshrrev_b32 v3, 4, v0")
        g(f"v_lshlrev_b32 v{vG8}, 4, v3")
        g(f"v_bfe_u32 v5, v0, 2, 2")
        g(f"v_xor_b32 v24, v5, v3")
        g(f"v_lshlrev_b32 v24, 24, v24")
        g(f"v_lshl_add_u32 v24, v5, 8, v24")
        g(f"v_lshl_add_u32 v{vM0}, v2, 4, v24")
        g(f"v_and_b32 v25, 15, v0")
        g(f"s_sub_u32 s{sT0}, s{sWE+2}, 2048")
        g(f"v_lshlrev_b32 v24, 11, v25")
        g(f"v_sub_u32 v24, s{sT0}, v24")
        g(f"v_min_u32 v24, {OOB}, v24")
        g(f"v_add_u32 v{vEX}, v24, v{vG8}")
        g(f"v_add_u32 v25, 1, v25")
        g(f"v_lshrrev_b32 v25, 4, v25")
        g(f"v_xor_b32 v25, 1, v25")
        g(f"v_lshl_add_u32 v{vG8}, v25, 11, v{vG8}")
        g(f"v_mov_b32 v{vM1}, -2")
        g(f"s_lshr_b32 s{sT0}, s{sW}, 1")
        g(f"s_lshl_b32 s{sT0}, s{sT0}, 14")
        g(f"s_and_b32 s{sT1}, s{sW}, 1")
        g(f"s_lshl_b32 s{sT1}, s{sT1}, 10")
        g(f"s_add_u32 s{sSb}, s{sT0}, s{sT1}")
        g(f"s_add_u32 s{sSb}, s{sSb}, {32768 if role == 0 else 98304}")
        g(f"v_lshl_add_u32 v{vS}, v0, 4, s{sSb}")
        g(f"s_add_u32 s{sWq}, s{kws}, {WPOFF}")
        g(f"s_addc_u32 s{sWq+1}, s{kws+1}, 0")
        g(f"s_lshl_b32 s{sT0}, s{sW}, 16")
        g(f"s_add_u32 s{sWP}, s{sWq}, s{sT0}")
        g(f"s_addc_u32 s{sWP+1}, s{sWq+1}, 0")
        g(f"s_sub_u32 s{sWP}, s{sWP}, s{sSb}")
        g(f"s_subb_u32 s{sWP+1}, s{sWP+1}, 0")
        if opt.get('split', 0) or not opt.get('trim', 1):
            g(f"s_lshr_b32 s{sT1}, s{sW}, 1")
            g(f"s_lshl_b32 s{sT1}, s{sT1}, 16")
            g(f"s_sub_u32 s{sHo}, s{sT1}, s{sT0}")
            g(f"s_and_b32 s{sT1}, s{sW}, 1")
            g(f"s_lshl_b32 s{sT1}, s{sT1}, 12")
            g(f"s_add_u32 s{sHo}, s{sHo}, s{sT1}")
        g(f"s_mov_b32 s{sWP+2}, 0x200000")
        g(f"s_mov_b32 s{sWP+3}, 0x20000")
        if role == 0 or not opt.get('trim', 1):
            g(f"v_bfe_u32 v4, v0, 4, 1")
            g(f"v_bfe_u32 v5, v0, 2, 2")
            g(f"v_lshl_add_u32 v{vW0}, v3, 9, s{sRing}")
            g(f"v_lshl_add_u32 v{vW0}, v5, 6, v{vW0}")
            g(f"v_lshl_add_u32 v{vW0}, v4, 5, v{vW0}")
            g(f"v_lshl_add_u32 v{vW0}, v2, 3, v{vW0}")
            g(f"v_xor_b32 v{vW1}, 32, v{vW0}")
        g(f"v_and_b32 v4, 15, v0")
        g(f"v_lshrrev_b32 v5, 1, v4")
        g(f"v_xor_b32 v5, v5, v3")
        g(f"v_lshlrev_b32 v5, 4, v5")
        g(f"v_lshl_add_u32 v{vX0}, v4, 7, v5")
        g(f"v_xor_b32 v{vX1}, 64, v{vX0}")
        if stamps:
            g("s_mov_b64 s[76:77], s[100:101]")


    sWB = 0
    sub = (0, 64)
    def wbase(key):
        if key < 2 - d1:
            g(f"s_lshl_b32 s{sT2}, s{sSl}, 13")
            g(f"s_add_u32 s{sT2}, s{sT2}, {key * 256}")
            ptr = sW1
        else:
            g(f"s_lshl_b32 s{sT2}, s{sSl}, 11")
            g(f"s_add_u32 s{sT2}, s{sT2}, {(key - 1) * 262144}")
            ptr = sWq
        g(f"s_add_u32 s{sWB}, s{ptr}, s{sT2}")
        g(f"s_addc_u32 s{sWB+1}, s{ptr+1}, 0")
    def wlines(key):
        if key < 2 - d1:
            return [(key, n * 1024 + e * 64) for n in range(8) for e in range(4)]
        return [(key, n * 64) for n in range(32)]
    def swarm(lines):
        cur = None
        for n, (key, of) in enumerate(lines):
            if key != cur:
                wbase(key); cur = key
            if n % 14 == 0:
                g(f"s_waitcnt lgkmcnt({15 - min(14, len(lines) - n)})")
            g(f"s_load_dword s3, s[{sWB}:{sWB+1}], {of}")
    later = wlines(1)
    nb = 8
    def e_warm(key, n0=0):
        if str(key) not in str(opt.get("wk", "5")):
            return []
        def ld(n, of):
            if n + n0 >= 14:
                g("s_waitcnt lgkmcnt(13)")
            g(f"s_load_dword s3, s[{sWB}:{sWB+1}], {of}")
        return [lambda: wbase(key)] + [(lambda n=n, of=of: ld(n, of)) for n, (_, of) in enumerate(wlines(key))]

    def x_issue(kp):
        g(f"s_movk_i32 s{sT0}, {kp*128}")
        for jj in range(2):
            for hh in range(2):
                g(f"s_add_u32 m0, s{sT3}, {kp*16384 + jj*2048 + hh*1024}")
                g("s_nop 0")
                g.vmem(f"buffer_load_dwordx4 v{16+2*jj+hh}, s[{sX}:{sX+3}], s{sT0} offen {xfl} lds".replace("  ", " "), tag=("x", kp))
    x_issue(0)
    if opt.get("hd") == 2:
        g("s_waitcnt vmcnt(0)"); g.stamp(8)
    def l2_warm(tag):
        srd(g, sW1, kw1, 1048576)
        g(f"s_getpc_b64 s[{sCode}:{sCode+1}]")
        g(f"L_pc{tag}:")
        g(f"s_mov_b32 s{sCode+2}, L_code_end-L_pc")
        if tag:
            g(f"s_sub_u32 s{sCode}, s{sCode}, L_pc{tag}-L_pc")
            g(f"s_subb_u32 s{sCode+1}, s{sCode+1}, 0")
        g(f"s_mov_b32 s{sCode+3}, 0x20000")
        g(f"s_lshr_b32 s{sT1}, s{sWg}, 3")
        g(f"s_lshl2_add_u32 s{sSl}, s{sT1}, s{sW}")
        g(f"v_lshrrev_b32 v6, 1, v0")
        g(f"v_lshlrev_b32 v6, 10, v6")
        g(f"v_and_b32 v7, 1, v0")
        g(f"v_lshl_add_u32 v6, v7, 7, v6")
        g(f"v_lshrrev_b32 v7, 4, v0")
        if opt.get("hw", 2) >= 2 and tag:
            for kp in list(range(1, 8)):
                g(f"s_lshl_b32 s{sT2}, s{sW}, 15")
                g(f"s_add_u32 s{sT2}, s{sT2}, {kp * 131072}")
                g(f"buffer_load_dword v{10+kp}, v6, s[{sW1}:{sW1+3}], s{sT2} offen")
                if kp == 1:
                    g(f"s_lshl_b32 s{sT2}, s{sSl}, 7")
                    g(f"v_lshlrev_b32 v7, 14, v0")
                    g(f"buffer_load_dword v9, v7, s[{sCode}:{sCode+3}], s{sT2} offen")
            return
        g(f"v_lshl_add_u32 v6, v7, 28, v6")
        if opt.get("hw", 2) >= 2:
            g(f"s_and_b32 s{sT2}, s{sWg}, 1")
            g(f"s_lshl_b32 s{sT2}, s{sT2}, 30")
            g(f"v_add_u32 v6, s{sT2}, v6")
        def warm_w1(ph, dst):
            g(f"s_lshl_b32 s{sT2}, s{sSl}, 13")
            if ph:
                g(f"s_add_u32 s{sT2}, s{sT2}, {ph * 256}")
            g.vmem(f"buffer_load_dword v{dst}, v6, s[{sW1}:{sW1+3}], s{sT2} offen {opt.get('wfl', '')}", [dst])
        if opt.get("warm0", 1) == 1:
            warm_w1(0, 8)
        if opt.get("cw", 1) == 1:
            g(f"s_lshl_b32 s{sT2}, s{sSl}, 7")
            g(f"v_lshlrev_b32 v7, 14, v0")
            g.vmem(f"buffer_load_dword v9, v7, s[{sCode}:{sCode+3}], s{sT2} offen", [9])
    b0 = opt.get("b0", 0)
    if b0 == 1:
        g("s_barrier")
    g('L_B2:')
    l2_warm('')
    if b0 == 2:
        g("s_barrier")
    if opt.get("warm0", 1) == 2:
        swarm(wlines(0)[12 * len(sub):])
    if opt.get("hd") in (2, 3):
        g("s_waitcnt vmcnt(0)"); g.stamp(9)
    if opt.get("trim", 1):
        g(f"v_and_b32 v2, 3, v0")
    else:
        d1_addr()
    common(1)
    assert d1 and opt.get("nsw", 1)
    oddp = opt.get("oddp", 1)
    vm0 = list(g.vm)
    if oddp:
        g(f"s_bitcmp1_b32 s{sWg}, 0")
        g("s_cbranch_scc1 L_oddB")
    full = opt.get("tmode", 2) == 2
    sE, sS1, sD1, sS2, sD2, sOff = 64, 65, 42, 43, sSl + 1, 3
    BIG = 0x40000000
    if opt.get("emap", 1):
        g(f"s_lshr_b32 s{sT0}, s{sWg}, 3")
        g(f"s_bfe_u32 s{sT1}, s{sWg}, 0x10001")
        g(f"s_lshl1_add_u32 s{sE}, s{sT0}, s{sT1}")
        g(f"s_bfe_u32 s{sT1}, s{sWg}, 0x10002")
        g(f"s_lshl_b32 s{sT1}, s{sT1}, 6")
        g(f"s_add_u32 s{sE}, s{sE}, s{sT1}")
    else:
        g(f"s_lshr_b32 s{sE}, s{sWg}, 1")
    g(f"s_and_b32 s{sOff}, s{sWg}, 1")
    if opt.get("tpar"):
        g(f"s_xor_b32 s{sOff}, s{sOff}, 1")
    g(f"s_lshl_b32 s{sOff}, s{sOff}, 30")
    g(f"s_and_b32 s{sT0}, s{sE}, 15")
    g(f"s_lshr_b32 s{sT1}, s{sT0}, 1")
    g(f"s_lshl_b32 s{sD1}, s{sT1}, 13")
    g(f"s_and_b32 s{sT1}, s{sT0}, 1")
    g(f"s_lshl_b32 s{sT1}, s{sT1}, 10")
    g(f"s_add_u32 s{sD1}, s{sD1}, s{sT1}")
    g(f"s_lshl_b32 s{sS2}, s{sT0}, 15")
    g(f"s_lshl_b32 s{sT2}, s{sW}, 13")
    g(f"s_add_u32 s{sS2}, s{sS2}, s{sT2}")
    g(f"s_lshl_b32 s{sT2}, s{sW}, 11")
    g(f"s_add_u32 s{sD2}, s{sD1}, s{sT2}")
    g(f"s_lshr_b32 s{sT1}, s{sE}, 4")
    g(f"s_lshl_b32 s{sT2}, s{sT1}, 16")
    g(f"s_add_u32 s{sD2}, s{sD2}, s{sT2}")
    g(f"s_add_u32 s{sD2}, s{sD2}, {3 * 262144}")
    g(f"s_lshl_b32 s{sT2}, s{sT1}, 7")
    g(f"s_add_u32 s{sS2}, s{sS2}, s{sT2}")
    g(f"s_lshl_b32 s{sS1}, s{sT0}, 16")
    g(f"s_and_b32 s{sT1}, s{sW}, 1")
    g(f"s_lshl_b32 s{sT2}, s{sT1}, 15")
    g(f"s_add_u32 s{sS1}, s{sS1}, s{sT2}")
    g(f"s_lshl_b32 s{sT2}, s{sT1}, 11")
    g(f"s_add_u32 s{sD1}, s{sD1}, s{sT2}")
    g(f"s_lshr_b32 s{sT1}, s{sW}, 1")
    g(f"s_lshl_b32 s{sT2}, s{sT1}, 13")
    g(f"s_add_u32 s{sS1}, s{sS1}, s{sT2}")
    g(f"s_lshl_b32 s{sT2}, s{sT1}, 16")
    g(f"s_add_u32 s{sD1}, s{sD1}, s{sT2}")
    g(f"s_bfe_u32 s{sT1}, s{sE}, 0x10004")
    g(f"s_lshl_b32 s{sT2}, s{sT1}, 10")
    g(f"s_add_u32 s{sS1}, s{sS1}, s{sT2}")
    g(f"s_lshl_b32 s{sT2}, s{sT1}, 12")
    g(f"s_add_u32 s{sD1}, s{sD1}, s{sT2}")
    g(f"s_lshr_b32 s{sT1}, s{sE}, 5")
    g(f"s_lshl_b32 s{sT2}, s{sT1}, 7")
    g(f"s_add_u32 s{sS1}, s{sS1}, s{sT2}")
    g(f"s_add_u32 s{sS1}, s{sS1}, 256")
    g(f"s_lshl_b32 s{sT2}, s{sT1}, 17")
    g(f"s_add_u32 s{sD1}, s{sD1}, s{sT2}")
    g(f"s_cmp_lt_u32 s{sE}, 64")
    g(f"s_cselect_b32 s{sT1}, s{sOff}, {BIG}")
    g(f"s_xor_b32 s{sT2}, s{sOff}, {0 if full else BIG}")
    g(f"s_add_u32 s{sT0}, s{sOff}, 256")
    g(f"v_lshlrev_b32 v27, 4, v13")
    g(f"v_lshl_add_u32 v44, v12, 10, v27")
    g(f"v_add_u32 v44, s{sT2}, v44")
    g(f"v_and_b32 v28, 3, v12")
    g(f"v_lshrrev_b32 v26, 2, v12")
    g(f"v_lshl_add_u32 v26, v26, 3, v28")
    g(f"v_lshl_add_u32 v26, v26, 11, v27")
    g(f"v_add_u32 v42, s{sT0}, v26")
    g(f"v_add_u32 v43, s{sT1}, v26")
    g(f"s_add_u32 s{sT0}, s{sOff}, 262144")
    g(f"v_lshl_add_u32 v45, v0, 4, s{sT0}")
    g(f"v_lshl_add_u32 v46, v0, 4, s{sT1}")
    g(f"v_lshl_add_u32 v47, v0, 4, s{sT2}")
    g(f"v_lshrrev_b32 v26, 2, v0")
    g(f"v_lshlrev_b32 v26, 7, v26")
    g(f"s_lshl_b32 s{sT1}, s{sW}, 3")
    g(f"s_add_u32 s{sT1}, s{sT1}, {SCR}")
    g(f"v_lshl_add_u32 v27, v2, 5, v26")
    g(f"v_add_u32 v27, s{sT1}, v27")
    g(f"s_lshl_b32 s{sT1}, s{sW}, 5")
    g(f"s_add_u32 s{sT1}, s{sT1}, {SCR}")
    g(f"v_lshl_add_u32 v26, v2, 3, v26")
    g(f"v_add_u32 v26, s{sT1}, v26")
    srd(g, sDW, kdw, 5120)
    g(f"s_lshl_b32 s{sT1}, s{sW}, 28")
    g(f"s_add_u32 s{sT1}, s{sT1}, s{sOff}")
    g(f"s_lshl3_add_u32 s{sT2}, s{sE}, s{sT1}")
    g(f"v_bfe_u32 v37, v0, 2, 2")
    g(f"v_lshlrev_b32 v38, 1, v2")
    g(f"v_sub_u32 v37, v38, v37")
    g(f"v_lshl_add_u32 v37, v37, 10, s{sT2}")
    g(f"v_lshl_add_u32 v37, v3, 1, v37")
    g(f"v_add_u32 v38, 1024, v37")
    g(f"s_lshl_b32 s{sT2}, s{sE}, 8")
    g(f"s_add_u32 s{sT1}, s{sT1}, s{sT2}")
    g(f"s_add_u32 s{sT1}, s{sT1}, {CTOFF}")
    g(f"v_lshl_add_u32 v41, v0, 2, s{sT1}")
    def task_load():
        g(f"s_lshl_b32 s{sT1}, s{sW}, 10")
        g(f"s_add_u32 m0, s{sT1}, {SCR}")
        g.vmem(f"buffer_load_ushort v48, v37, s[{sDW}:{sDW+3}], 0 offen", [48], tag="task")
        g.vmem(f"buffer_load_dwordx4 v42, s[{sW1}:{sW1+3}], s{sS1} offen nt lds", tag="task")
        g(f"s_add_u32 m0, m0, 4096")
        g.vmem(f"buffer_load_ushort v49, v38, s[{sDW}:{sDW+3}], 0 offen", [49], tag="task")
        g.vmem(f"buffer_load_dwordx4 v43, s[{sW1}:{sW1+3}], s{sS1} offen nt lds", tag="task")
        g(f"s_add_u32 m0, m0, 4096")
        ct_srd()
        g.vmem(f"buffer_load_dwordx4 v44, s[{sW2}:{sW2+3}], s{sS2} offen nt lds", tag="task")
        srd(g, sW2, sWq, 0x148000)
    tk = opt.get("tk", 1)
    if tk == 1:
        task_load()
    assert rbar and win == 2
    def clear():
        g(f"s_and_b32 s{sGrp}, s{sTile}, 0xfc")
        g(f"s_lshl_b32 s{sT1}, s{sW}, 10")
        g(f"v_lshlrev_b32 v21, 4, v0")
        for r in range(4):
            g(f"v_mov_b32 v{52+r}, -1")
        g.vmem(f"buffer_store_dwordx4 v[52:55], v21, s[{sWS}:{sWS+3}], s{sT1} offen sc0 sc1", tag="clr")
    def w_first():
        if opt.get("wrot", 0):
            sh, bits = {2: (2, 1), 4: (1, 2), 8: (0, 3)}[opt["wrot"]]
            g(f"s_bfe_u32 s{sT0}, s{sWg}, {bits * 0x10000 + 3}")
            g(f"s_lshl_b32 s{sT0}, s{sT0}, {10 + sh}")
            for n in range(8):
                g(f"s_add_u32 m0, s{sRing}, s{sT0}")
                g(f"s_lshr_b32 s{sT1}, s{sT0}, 2")
                g(f"s_lshl_b32 s{sT2}, s{sT0}, 5")
                g(f"s_or_b32 s{sT1}, s{sT1}, s{sT2}")
                g(f"s_and_b32 s{sT1}, s{sT1}, 0x18400")
                g.vmem(f"buffer_load_dwordx4 v{vD1}, s[{sW1}:{sW1+3}], s{sT1} offen lds", tag=("x", 0))
                if n < 7:
                    g(f"s_add_u32 s{sT0}, s{sT0}, 1024")
                    g(f"s_and_b32 s{sT0}, s{sT0}, 0x1c00")
            return
        P[0].advance(g, 0)
        for ab in range(2):
            set_m0(g, ab)
            g("s_nop 0")
            for m in range(4):
                P[0].dma(g, ab, m, ("x", 0))
    wA = opt.get("wA", 2)
    if wA:
        g.barrier("w0")
    else:
        w_first()
    for kp in range(1, win):
        x_issue(kp)
    g.wait(vm=("x", 0))
    g.barrier("x0")
    g("s_branch L_roleB")
    vmB = list(g.vm)
    if oddp:
        assert full and wA and tk == 1 and opt.get("ak", 2) == 2
        g.vm, g.bars = vm0, []
        g("L_oddB:")
        ct_srd()
        g.barrier("w0")
        x_issue(1)
        for kp in range(3):
            g.wait(vm=("x", kp) if kp < 2 else "clr")
            g.barrier(f"x{kp}")
            if kp < 2:
                g.barrier(f"r{kp}")
                x_issue(kp + 2)
            if kp == 0:
                clear()
        odd_state = ([t for _, t in g.vm], list(g.bars))
        g("s_branch L_ann")
    g("L_notile:")
    if opt.get("hw", 2):
        g(f"s_cmp_lt_u32 s{sWv}, 4")
        g("s_cbranch_scc1 L_end")
        g("s_waitcnt lgkmcnt(0)")
        l2_warm("n")
        if opt.get("hw", 2) >= 3:
            srd(g, sDBG, kdbg, 256)
            g(f"s_add_u32 s{sWP}, s{kws}, {WPOFF}")
            g(f"s_addc_u32 s{sWP+1}, s{kws+1}, 0")
            g(f"s_mov_b32 s{sWP+2}, 0x148000")
            g(f"s_mov_b32 s{sWP+3}, 0x20000")
            g(f"v_mov_b32 v24, 15")
            g(f"v_and_b32 v23, 15, v0")
            g(f"v_add_u32 v23, 1, v23")
            g(f"v_lshrrev_b32 v23, 4, v23")
            g(f"v_lshrrev_b32 v23, v23, v24")
            g(f"v_lshlrev_b32 v21, 2, v0")
            g(f"v_lshlrev_b32 v6, 7, v0")
            g(f"s_mov_b32 s{sT2}, {opt.get('spin', 4000000)}")
            g("L_hrdy:")
            g(f"buffer_load_dword v22, v21, s[{sDBG}:{sDBG+3}], 0 offen sc0 sc1")
            g("s_waitcnt vmcnt(0)")
            g(f"v_cmp_lt_u32 vcc, v22, v23")
            g(f"s_sub_u32 s{sT2}, s{sT2}, 1")
            g("s_cbranch_scc1 L_end")
            g("s_cbranch_vccnz L_hrdy")
            g(f"s_lshl_b32 s{sT1}, s{sW}, 16")
            g(f"s_lshl_b32 s{sT2}, s{sW}, 13")
            g(f"s_add_u32 s{sT2}, s{sT2}, {CTOFF}")
            for idx in range(5):
                for kp in range(8):
                    src = kp if idx < 3 else QORD[kp >> 1] * 2 + (kp & 1)
                    g(f"s_add_u32 s{sT0}, s{sT1}, {idx * 262144 + src * 8192}")
                    g(f"buffer_load_dword v{30 + idx*8 + kp}, v6, s[{sWP}:{sWP+3}], s{sT0} offen sc1")
                    if idx == 0 and kp == 1:
                        g(f"buffer_load_dword v29, v6, s[{sWP}:{sWP+3}], s{sT2} offen sc1")
    g("s_endpgm")
    g.vm = []; g.bars = []

    g("L_startA:")
    if opt.get("pf", 8):
        n = opt.get("pf", 8)
        g(f"s_getpc_b64 s[{sCode}:{sCode+1}]")
        g(f"s_movk_i32 s{sCode+2}, {n * 128}")
        g(f"s_mov_b32 s{sCode+3}, 0x20000")
        g(f"s_mul_i32 s{sT0}, s{sW}, {n * 128}")
        g(f"s_add_u32 s{sCode}, s{sCode}, s{sT0}")
        g(f"s_addc_u32 s{sCode+1}, s{sCode+1}, 0")
        g(f"v_lshlrev_b32 v9, 7, v0")
        g.vmem(f"buffer_load_dword v8, v9, s[{sCode}:{sCode+3}], 0 offen", [8])
    d1_addr()
    g("s_waitcnt lgkmcnt(0)")
    if opt.get("tlb", 0):
        g(f"s_add_u32 s{sO}, s{kout}, s2")
        g(f"s_addc_u32 s{sO+1}, s{kout+1}, 0")
        for n, (k, off) in enumerate(((kw1, 0), (kdw, 0), (kw2, 0), (kws, 0x80000), (sO, 0))):
            g(f"s_load_dword s3, s[{k}:{k+1}], {off}")
    srd(g, sW1, kw1, 1048576)
    g(f"s_lshr_b32 s{sT1}, s{sWg}, 3")
    g(f"s_lshl2_add_u32 s{sSl}, s{sT1}, s{sW}")
    if opt.get("warm0", 1) == 2:
        swarm(wlines(0)[:12 * len(sub)])
    if opt.get("cw", 1) == 2:
        g(f"s_getpc_b64 s[{sCode}:{sCode+1}]")
        g("L_pc2:")
        g(f"s_mov_b32 s{sCode+2}, L_code_end-L_pc2")
        g(f"s_mov_b32 s{sCode+3}, 0x20000")
        g(f"s_lshl_b32 s{sT2}, s{sSl}, 6")
        for n in range(9):
            g(f"s_buffer_load_dword s3, s[{sCode}:{sCode+3}], s{sT2}")
            g(f"s_add_u32 s{sT2}, s{sT2}, 8192")
    if b0:
        g("s_barrier")
    if wA >= 2:
        w_first()
    if wA == 3:
        g.barrier("w0")
    g("L_A2:")
    common(0)
    ct_srd()
    if wA == 1:
        w_first()
    if stamps == 4:
        g(f"s_add_u32 s4, s40, {STAMP_OFF}\ns_addc_u32 s5, s41, 0\ns_mov_b32 s6, 0x100000\ns_mov_b32 s7, 0x20000")
        g(f"s_lshl_b32 s42, s{sWg}, 3\ns_add_u32 s42, s42, s{sWv}\ns_lshl_b32 s42, s42, 7")
        g("v_mov_b32 v8, s74\nv_mov_b32 v9, s75\nv_mov_b32 v10, s74\nv_mov_b32 v11, s75\nv_and_b32 v12, 1, v0\nv_lshrrev_b32 v13, 1, v0\nv_lshlrev_b32 v12, 9, v12\nv_lshl_add_u32 v12, v13, 24, v12")
        g.vmem("buffer_store_dwordx4 v[8:11], v12, s[4:7], s42 offen sc0 sc1")
    if wA:
        if wA < 3:
            g.barrier("w0")
        g.drain(vm=True)
        g("s_waitcnt lgkmcnt(0)")
    g.stamp(8)
    g.barrier("x0")
    g.stamp(9)
    it = start_a(g, P[0])
    run(it[:8] + start_x(g, P[0]) + start_b(g, P[0])[:8])
    run(it[8:10]); g("s_nop 0"); run(it[10:] + start_b(g, P[0])[8:])
    ex = {(kp, rbar): (lambda kp=kp: g.barrier(f"r{kp}")) for kp in range(8 - win)} if rbar else {}
    g.stamp(1)
    if d1:
        def h0():
            g.wait(lg=("rb", 7))
            g.barrier("h0")
        ex[(7, opt.get("h0g", 45))] = h0
    mfma_phase(g, P[0], None if d1 else P[1], "h0", xbar=lambda kp: g.barrier(f"x{kp}"), first=True, extra=ex)
    g.stamp(2)
    def sw(reg, off, va=vS):
        return lambda: g.ds(f"ds_write_b128 v{va}, {R(reg)} offset:{off}", tag="sw")
    e_phase(g, 0, VH, pre=P2.start_w(g) + P2.start_x(g), warm=e_warm(2))
    if not d1:
        g.barrier("h1")
    g.stamp(3)
    direct_phase(g, P2)
    g.stamp(4)
    e_phase(g, 2, 0, pre=GA.start_w(g), warm=e_warm(4) + (e_warm(5, 14 if e_warm(4) else 0) if opt.get('w5', 2) == 2 else []))
    g_addr(g)
    outv_addr(g, 64)
    g.barrier("h3")
    nb_ = opt.get("burst", 0)
    if nb_ >= 8:
        run([sw(4 * j, 32768 + j * 2048) for j in range(8)] + GA.start_x(g) + [sw(VH + 4 * j, j * 2048) for j in range(nb_ - 8)])
    else:
        run([sw(0, 32768), sw(4, 32768 + 2048)] + GA.start_x(g) + [sw(8, 32768 + 4096)])
    g.stamp(5)
    yl = [int(v) for v in str(opt.get("yl", "4 6 7")).split()]
    GA.merge = int(len(yl) > 1)
    def xbarA(kp, j):
        if kp == 2 and j == 0:
            g.wait(lg="sw")
            g.barrier("V")
        if kp == 6 and (j == 0 or j - 1 in yl):
            g.barrier(f"Y{min(v for v in yl if v >= j)}")
    ex = {(0, 8 * (j - 3) + 4): sw(4 * j, 32768 + j * 2048) for j in range(3, 8)} if nb_ < 8 else {}
    fr = ((0, 44), (0, 52), (1, 4), (1, 12), (1, 20), (1, 28), (1, 34), (1, 38))
    ex.update({fr[j]: sw(VH + 4 * j, j * 2048) for j in range(max(nb_ - 8, 0), 8)})
    na = opt.get("na", 0) if GA.merge else 0
    pend = out_interleave(g, ex, GA, [int(c) for c in str(opt.get("opera", 2))], na, opt.get("stA", "nt")) if na else []
    split = opt.get("split", 0)
    HB, HA = Half(0), Half(1)
    if split:
        assert GA.merge and not na
        for n, f in enumerate(HA.loads(g, 4) + HA.loads(g, 5)):
            ex[(6, 8 * (n // 2) + 3 + 2 * (n % 2))] = f
    direct_phase(g, GA, xbar=xbarA, extra=ex)
    g.stamp(6)
    g("s_setprio 0")
    g("s_nop 6")
    run(pend)
    zg = [int(v) for v in str(opt.get("zg", "2 2 2 2")).split() if int(v)]
    j = na
    assert na + sum(zg) <= 8
    for n, cnt in enumerate(zg):
        for jj in range(j, j + cnt):
            run(outv_items(g, jj, jj, opt.get("stA", "nt"), 1))
        g.barrier(f"Z{n}")
        for jj in range(j, j + cnt):
            run(outv_items(g, jj, jj, opt.get("stA", "nt"), 3))
        j += cnt
    for jj in range(j, 8):
        if opt.get("outA", 2): run(outv_items(g, jj, jj, opt.get("stA", "nt"), opt.get("outA", 2), None if split else opt.get("infl", 1)))
        if split and jj < 6:
            run(HA.loads(g, (0, 1, 2, 3, 6, 7)[jj]))
    if split:
        g("s_nop 0")
        outv_addr(g, 16, 1)
        run(HA.start_x(g, 0, 5))
        g.stamp(8)
        ex, pend = {}, []
        def f(m):
            if m % 64 == 7 and m > 63:
                j = 2 * (m // 64 - 1)
                pend.extend(outv_items(g, j, j // 2, opt.get("stH", "sc1"), Q=[HA.aq(j + q // 2, q % 2) for q in range(4)]))
            if m % 4 >= 2:
                for _ in range(opt.get("hper", 2)):
                    if pend: pend.pop(0)()
        HA.phase(g, {m: (lambda m=m: f(m)) for m in range(256)})
        assert not pend
        g.stamp(9)
        g("s_nop 7")
        run(outv_items(g, 6, 3, opt.get("stH", "sc1"), Q=[HA.aq(6 + q // 2, q % 2) for q in range(4)]))
    g.stamp(7)
    barsA = g.bars
    g("s_branch L_fin")

    g.lg, g.vm, g.bars = [], vmB, ["w0", "x0"] if wA else ["x0"]
    g("L_roleB:")
    def task_read():
        assert not any(t == "task" for _, t in g.vm)
        for n in range(3):
            g(f"ds_read_b64_tr_b16 v[{28+4*n}:{29+4*n}], v{26 + n // 2} offset:{4096*n}")
            g(f"ds_read_b64_tr_b16 v[{30+4*n}:{31+4*n}], v{26 + n // 2} offset:{4096*n + 2048}")
        g(f"v_lshl_or_b32 v48, v49, 16, v48")
        g("s_waitcnt lgkmcnt(0)")
    def task_store():
        if opt.get("psc", 0):
            g(f"s_bitcmp1_b32 s{sE}, 4")
            g(f"s_cselect_b32 s{sT1}, s{sC}, 1.0")
            for r in range(28, 36):
                g(f"v_lshlrev_b32 v50, 16, v{r}")
                g(f"v_and_b32 v51, 0xffff0000, v{r}")
                g(f"v_mul_f32 v50, s{sT1}, v50")
                g(f"v_mul_f32 v51, s{sT1}, v51")
                g(f"v_cvt_pk_bf16_f32 v{r}, v50, v51")
        g.vmem(f"buffer_store_dword v48, v41, s[{sW2}:{sW2+3}], 0 offen sc0 sc1", tag="clr")
        for n in range(3):
            g.vmem(f"buffer_store_dwordx4 {R(28+4*n)}, v{45+n}, s[{sW2}:{sW2+3}], s{(sD1, sD1, sD2)[n]} offen sc0 sc1", tag="clr")
    if tk == 2 and opt.get("tpre", 1):
        task_load()
    g.barrier("r0")
    if tk == 2 and not opt.get("tpre", 1):
        task_load()
    x_issue(win)
    clear()
    g.stamp(1)
    def ready():
        g(f"s_mov_b32 s{sT2}, {opt.get('spin', 4000000)}")
        g.wait(regs=[22])
        g.point("rdy_")
        if opt.get("p1", 1):
            assert pk < 7 and "1" not in str(opt.get("wk", "5"))
            g(f"s_cmp_lg_u32 s{sW}, 0")
            g("s_cbranch_scc1 L_rdy_ok")
        g("L_rdy:")
        g(f"v_cmp_lt_u32 vcc, v22, v23")
        g(f"s_sub_u32 s{sT2}, s{sT2}, 1")
        g("s_cbranch_scc1 L_rdy_ok")
        g("s_cbranch_vccz L_rdy_ok")
        g(f"buffer_load_dword v22, v21, s[{sDBG}:{sDBG+3}], 0 offen sc0 sc1")
        g("s_waitcnt vmcnt(0)")
        g("s_branch L_rdy")
        g("L_rdy_ok:")
        g.point("rdy")
    pk = opt.get("pk", 6) if d1 else 7
    ak = opt.get("ak", 2)
    for kp in range(1, 8):
        g.wait(vm=("x", kp))
        if kp == ak:
            g.wait(vm="clr")
        g.barrier(f"x{kp}")
        if kp in (3, 7) and not opt.get("hd"):
            g.stamp({0: 1, 3: 8, 7: 9}[kp])
        if kp == tk:
            task_read()
            task_store()
        if kp == ak:
            assert not any(t == "clr" for _, t in g.vm)
            g("L_ann:")
            g(f"s_cmp_lg_u32 s{sW}, 0")
            g("s_cbranch_scc1 L_noann")
            g(f"s_and_b32 s{sT1}, s{sTile}, 3")
            g(f"s_lshl_b32 s{sT1}, 1, s{sT1}")
            if "a" not in str(opt.get("abl", "")):
                g(f"s_atomic_or s{sT1}, s[{sDBG}:{sDBG+1}], s{sGrp}")
            g("L_noann:")
            if oddp:
                assert odd_state == ([t for _, t in g.vm], g.bars), (odd_state, g.vm, g.bars)
        if kp + win < 8:
            g.barrier(f"r{kp}")
        if kp == pk - 1:
            g(f"v_mov_b32 v24, 15")
            g(f"v_and_b32 v23, 15, v0")
            g(f"v_add_u32 v23, 1, v23")
            g(f"v_lshrrev_b32 v23, 4, v23")
            g(f"v_lshrrev_b32 v23, v23, v24")
            g(f"s_lshl_b32 s{sT2}, s{sW}, {20 if opt.get('p1', 1) else 32}")
            g(f"v_lshlrev_b32 v21, 2, v0") if not opt.get("p1", 1) else g(f"v_lshl_add_u32 v21, v0, 2, s{sT2}")
            g.vmem(f"buffer_load_dword v22, v21, s[{sDBG}:{sDBG+3}], 0 offen sc0 sc1", [22])
        if kp + win < 8:
            x_issue(kp + win)
        if kp == pk:
            ready()
        if "1" in str(opt.get("wk", "5")) or not d1:
            if d1:
                nb = -(-32 // (8 - pk))
                if kp >= pk: swarm(later[(kp - pk) * nb:(kp - pk + 1) * nb])
            elif 2 <= kp < 6:
                swarm(later[(kp - 2) * nb:(kp - 1) * nb])
    g.drain(vm=True)
    def idle_start(name, own):
        run(start_x(g, own))
        g.barrier(name + "a")
        run(start_a(g, own))
        g.barrier(name + "b")
        g("s_setprio 1")
        run(start_b(g, own))
    if d1:
        run(P1.start_w(g))
        g("s_waitcnt lgkmcnt(0)")
        run(P1.start_x(g))
        g.barrier("h0")
        g.stamp(2)
        direct_phase(g, P1, reset=True)
    else:
        g("s_waitcnt lgkmcnt(0)")
        idle_start("h0", P[1])
        g.stamp(2)
        def h1():
            g.wait(lg=("rb", 7))
            g.barrier("h1")
        mfma_phase(g, P[1], None, None, extra={(7, opt.get("h1g", 20)): h1})
    g.stamp(3)
    e_phase(g, 1, 0, pre=P3.start_w(g) + P3.start_x(g), warm=e_warm(3), after_tile=lambda e, j: e.q2.append(sw(4 * j, 32768 + j * 2048)))
    g.wait(lg="sw")
    g.stamp(4)
    def h3():
        assert not any(t == "sw" for _, t in g.lg)
        g.barrier("h3")
    ex = {(7, opt.get("h3g", 30)): h3}
    if split:
        for n, f in enumerate(HB.loads(g, 0) + HB.loads(g, 1)):
            ex[(7, 8 * (n // 2) + 3 + 2 * (n % 2))] = f
    direct_phase(g, P3, extra=ex)
    g.stamp(5)
    def vB(e, j):
        if j == opt.get("vtile", 4):
            g.barrier("V")
            g_addr(g)
    def yB(e, j):
        e.q2.append(sw(4 * j, j * 2048))
        if j in yl:
            def f():
                g.wait(lg="sw")
                g.barrier(f"Y{j}")
            e.q2 += [lambda: None] * opt.get("ydel", 2) + [f]
    if split:
        np4 = opt.get("np4", 2)
        pre4 = [f for kp in range(2, 2 + np4) for f in HB.loads(g, kp)] + HB.start_x(g, 0, 3)
        e_phase(g, 3, 0, pre4=pre4, glu_tile=vB, after_tile=yB, tw=0)
        run(HB.start_x(g, 3, 5) + [f for kp in range(2 + np4, 8) for f in HB.loads(g, kp)])
        outv_addr(g, 88, 0)
        g.stamp(6)
        HB.phase(g, {opt.get("hbp", 66): lambda: g("s_setprio 2")})
        g.stamp(7)
        g("s_setprio 0")
        g("s_nop 6")
        for jp in range(4):
            run(outv_items(g, 2 * jp, jp, opt.get("stH", "sc1"), inflight=opt.get("inflB"), Q=[HB.aq(2 * jp + q // 2, q % 2) for q in range(4)]))
    else:
        e_phase(g, 3, 0, pre=GB.start_w(g) + GB.start_x(g), glu_tile=vB,
                warm=e_warm(5) if opt.get('w5', 2) == 3 else [], after_tile=yB, tw=0)
        outv_addr(g)
        GB.merge = opt.get("merge", 3)
        if GB.merge and opt.get("early7", 1):
            GB.early7 = True
            GB.soff(g, 7, 0); GB.soff(g, 7, 1)
            for f in range(8): GB.load(g, 7, f)
            GB.soff(g, 1, 0); GB.soff(g, 1, 1)
        g.stamp(6)
        ex = {}
        for n in range(len(zg)):
            ex[(n, opt.get("zat", 30))] = (lambda n=n: g.barrier(f"Z{n}"))
        pend = out_interleave(g, ex, GB, [int(c) for c in str(opt.get("oper", 2 if GB.merge else 4))], 7, opt.get("stB", "nt"), opt.get("outB", 2))
        direct_phase(g, GB, extra=ex)
        g.stamp(7)
        if len(pend) < 8:
            g("s_nop 7")
        run(pend)
        run(outv_items(g, 7, 7, opt.get("stB", "nt"), opt.get("outB", 2)))
    assert g.bars == barsA, (g.bars, barsA)
    g("L_fin:")
    if stamps and stamps != 4:
        g("s_waitcnt vmcnt(0)")
        g("s_memrealtime s[98:99]")
        g(f"s_mem{'real' if stamps == 3 else ''}time s[100:101]")
        g(f"s_add_u32 s4, s40, {STAMP_OFF}\ns_addc_u32 s5, s41, 0\ns_mov_b32 s6, 0x100000\ns_mov_b32 s7, 0x20000")
        g(f"s_lshl_b32 s8, s{sWg}, 3\ns_add_u32 s8, s8, s{sWv}\ns_lshl_b32 s8, s8, 7")
        g("s_waitcnt lgkmcnt(0)")
        g("s_mov_b64 exec, 1")
        g("v_mov_b32 v4, 0")
        g("s_getreg_b32 s10, hwreg(HW_REG_XCC_ID)\ns_mov_b32 s11, 0")
        order = [74, 98, 76, 100] + [76 + 2 * n for n in range(1, 10)] + [10]
        for n, s in enumerate(order):
            g(f"v_mov_b32 v0, s{s}\nv_mov_b32 v1, s{s+1}")
            g(f"buffer_store_dwordx2 v[0:1], v4, s[4:7], s8 offen offset:{8*n}")
            g("s_nop 1")
    g("L_end:")
    g("s_endpgm")
    g("L_code_end:")
    g('.section .rodata,"a"')
    g(".p2align 6")
    g(f".amdhsa_kernel {KN}_kernel")
    g.l += ["  .amdhsa_next_free_vgpr 256", "  .amdhsa_next_free_sgpr 102", "  .amdhsa_accum_offset 256",
            "  .amdhsa_group_segment_fixed_size 0", "  .amdhsa_kernarg_size 56", "  .amdhsa_user_sgpr_count 2",
            "  .amdhsa_user_sgpr_kernarg_segment_ptr 1", "  .amdhsa_system_sgpr_workgroup_id_x 1",
            f"  .amdhsa_float_denorm_mode_32 {opt.get('dn', 3)}"]
    g(".end_amdhsa_kernel")
    if opt.get("near", 1):
        L = g.l
        a0 = L.index("L_startA:"); a1 = L.index("L_A2:")
        blk = L[a0 + 1:a1]
        del L[a0:a1]
        if opt.get("near", 1) == 1:
            br = L.index("    s_cbranch_scc1 L_startA")
            L[br:br + 1] = ["    s_cbranch_scc0 L_startB"] + blk + ["    s_branch L_A2", "L_startB:"]
        else:
            at = L.index("L_B2:")
            L[at:at] = ["    s_branch L_B2", "L_startA:"] + blk + ["    s_branch L_A2"]
    t = g.text()
    if stamps and opt.get("probe", 1):
        t = t.replace("; @launch grid=(256,1,1) block=(512,1,1) lds=163840",
                      f"; @launch kernel={KN}_kernel grid=(256,1,1) block=(512,1,1) lds=163840\n; @launch kernel=probe_kernel grid=(1,1,1) block=(64,1,1) lds=0")
        a = [".p2align 8", ".globl probe_kernel", ".type probe_kernel,@function", "probe_kernel:",
             "s_memrealtime s[8:9]", "s_load_dwordx2 s[4:5], s[0:1], 48", "s_waitcnt lgkmcnt(0)",
             f"s_add_u32 s4, s4, {STAMP_OFF}", "s_addc_u32 s5, s5, 0", "s_mov_b32 s6, 0x100000", "s_mov_b32 s7, 0x20000",
             "v_mov_b32 v2, s8", "v_mov_b32 v3, s9", "v_mov_b32 v1, 120", "buffer_store_dwordx2 v[2:3], v1, s[4:7], 0 offen", "s_endpgm"]
        t = t.replace('.section .rodata,"a"', "\n".join(a) + '\n.section .rodata,"a"')
        t += ".p2align 6\n.amdhsa_kernel probe_kernel\n  .amdhsa_next_free_vgpr 16\n  .amdhsa_next_free_sgpr 32\n  .amdhsa_accum_offset 16\n" \
             "  .amdhsa_group_segment_fixed_size 0\n  .amdhsa_kernarg_size 56\n  .amdhsa_user_sgpr_count 2\n" \
             "  .amdhsa_user_sgpr_kernarg_segment_ptr 1\n  .amdhsa_system_sgpr_workgroup_id_x 1\n.end_amdhsa_kernel\n"
    return t


def parse(args):
    opt = {}
    for a in args:
        k, v = a.split("=", 1)
        try:
            v = int(v)
        except ValueError:
            v = v.replace("+", " ")
        opt[k] = v
    return opt


if __name__ == "__main__":
    open(sys.argv[1], "w").write(build(parse(sys.argv[2:])))
```
